```python
import torch

def _softmax(x, axis=-1):
    return torch.softmax(x, dim=axis)
def _gelu(x):
    return torch.nn.functional.gelu(x, approximate="tanh")
def _silu(x):
    return torch.nn.functional.silu(x)
def _sigmoid(x):
    return torch.sigmoid(x)
def _layernorm(x, axis=-1, eps=1e-5):
    m = x.mean(dim=axis, keepdim=True)
    v = x.var(dim=axis, keepdim=True, unbiased=False)
    return (x - m) / torch.sqrt(v + eps)
def _scatter_add(tgt, idx, src, axis=0):
    return tgt.clone().index_add_(axis, idx, src)
def _segment_sum(src, seg, n):
    out = torch.zeros((n,) + src.shape[1:], dtype=src.dtype)
    return out.index_add_(0, seg, src)
def _pad(x, pw):
    flat = tuple(v for pair in reversed(pw) for v in pair)
    return torch.nn.functional.pad(x, flat)

kernel_name = 'sequential_preLN__grouped_kv_mqa__geglu_ffn__prompt'

def setup_inputs():

    _w = (lambda a: (lambda t: t.to(torch.bfloat16) if t.is_floating_point() else t)(torch.as_tensor(a)))
    def _A_setup():
        B, S, D, H = 1, 2048, 448, 16
        Dh = D // H
        return {
            "x": _w((lambda *s: torch.randn(*s, dtype=torch.bfloat16) * 0.05)(B, S, D)),
            "wq": _w((lambda *s: torch.randn(*s, dtype=torch.bfloat16) * 0.05)(D, H * Dh)),
            "wk": _w((lambda *s: torch.randn(*s, dtype=torch.bfloat16) * 0.05)(D, Dh)),
            "wv": _w((lambda *s: torch.randn(*s, dtype=torch.bfloat16) * 0.05)(D, Dh)),
            "wo": _w((lambda *s: torch.randn(*s, dtype=torch.bfloat16) * 0.05)(H * Dh, D)),
        }
    _A_in = _A_setup()

    def _B_setup():
        B, S, D, F = 1, 2048, 448, 1792
        return {
            "x": _w((lambda *s: torch.randn(*s, dtype=torch.bfloat16) * 0.05)(B, S, D)),
            "w_gate": _w((lambda *s: torch.randn(*s, dtype=torch.bfloat16) * 0.05)(D, F)),
            "w_up": _w((lambda *s: torch.randn(*s, dtype=torch.bfloat16) * 0.05)(D, F)),
            "w_down": _w((lambda *s: torch.randn(*s, dtype=torch.bfloat16) * 0.05)(F, D)),
        }
    _B_in = _B_setup()

    return {
        "A_x": _A_in["x"],
        "A_wq": _A_in["wq"],
        "A_wk": _A_in["wk"],
        "A_wv": _A_in["wv"],
        "A_wo": _A_in["wo"],
        "B_x": _B_in["x"],
        "B_w_gate": _B_in["w_gate"],
        "B_w_up": _B_in["w_up"],
        "B_w_down": _B_in["w_down"],
    }

def reference(A_x, A_wq, A_wk, A_wv, A_wo, B_x, B_w_gate, B_w_up, B_w_down):
    def _A_ref(x, wq, wk, wv, wo):
        B, S, D = x.shape
        H = 16
        Dh = D // H
        q = (lambda x, *d: x.permute(*d))((x @ wq).reshape(B, S, H, Dh), 0, 2, 1, 3)
        k = x @ wk
        v = x @ wv
        scores = torch.einsum("bhqd,bkd->bhqk", q, k) * (Dh ** -0.5)
        p = _softmax(scores, axis=-1)
        o = torch.einsum("bhqk,bkd->bhqd", p, v)
        return (lambda x, *d: x.permute(*d))(o, 0, 2, 1, 3).reshape(B, S, H * Dh) @ wo

    def _B_ref(x, w_gate, w_up, w_down):
        return (_gelu(x @ w_gate) * (x @ w_up)) @ w_down

    x = A_x
    h = x + _A_ref(_layernorm(x, axis=-1), A_wq, A_wk, A_wv, A_wo)
    h2 = h + _B_ref(_layernorm(h, axis=-1), B_w_gate, B_w_up, B_w_down)
    return h2
```

```python
import re

TRANS = ("v_exp_f32", "v_log_f32", "v_rcp_f32", "v_rsq_f32", "v_sqrt_f32", "v_sin_f32", "v_cos_f32")

def v(a, n=1):
    return f"v{a}" if n == 1 else f"v[{a}:{a+n-1}]"
def a(x, n=1):
    return f"a{x}" if n == 1 else f"a[{x}:{x+n-1}]"
def s(x, n=1):
    return f"s{x}" if n == 1 else f"s[{x}:{x+n-1}]"
def r(x, n=1):
    return v(x, n) if x < 256 else a(x - 256, n)


class Asm:
    def __init__(self):
        self.lines = []
        self.vm = 0
        self.lg = 0
        self.vm_done = 0
        self.lg_done = 0

    def raw(self, text):
        self.lines.append(text)

    def label(self, name):
        self.lines.append(name + ":")

    def comment(self, text):
        self.lines.append("    ; " + text)

    def __call__(self, text):
        self.lines.append("    " + text)
        op = text.split()[0]
        if op.startswith(("buffer_", "global_")):
            self.vm += 1
            return ("vm", self.vm)
        if op.startswith("ds_"):
            self.lg += 1
            return ("lg", self.lg)
        return None

    def wait_text(self, *tokens):
        vmn = max([t[1] for t in tokens if t and t[0] == "vm"], default=0)
        lgn = max([t[1] for t in tokens if t and t[0] == "lg"], default=0)
        parts = []
        if vmn > self.vm_done:
            n = min(self.vm - vmn, 63)
            parts.append(f"vmcnt({n})")
            self.vm_done = self.vm - n
        if lgn > self.lg_done:
            n = min(self.lg - lgn, 15)
            parts.append(f"lgkmcnt({n})")
            self.lg_done = self.lg - n
        return "s_waitcnt " + " ".join(parts) if parts else None

    def wait(self, *tokens):
        t = self.wait_text(*tokens)
        if t:
            self.lines.append("    " + t)
        return t

    def wait_all(self, vm=True, lg=True):
        parts = []
        if vm:
            parts.append("vmcnt(0)")
            self.vm_done = self.vm
        if lg:
            parts.append("lgkmcnt(0)")
            self.lg_done = self.lg
        self.lines.append("    s_waitcnt " + " ".join(parts))

    def nop(self, n):
        while n > 0:
            k = min(n, 16)
            self.lines.append(f"    s_nop {k-1}")
            n -= k

    def text(self):
        return "\n".join(self.lines) + "\n"


REG = re.compile(r"\b([vas])(?:(\d+)|\[(\d+):(\d+)\])")

def regs_of(tok):
    out = []
    for m in REG.finditer(tok):
        k = m.group(1)
        lo = int(m.group(2) if m.group(2) is not None else m.group(3))
        hi = int(m.group(2) if m.group(2) is not None else m.group(4))
        out += [(k, i) for i in range(lo, hi + 1)]
    for name in ("vcc", "exec", "m0"):
        if re.search(r"\b" + name + r"(_lo|_hi)?\b", tok):
            out.append(("s", name))
    return out


def split_ops(rest):
    return [x.strip() for x in rest.split(",")] if rest else []


class Ins:
    def __init__(self, text, lineno):
        self.text = text
        self.lineno = lineno
        parts = text.split(None, 1)
        self.op = op = parts[0]
        ops = split_ops(parts[1] if len(parts) > 1 else "")
        self.w, self.rd = [], []
        self.kind = "other"
        self.states = 1
        self.cregs = []
        self.abregs = []
        self.passes = 0
        self.store_data = []
        self.lds_dma = False
        if op == "s_nop":
            self.states = int(ops[0], 0) + 1
            self.kind = "salu"
        elif op.startswith(("v_mfma", "v_smfmac")):
            self.kind = "mfma"
            self.passes = 8 if "32x32" in op else 4
            self.w = regs_of(ops[0])
            self.abregs = regs_of(ops[1]) + regs_of(ops[2])
            if op.startswith("v_smfmac"):
                self.cregs = regs_of(ops[0])
                self.abregs += regs_of(ops[3])
            else:
                self.cregs = regs_of(ops[3])
            self.rd = self.abregs + self.cregs
        elif op.startswith("v_"):
            self.kind = "valu"
            nd = 1
            if op.startswith(("v_add_co", "v_addc_co", "v_sub_co", "v_subb_co")):
                nd = 2
            for o in ops[:nd]:
                self.w += regs_of(o)
            for o in ops[nd:]:
                self.rd += regs_of(o)
            if op.startswith(("v_permlane16_swap", "v_permlane32_swap", "v_swap")):
                self.w = regs_of(ops[0]) + regs_of(ops[1])
                self.rd = list(self.w)
            if op.startswith(("v_fmac", "v_dot2c", "v_writelane")) or "UNUSED_PRESERVE" in text or "_dpp" in op or "quad_perm" in text or "row_" in text:
                self.rd += regs_of(ops[0])
            if op.startswith("v_cmpx"):
                self.w.append(("s", "exec"))
        elif op.startswith(("buffer_wbl2", "buffer_inv")):
            self.kind = "vmem"
        elif op.startswith(("buffer_", "global_")):
            self.kind = "vmem"
            toks = text.split()
            if "lds" in toks or op.startswith("global_load_lds"):
                self.lds_dma = True
                for o in ops:
                    self.rd += regs_of(o)
                self.rd.append(("s", "m0"))
            elif "load" in op:
                self.w = regs_of(ops[0])
                for o in ops[1:]:
                    self.rd += regs_of(o)
            else:
                di = 0 if op.startswith("buffer_") else 1
                for o in ops:
                    self.rd += regs_of(o)
                if "x3" in op or "x4" in op:
                    self.store_data = regs_of(ops[di])
        elif op.startswith("ds_"):
            self.kind = "ds"
            if "read" in op or "permute" in op or "swizzle" in op:
                self.w = regs_of(ops[0])
                for o in ops[1:]:
                    self.rd += regs_of(o)
            else:
                for o in ops:
                    self.rd += regs_of(o)
        elif op.startswith("s_"):
            self.kind = "salu"
            if op.startswith(("s_load", "s_memtime", "s_memrealtime", "s_buffer_load")):
                self.kind = "smem"
            if op.startswith(("s_cmp", "s_cbranch", "s_branch", "s_waitcnt", "s_barrier", "s_endpgm", "s_sleep", "s_setprio", "s_bitcmp")):
                for o in ops:
                    self.rd += regs_of(o)
            else:
                if ops:
                    self.w = regs_of(ops[0])
                for o in ops[1:]:
                    self.rd += regs_of(o)
                if "saveexec" in op:
                    self.w.append(("s", "exec"))
        self.trans = op.replace("_e32", "").replace("_e64", "") in TRANS
        self.dpp = "quad_perm" in text or "row_" in text or "_dpp" in op
        self.dl = op.startswith("v_dot")
        self.w, self.rd = set(self.w), set(self.rd)


def lint(text, verbose=True):
    ins = []
    for n, line in enumerate(text.splitlines(), 1):
        t = line.split(";")[0].strip()
        if not t or t.endswith(":") or t.startswith("."):
            continue
        ins.append(Ins(t, n))
    errs = []
    def err(p, c, need, have, why):
        errs.append(f"line {c.lineno}: {why}: need {need} have {have}\n    P(l{p.lineno}) {p.text}\n    C {c.text}")
    for i, c in enumerate(ins):
        dist = 0
        for j in range(i - 1, max(i - 24, -1), -1):
            p = ins[j]
            if p.op in ("s_branch", "s_endpgm", "s_setpc_b64"):
                break
            vw = {x for x in p.w if x[0] != "s"}
            sw = {x for x in p.w if x[0] == "s"}
            if p.kind == "valu":
                if c.kind == "mfma" and vw & c.rd and dist < 2:
                    err(p, c, 2, dist, "VALU->MFMA")
                if p.trans and c.kind == "valu" and not c.trans and vw & c.rd and dist < 1:
                    err(p, c, 1, dist, "trans->VALU")
                if c.kind == "valu" and (c.dpp or c.op.startswith("v_permlane")) and vw & c.rd and dist < 2:
                    err(p, c, 2, dist, "VALU->DPP/permlane")
                if c.op.startswith(("v_readlane", "v_readfirstlane")) and vw & c.rd and dist < 1:
                    err(p, c, 1, dist, "VALU->readlane")
                if c.kind == "valu" and sw & c.rd and dist < 2:
                    err(p, c, 2, dist, "VALU sgpr->VALU")
                if c.kind == "vmem" and sw & c.rd and dist < 5:
                    err(p, c, 5, dist, "VALU sgpr->VMEM")
                if p.dl and c.kind in ("valu", "mfma", "vmem", "ds") and vw & (c.rd | c.w) and dist < 3:
                    same_c = c.op == p.op and not (vw & set(regs_of(split_ops(c.text.split(None, 1)[1])[1]) + regs_of(split_ops(c.text.split(None, 1)[1])[2])))
                    if not same_c:
                        err(p, c, 3, dist, "DLop->use")
                if "sdwa" in p.op and c.kind == "valu" and vw & (c.rd | c.w) and dist < 1:
                    err(p, c, 1, dist, "SDWA->VALU")
            if p.kind == "mfma":
                big = 12 if p.passes == 8 else 8
                if c.kind in ("valu", "vmem", "ds") and vw & (c.rd | c.w) and dist < big:
                    err(p, c, big, dist, "MFMA D->VALU/mem")
                if c.kind == "mfma":
                    if vw & set(c.abregs) and dist < big:
                        err(p, c, big, dist, "MFMA D->MFMA A/B")
                    if vw & set(c.cregs) and not (vw == set(c.cregs) and p.passes == c.passes) and dist < big - 2:
                        err(p, c, big - 2, dist, "MFMA D->MFMA C overlap")
                    if vw & c.w and not (vw & set(c.cregs)) and dist < big - 2 and p.passes != c.passes:
                        err(p, c, big - 2, dist, "MFMA D->MFMA D WAW")
                war = 7 if p.passes == 8 else 3
                if c.kind == "valu" and set(p.cregs) & c.w and dist < war:
                    err(p, c, war, dist, "MFMA C WAR")
            if p.store_data and c.kind in ("valu", "mfma", "ds", "vmem") and set(p.store_data) & c.w and dist < 2:
                err(p, c, 2, dist, "store data WAR")
            if p.kind == "salu" and ("s", "m0") in p.w and c.lds_dma and dist < 1:
                err(p, c, 1, dist, "m0->LDS DMA")
            dist += p.states
            if dist >= 20:
                break
    vmq, lgq = [], []
    smem_out = set()
    for c in ins:
        if c.op == "s_waitcnt":
            m = re.search(r"vmcnt\((\d+)\)", c.text)
            if m:
                n = int(m.group(1))
                vmq = vmq[len(vmq) - n:] if n < len(vmq) else vmq
                if n == 0:
                    vmq = []
            m = re.search(r"lgkmcnt\((\d+)\)", c.text)
            if m:
                n = int(m.group(1))
                if n > 0 and smem_out:
                    errs.append(f"line {c.lineno}: counted lgkmcnt with SMEM outstanding: {c.text}")
                lgq = lgq[len(lgq) - n:] if n < len(lgq) else lgq
                if n == 0:
                    lgq = []
                    smem_out = set()
            continue
        use = c.rd | c.w
        for q, nm in ((vmq, "vm"), (lgq, "lgkm")):
            for p in q:
                if p.w & use and not (nm == "vm" and c.kind == "vmem" and not (p.w & c.rd)) and not (nm == "lgkm" and c.kind == "ds" and not (p.w & c.rd)):
                    errs.append(f"line {c.lineno}: use of unwaited {nm} result\n    P(l{p.lineno}) {p.text}\n    C {c.text}")
                    break
        if smem_out & (c.rd if c.kind == "smem" else use):
            errs.append(f"line {c.lineno}: use of unwaited SMEM result: {c.text}")
        if c.kind == "vmem":
            vmq.append(c)
            vmq = vmq[-64:]
        elif c.kind == "ds":
            lgq.append(c)
        elif c.kind == "smem":
            smem_out |= c.w
    if verbose:
        for e in errs[:40]:
            print(e)
        print(f"lint: {len(ins)} instructions, {len(errs)} findings")
    return errs
```

```python
import sys, math, struct
from asmlib import *

KNAME = "sequential_preLN__grouped_kv_mqa__geglu_ffn__prompt_kernel"

WS_REF = 0
WS_F1 = 0x1000
WS_F1B = 0x9000
WS_F2 = 0x20000
WS_F3 = 0x40000
WS_KV = 0x80000
WS_WO = 0xC0000
WS_STAMP = 0x140000
WS_Q = 0x200000
WS_HN = 0x400000
WS_H = 0x600000
WS_WD = 0x800000
WS_WU = 0xA00000
WS_A = 0xE00000
WS_END = 0x1500000

SLOT = 28672
L_SC = 4 * SLOT
L_XN = L_SC
L_JOB = L_SC + SLOT
L_Q = L_SC
L_ST = 160768
LDS_BYTES = 163840
OB_STRIDE = 288

def f32(x):
    return "0x%08x" % struct.unpack("<I", struct.pack("<f", x))[0]

sB = 2
sPX, sPWQ, sPWK, sPWV, sPWO, sPWS, sPWG, sPWU, sPWD, sPOUT = 4, 6, 8, 10, 12, 14, 16, 18, 20, 22
rWS, rX, rW, rJA, rJG, rJU, rOUT, rSA, rSB = 24, 28, 32, 36, 40, 44, 48, 52, 56
sL, sW, sRT, sC, sG, sJ, sTAG, sXCC, sREF, sMODE = 60, 61, 62, 63, 64, 65, 66, 67, 68, 69
sCT, sRH = 70, 71
sT = list(range(72, 88)) + list(range(94, 102))
sSTAMP = 88
sSPIN = 91
sEX = 92
vONE = 2
SPIN_MAX = 400000


def srd(A, r, ptr, size):
    A(f"s_mov_b32 s{r}, s{ptr}")
    A(f"s_mov_b32 s{r+1}, s{ptr+1}")
    A(f"s_mov_b32 s{r+2}, {size}")
    A(f"s_mov_b32 s{r+3}, 0x00020000")


class Gen:
    def __init__(self, stop=None, stamps=False):
        self.A = Asm()
        self.stop = stop
        self.stamps = stamps
        self.nstamp = 0
        self.uid = 0

    def lab(self, base):
        self.uid += 1
        return f"L_{base}_{self.uid}"

    def stamp(self, name):
        if not self.stamps:
            return
        A = self.A
        A.raw(f"    s_memrealtime s[{sSTAMP}:{sSTAMP+1}]")
        A.raw(f"    s_memtime s[{sEX}:{sEX+1}]")
        A.raw("    s_waitcnt lgkmcnt(0)")
        A.lg_done = A.lg
        A(f"v_writelane_b32 v255, s{sSTAMP}, {self.nstamp}")
        A(f"v_writelane_b32 v255, s{sEX}, {self.nstamp + 32}")
        self.nstamp += 1

    def stamp_flush(self):
        if not self.stamps:
            return
        A = self.A
        A(f"s_lshl_b32 s{sT[0]}, s{sL}, 2")
        A(f"s_add_u32 s{sT[0]}, s{sT[0]}, s{sW}")
        A(f"s_lshl_b32 s{sT[0]}, s{sT[0]}, 8")
        A(f"s_add_u32 s{sT[0]}, s{sT[0]}, {WS_STAMP}")
        A("v_mbcnt_lo_u32_b32 v254, -1, 0")
        A("v_mbcnt_hi_u32_b32 v254, -1, v254")
        A("v_lshlrev_b32 v254, 2, v254")
        A(f"buffer_store_dword v255, v254, {s(rWS,4)}, s{sT[0]} offen")

    def end(self):
        self.stamp_flush()
        self.A("s_endpgm")

    def poll(self, vaddr, vtmp, name, width=1):
        A = self.A
        l0, l1 = self.lab(name), self.lab(name + "_ok")
        A(f"s_mov_b32 s{sSPIN}, 0")
        A.label(l0)
        if width == 1:
            A(f"buffer_load_dword v{vtmp}, v{vaddr}, {s(rWS,4)}, 0 offen sc1")
        else:
            A(f"buffer_load_dwordx2 {v(vtmp,2)}, v{vaddr}, {s(rWS,4)}, 0 offen sc1")
        A.wait_all(lg=False)
        A(f"v_cmp_ne_u32 vcc, s{sTAG}, v{vtmp}")
        A(f"s_add_u32 s{sSPIN}, s{sSPIN}, 1")
        A(f"s_cbranch_vccz {l1}")
        A(f"s_cmp_lt_u32 s{sSPIN}, {SPIN_MAX}")
        A(f"s_cbranch_scc1 {l0}")
        A.label(l1)

    def setup(self):
        A = self.A
        A(f"s_cmp_ge_u32 s{sB}, 256")
        A("s_cbranch_scc1 L_exit")
        A("s_load_dwordx8 s[4:11], s[0:1], 0")
        A("s_load_dwordx2 s[12:13], s[0:1], 32")
        A("s_load_dwordx2 s[14:15], s[0:1], 88")
        A("s_load_dwordx8 s[16:23], s[0:1], 48")
        A("v_lshrrev_b32 v1, 6, v0")
        A("v_and_b32 v0, 63, v0")
        A(f"v_readfirstlane_b32 s{sW}, v1")
        A(f"s_and_b32 s{sL}, s{sB}, 7")
        A(f"s_lshl_b32 s{sL}, s{sL}, 5")
        A(f"s_lshr_b32 s{sT[0]}, s{sB}, 3")
        A(f"s_add_u32 s{sL}, s{sL}, s{sT[0]}")
        A(f"s_lshr_b32 s{sRT}, s{sL}, 2")
        A(f"s_and_b32 s{sC}, s{sL}, 3")
        A(f"s_lshr_b32 s{sG}, s{sL}, 4")
        A(f"s_and_b32 s{sJ}, s{sL}, 15")
        A(f"s_getreg_b32 s{sXCC}, hwreg(HW_REG_XCC_ID, 0, 4)")
        A(f"s_cmp_ge_u32 s{sJ}, 7")
        A(f"s_cselect_b32 s{sRH}, 1, 0")
        A(f"s_mul_i32 s{sT[0]}, s{sRH}, 7")
        A(f"s_sub_u32 s{sCT}, s{sJ}, s{sT[0]}")
        A(f"s_min_u32 s{sCT}, s{sCT}, 6")
        A(f"s_mov_b32 s{sMODE}, 0")
        if self.stamps:
            A("v_mov_b32 v255, 0")

    def p1(self):
        A = self.A
        (rot, xb, ct1, ci, jid, jaS, jaS2, jaE, jaE2, jaD, jobl, wB, wN, wC, lB, lC, wcur,
         jbD, jbS, jbS2, t0, t1, t2) = sT[:23]
        vL, vL16 = 0, 1
        vXo, vWo, vJAo, vJBo = 2, 3, 4, 5
        vX = 8
        vJB = 36
        vJAt, vWt, vRR, vCC, vH, vMH, vK8, vT0, vXw, vL32, vT1, vT2 = range(52, 64)
        vF = 64
        vTmp = 120
        vXr = 124
        vJA1, vJA2, vJA3, vJR = 200, 201, 202, 204
        A(f"v_lshlrev_b32 v{vL16}, 4, v{vL}")
        A(f"v_lshrrev_b32 v6, 3, v{vL}")
        A(f"v_and_b32 v7, 7, v{vL}")
        A(f"v_mul_u32_u24 v{vXo}, 896, v6")
        A(f"v_lshl_add_u32 v{vXo}, v7, 4, v{vXo}")
        A(f"s_and_b32 s{rot}, s{sRT}, 7")
        A(f"s_cmp_eq_u32 s{rot}, 7")
        A(f"s_cselect_b32 s{rot}, 0, s{rot}")
        A(f"s_lshl_b32 s{xb}, s{sRT}, 2")
        A(f"s_add_u32 s{xb}, s{xb}, s{sW}")
        A(f"s_mul_i32 s{xb}, s{xb}, {8*896}")
        A(f"s_lshl_b32 s{ct1}, s{sC}, 2")
        A(f"s_add_u32 s{ct1}, s{ct1}, s{sW}")
        A(f"v_bfe_u32 v{vRR}, v{vL}, 2, 2")
        A(f"v_and_b32 v{vCC}, 3, v{vL}")
        A(f"v_lshrrev_b32 v{vH}, 5, v{vL}")
        A(f"v_bfe_u32 v{vMH}, v{vL}, 4, 1")
        A(f"v_lshl_add_u32 v{vK8}, v{vH}, 3, v{vRR}")
        lkv, lj2 = self.lab("w_kv"), self.lab("w_join")
        A(f"s_and_b32 s{t0}, s{sW}, 1")
        A(f"s_cmp_ge_u32 s{ct1}, 14")
        A(f"s_cbranch_scc1 {lkv}")
        A(f"s_lshr_b32 s{wB}, s{ct1}, 1")
        A(f"s_lshl_b32 s{wB}, s{wB}, 7")
        A(f"s_mul_i32 s{wN}, s{t0}, {32*896}")
        A(f"s_add_u32 s{wB}, s{wB}, s{wN}")
        A(f"s_mov_b32 s{wN}, {8*896-1024}")
        A(f"s_mov_b32 s{wC}, {64*896}")
        A(f"s_lshr_b32 s{lB}, s{sW}, 1")
        A(f"s_mul_i32 s{lB}, s{lB}, {2*SLOT}")
        A(f"v_lshlrev_b32 v{vWt}, 7, v{vK8}")
        A(f"v_lshrrev_b32 v{vT0}, 1, v{vRR}")
        A(f"v_xor_b32 v{vT0}, s{t0}, v{vT0}")
        A(f"v_lshl_add_u32 v{vWt}, v{vT0}, 6, v{vWt}")
        A(f"v_add_u32 v{vWt}, s{lB}, v{vWt}")
        A(f"s_lshl_b32 s{lC}, s{t0}, 12")
        A(f"s_add_u32 s{lB}, s{lB}, s{lC}")
        A(f"s_mov_b32 s{lC}, 8192")
        A(f"v_lshlrev_b32 v{vT0}, 6, v{vMH}")
        A(f"v_xor_b32 v{vWo}, v{vXo}, v{vT0}")
        A(f"s_branch {lj2}")
        A.label(lkv)
        A(f"s_mov_b32 s{wB}, 0")
        A(f"s_mov_b32 s{wN}, 0")
        A(f"s_mov_b32 s{wC}, {64*56}")
        A(f"s_mul_i32 s{lB}, s{sW}, {SLOT}")
        A(f"s_mov_b32 s{lC}, 4096")
        A(f"v_mul_u32_u24 v{vWt}, 56, v{vK8}")
        A(f"v_add_u32 v{vWt}, s{lB}, v{vWt}")
        A(f"v_mov_b32 v{vWo}, v{vL16}")
        A.label(lj2)
        A(f"v_lshl_add_u32 v{vWt}, v{vMH}, 5, v{vWt}")
        A(f"v_lshl_add_u32 v{vWt}, v{vCC}, 3, v{vWt}")
        A(f"s_mov_b32 s{rX+2}, {2048*896}")
        A(f"s_mov_b32 s{rX+3}, 0x00020000")
        A(f"s_mov_b32 s{rW+3}, 0x00020000")
        A(f"s_mov_b32 s{ci}, s{rot}")
        A.wait_all(vm=False)
        self.stamp("kernarg")
        A(f"s_mov_b32 s{rX}, s{sPX}")
        A(f"s_mov_b32 s{rX+1}, s{sPX+1}")
        tx = []
        for i in range(7):
            A(f"s_lshl_b32 s{t0}, s{ci}, 7")
            A(f"s_add_u32 s{t0}, s{t0}, s{xb}")
            tx.append(A(f"buffer_load_dwordx4 {v(vX+4*i,4)}, v{vXo}, {s(rX,4)}, s{t0} offen"))
            if i < 6:
                A(f"s_add_u32 s{ci}, s{ci}, 1")
                A(f"s_cmp_eq_u32 s{ci}, 7")
                A(f"s_cselect_b32 s{ci}, 0, s{ci}")
        A(f"s_cmp_eq_u32 s{ct1}, 14")
        A(f"s_cselect_b32 s{rW}, s{sPWK}, s{sPWV}")
        A(f"s_cselect_b32 s{rW+1}, s{sPWK+1}, s{sPWV+1}")
        A(f"s_cmp_lt_u32 s{ct1}, 14")
        A(f"s_cselect_b32 s{rW}, s{sPWQ}, s{rW}")
        A(f"s_cselect_b32 s{rW+1}, s{sPWQ+1}, s{rW+1}")
        A(f"s_mov_b32 s{t0}, {448*56}")
        A(f"s_cselect_b32 s{rW+2}, {448*896}, s{t0}")
        A(f"s_mov_b32 s{ci}, s{rot}")
        tok = {}
        side = []
        def wload(i, n):
            def f():
                if n == 0:
                    if i > 0:
                        A(f"s_add_u32 s{lB}, s{lB}, s{lC}")
                        A(f"s_add_u32 s{ci}, s{ci}, 1")
                        A(f"s_cmp_eq_u32 s{ci}, 7")
                        A(f"s_cselect_b32 s{ci}, 0, s{ci}")
                    A(f"s_mul_i32 s{wcur}, s{ci}, s{wC}")
                    A(f"s_mov_b32 m0, s{lB}")
                    A(f"s_add_u32 s{wcur}, s{wcur}, s{wB}")
                else:
                    A(f"s_add_u32 s{wcur}, s{wcur}, s{wN}")
                tok["w", i] = A(f"buffer_load_dwordx4 v{vWo}, {s(rW,4)}, s{wcur} offen offset:{n*1024} lds")
            return f
        for i in range(7):
            for n in range(4):
                side.append(wload(i, n))
        def ja_load():
            A(f"s_mov_b32 m0, s{jobl}")
            A.nop(1)
            A(f"buffer_load_dwordx4 v{vJAo}, {s(rJA,4)}, s{jaS} offen lds")
            tok["ja"] = A(f"buffer_load_dwordx4 v{vJAo}, {s(rJA,4)}, s{jaS2} offen offset:1024 lds")
        def ja_read():
            A.wait(tok["ja"])
            A(f"ds_read_b64_tr_b16 {v(vJR,2)}, v{vJAt}")
            A(f"ds_read_b64_tr_b16 {v(vJR+2,2)}, v{vJA1}")
            A(f"ds_read_b64_tr_b16 {v(vJR+4,2)}, v{vJA2}")
            A(f"ds_read_b64_tr_b16 {v(vJR+6,2)}, v{vJA3}")
        def ja_store():
            A(f"buffer_store_dwordx4 {v(vJR,4)}, v{vL16}, {s(rSA,4)}, s{jaD} offen sc1")
            A(f"buffer_store_dwordx4 {v(vJR+4,4)}, v{vL16}, {s(rSA,4)}, s{jaD} offen offset:1024 sc1")
        def pop(n=1):
            for _ in range(n):
                if side:
                    side.pop(0)()
        pop(4)
        A(f"s_load_dword s{sREF}, s[{sPWS}:{sPWS+1}], {WS_REF}")
        srd(A, rWS, sPWS, WS_END)
        pop(4)
        A(f"s_lshl_b32 s{jid}, s{sL}, 2")
        A(f"s_add_u32 s{jid}, s{jid}, s{sW}")
        lwo, ljoin = self.lab("ja_wo"), self.lab("ja_join")
        A(f"s_mov_b32 s{rJA+3}, 0x00020000")
        A(f"s_cmp_ge_u32 s{jid}, 784")
        A(f"s_cbranch_scc1 {lwo}")
        A(f"s_mov_b32 s{rJA}, s{sPWD}")
        A(f"s_mov_b32 s{rJA+1}, s{sPWD+1}")
        A(f"s_mov_b32 s{rJA+2}, 0")
        A(f"s_mul_i32 s{t0}, s{sL}, 2341")
        A(f"s_lshr_b32 s{t0}, s{t0}, 16")
        A(f"s_mul_i32 s{t1}, s{t0}, 112")
        A(f"s_sub_u32 s{t1}, s{jid}, s{t1}")
        A(f"s_mul_i32 s{jaS}, s{t1}, {16*896}")
        A(f"s_lshl_b32 s{t0}, s{t0}, 7")
        A(f"s_add_u32 s{jaS}, s{jaS}, s{t0}")
        A(f"s_add_u32 s{jaS2}, s{jaS}, {8*896-1024}")
        A(f"s_mov_b32 s{jaE}, 512")
        A(f"s_mov_b32 s{jaE2}, 64")
        A(f"s_lshl_b32 s{jaD}, s{jid}, 11")
        A(f"s_add_u32 s{jaD}, s{jaD}, {WS_WD}")
        A(f"v_mov_b32 v{vJAo}, v{vXo}")
        A(f"v_lshlrev_b32 v{vJAt}, 7, v{vK8}")
        A(f"v_and_b32 v{vT0}, 1, v{vCC}")
        A(f"v_lshl_add_u32 v{vJAt}, v{vT0}, 5, v{vJAt}")
        A(f"v_lshl_add_u32 v{vJAt}, v{vMH}, 4, v{vJAt}")
        A(f"v_lshrrev_b32 v{vT0}, 1, v{vCC}")
        A(f"v_lshl_add_u32 v{vJAt}, v{vT0}, 3, v{vJAt}")
        A(f"s_branch {ljoin}")
        A.label(lwo)
        A(f"s_mov_b32 s{rJA}, s{sPWO}")
        A(f"s_mov_b32 s{rJA+1}, s{sPWO+1}")
        A(f"s_cmp_lt_u32 s{jid}, 1008")
        A(f"s_cselect_b32 s{rJA+2}, {448*896}, 0")
        A(f"s_sub_u32 s{t0}, s{jid}, 784")
        A(f"s_lshl_b32 s{jaD}, s{t0}, 11")
        A(f"s_add_u32 s{jaD}, s{jaD}, {WS_WO}")
        A(f"s_mul_i32 s{t1}, s{t0}, 1171")
        A(f"s_lshr_b32 s{t1}, s{t1}, 16")
        A(f"s_mul_i32 s{t2}, s{t1}, 56")
        A(f"s_sub_u32 s{t2}, s{t0}, s{t2}")
        A(f"s_lshr_b32 s{t2}, s{t2}, 2")
        A(f"s_and_b32 s{t0}, s{t0}, 3")
        A(f"s_mul_i32 s{jaS}, s{t2}, {32*896}")
        A(f"s_mul_i32 s{t1}, s{t1}, 224")
        A(f"s_add_u32 s{jaS}, s{jaS}, s{t1}")
        A(f"s_lshl_b32 s{t1}, s{t0}, 6")
        A(f"s_add_u32 s{jaS}, s{jaS}, s{t1}")
        A(f"s_add_u32 s{jaS2}, s{jaS}, {16*896-1024}")
        A(f"s_mov_b32 s{jaE}, 256")
        A(f"s_mov_b32 s{jaE2}, 8")
        A(f"s_cmp_eq_u32 s{t0}, 3")
        A(f"s_cselect_b32 s{t0}, 3, 4")
        A(f"v_lshrrev_b32 v{vT0}, 2, v{vL}")
        A(f"v_mul_u32_u24 v{vJAo}, 896, v{vT0}")
        A(f"v_lshl_add_u32 v{vJAo}, v{vCC}, 4, v{vJAo}")
        A(f"v_lshrrev_b32 v{vT0}, 4, v{vL}")
        A(f"v_lshl_add_u32 v{vT0}, v{vT0}, 3, v{vRR}")
        A(f"v_lshlrev_b32 v{vJAt}, 6, v{vT0}")
        A(f"v_lshlrev_b32 v{vT0}, s{t0}, v{vCC}")
        A(f"v_add_u32 v{vJAt}, v{vJAt}, v{vT0}")
        A.label(ljoin)
        A(f"s_mul_i32 s{jobl}, s{sW}, 5120")
        A(f"s_add_u32 s{jobl}, s{jobl}, {L_JOB}")
        A(f"v_add_u32 v{vJAt}, s{jobl}, v{vJAt}")
        ja_load()
        A(f"v_add_u32 v{vJA1}, s{jaE}, v{vJAt}")
        A(f"v_add_u32 v{vJA2}, s{jaE2}, v{vJAt}")
        A(f"v_add_u32 v{vJA3}, s{jaE2}, v{vJA1}")
        A(f"v_mul_u32_u24 v{vJBo}, 3584, v6")
        A(f"v_lshl_add_u32 v{vJBo}, v7, 4, v{vJBo}")
        A(f"s_cmp_lt_u32 s{jid}, 784")
        A(f"s_cselect_b32 s{t0}, {448*3584}, 0")
        A(f"s_cselect_b32 s{t1}, {WS_END}, 0")
        srd(A, rJG, sPWG, f"s{t0}")
        srd(A, rJU, sPWU, f"s{t0}")
        srd(A, rSB, sPWS, f"s{t1}")
        pop()
        A(f"s_mul_i32 s{t0}, s{jid}, 2341")
        A(f"s_lshr_b32 s{t0}, s{t0}, 16")
        A(f"s_mul_i32 s{t1}, s{t0}, 28")
        A(f"s_sub_u32 s{t1}, s{jid}, s{t1}")
        A(f"s_mul_i32 s{jbD}, s{t0}, 112")
        A(f"s_add_u32 s{jbD}, s{jbD}, s{t1}")
        A(f"s_lshl_b32 s{jbD}, s{jbD}, 10")
        A(f"s_add_u32 s{jbD}, s{jbD}, {WS_WU}")
        A(f"s_mul_i32 s{t1}, s{t1}, {16*3584}")
        A(f"s_lshl_b32 s{t0}, s{t0}, 7")
        A(f"s_add_u32 s{jbS}, s{t0}, s{t1}")
        A(f"s_add_u32 s{jbS2}, s{jbS}, {8*3584}")
        pop()
        A(f"s_cmp_lg_u32 s{rJA+2}, 0")
        A(f"s_cselect_b32 s{t1}, {WS_END}, 0")
        srd(A, rSA, sPWS, f"s{t1}")
        srd(A, rOUT, sPOUT, 2048 * 896)
        A(f"s_lshl_b32 s{t0}, s{sW}, 3")
        A(f"v_xor_b32 v{vXw}, v6, v7")
        A(f"v_add_u32 v{vXw}, s{t0}, v{vXw}")
        A(f"v_lshlrev_b32 v{vXw}, 4, v{vXw}")
        A(f"v_lshl_add_u32 v{vXw}, v7, 9, v{vXw}")
        A(f"v_add_u32 v{vXw}, {L_XN}, v{vXw}")
        A(f"v_and_b32 v{vL32}, 31, v{vL}")
        pop()
        for q in range(4):
            A(f"v_add_u32 v{vT0}, {2*q}, v{vH}")
            A(f"v_xor_b32 v{vT1}, v{vL32}, v{vT0}")
            A(f"v_lshlrev_b32 v{vT1}, 4, v{vT1}")
            A(f"v_lshl_add_u32 v{vT1}, v{vT0}, 9, v{vT1}")
            A(f"v_add_u32 v{vXr+q}, {L_XN}, v{vT1}")
        pop()
        A(f"s_mov_b32 s{t0}, 0xffff0000")
        for i in range(7):
            A.wait(tx[i])
            if i in (1, 3, 5, 6):
                pop()
            for k in range(4):
                A(f"v_lshlrev_b32 v{vF+8*i+2*k}, 16, v{vX+4*i+k}")
                A(f"v_and_b32 v{vF+8*i+2*k+1}, s{t0}, v{vX+4*i+k}")
            if i == 0:
                A(f"v_pk_add_f32 {v(vTmp,2)}, {v(vF,2)}, {v(vF+2,2)}")
                A(f"v_pk_add_f32 {v(vTmp+2,2)}, {v(vF+4,2)}, {v(vF+6,2)}")
            else:
                for k in range(4):
                    d = vTmp + 2 * (k & 1)
                    A(f"v_pk_add_f32 {v(d,2)}, {v(d,2)}, {v(vF+8*i+2*k,2)}")
        self.stamp("x arrived")
        def red8():
            A(f"v_pk_add_f32 {v(vTmp,2)}, {v(vTmp,2)}, {v(vTmp+2,2)}")
            A(f"v_add_f32 v{vTmp}, v{vTmp}, v{vTmp+1}")
            for n, m in enumerate(("quad_perm:[1,0,3,2]", "quad_perm:[2,3,0,1]", "row_half_mirror")):
                if n == 1:
                    pop()
                else:
                    A.nop(2)
                A(f"v_add_f32_dpp v{vTmp}, v{vTmp}, v{vTmp} {m} row_mask:0xf bank_mask:0xf")
        red8()
        A(f"v_mul_f32 v{vTmp}, {f32(-1.0/448)}, v{vTmp}")
        for k in range(28):
            A(f"v_pk_add_f32 {v(vF+2*k,2)}, {v(vF+2*k,2)}, {v(vTmp,2)} op_sel_hi:[1,0]")
            if k == 14:
                pop()
        A(f"v_pk_mul_f32 {v(vTmp,2)}, {v(vF,2)}, {v(vF,2)}")
        A(f"v_pk_mul_f32 {v(vTmp+2,2)}, {v(vF+2,2)}, {v(vF+2,2)}")
        for k in range(2, 28):
            d = vTmp + 2 * (k & 1)
            A(f"v_pk_fma_f32 {v(d,2)}, {v(vF+2*k,2)}, {v(vF+2*k,2)}, {v(d,2)}")
            if k == 10:
                pop()
        red8()
        A(f"v_mov_b32 v{vTmp+1}, {f32(1e-5)}")
        A(f"v_fmamk_f32 v{vTmp}, v{vTmp}, {f32(1.0/448)}, v{vTmp+1}")
        A(f"v_rsq_f32 v{vTmp}, v{vTmp}")
        ja_read()
        for i in range(7):
            for k in range(4):
                A(f"v_pk_mul_f32 {v(vF+8*i+2*k,2)}, {v(vF+8*i+2*k,2)}, {v(vTmp,2)} op_sel_hi:[1,0]")
            for k in range(4):
                A(f"v_cvt_pk_bf16_f32 v{vX+4*i+k}, v{vF+8*i+2*k}, v{vF+8*i+2*k+1}")
            A(f"ds_write_b128 v{vXw}, {v(vX+4*i,4)} offset:{i*4096}")
            if i in (0, 2, 4, 6):
                pop()
        A.wait_all(vm=False)
        ja_store()
        self.stamp("ln1 done")
        A(f"s_mul_i32 s{sTAG}, s{sREF}, 0x9E3779B1")
        A(f"s_add_u32 s{sTAG}, s{sTAG}, 0x7F4A7C15")
        vAcc, vWf, vXf, NB = 128, 144, 176, 5
        lK, lV, lE = self.lab("g_k"), self.lab("g_v"), self.lab("g_end")
        A(f"s_cmp_eq_u32 s{ct1}, 14")
        A(f"s_cbranch_scc1 {lK}")
        A(f"s_cmp_eq_u32 s{ct1}, 15")
        A(f"s_cbranch_scc1 {lV}")
        state = (A.vm, A.lg, A.vm_done, A.lg_done)
        side_left = list(side)
        bar_at = {0: 2, 12: 4, 20: 5, 24: 6}
        def gemm(kind):
            A.vm, A.lg, A.vm_done, A.lg_done = state
            side[:] = side_left
            cs, ks, es = (8192, 2048, 512) if kind == "q" else (4096, 896, 224)
            rt = {}
            def reads(n):
                if n in bar_at:
                    A.wait(tok["w", bar_at[n]])
                    A("s_barrier")
                pos, q, b = n // 4, n % 4, 4 * (n % NB)
                A(f"ds_read_b128 {v(vXf+b,4)}, v{vXr+q} offset:{pos*4096}")
                A(f"ds_read_b64_tr_b16 {v(vWf+b,2)}, v{vWt} offset:{pos*cs+q*ks}")
                rt[n] = A(f"ds_read_b64_tr_b16 {v(vWf+b+2,2)}, v{vWt} offset:{pos*cs+q*ks+es}")
            for n in range(NB - 1):
                reads(n)
            for n in range(28):
                A.wait(rt[n])
                b = 4 * (n % NB)
                wa, xa = v(vWf + b, 4), v(vXf + b, 4)
                if kind == "v":
                    wa, xa = xa, wa
                A(f"v_mfma_f32_32x32x16_bf16 {v(vAcc,16)}, {wa}, {xa}, {'0' if n == 0 else v(vAcc,16)}")
                if n + NB - 1 < 28:
                    reads(n + NB - 1)
                pop()
            assert not side
        gemm("q")
        A(f"v_bfe_u32 v{vT0}, v{vL}, 3, 2")
        A(f"v_mul_u32_u24 v{vT0}, 7168, v{vT0}")
        A(f"v_lshl_add_u32 v{vT0}, v{vH}, 6, v{vT0}")
        A(f"v_lshl_add_u32 v{vT0}, v7, 3, v{vT0}")
        A(f"s_mul_i32 s{t0}, s{sRT}, {4*7168}")
        A(f"s_lshl_b32 s{t1}, s{ct1}, 9")
        A(f"s_add_u32 s{t0}, s{t0}, s{t1}")
        A(f"s_add_u32 s{t0}, s{t0}, {WS_Q}")
        A.nop(4)
        for i in range(4):
            A(f"v_cvt_pk_bf16_f32 v{vF+2*i}, v{vAcc+4*i}, v{vAcc+4*i+1}")
            A(f"v_cvt_pk_bf16_f32 v{vF+2*i+1}, v{vAcc+4*i+2}, v{vAcc+4*i+3}")
            A(f"buffer_store_dwordx2 {v(vF+2*i,2)}, v{vT0}, {s(rWS,4)}, s{t0} offen offset:{i*128} sc1")
        A(f"s_branch {lE}")
        A.label(lK)
        gemm("k")
        A(f"s_lshl_b32 s{t0}, s{sRT}, 12")
        A(f"s_add_u32 s{t0}, s{t0}, {WS_KV}")
        A(f"s_mov_b32 s{t1}, {f32(28 ** -0.5 * math.log2(math.e))}")
        A(f"v_cmp_lt_u32 vcc, 31, v{vL}")
        A(f"v_mov_b32 v{vT1}, 0x3f803f80")
        A(f"v_mov_b32 v{vT2}, 0x00003f80")
        A.nop(6)
        for i in range(16):
            A(f"v_mul_f32 v{vAcc+i}, s{t1}, v{vAcc+i}")
        for i in range(8):
            A(f"v_cvt_pk_bf16_f32 v{vF+i}, v{vAcc+2*i}, v{vAcc+2*i+1}")
        A(f"v_cndmask_b32 v{vF+6}, v{vF+6}, v{vT1}, vcc")
        A(f"v_cndmask_b32 v{vF+7}, v{vF+7}, v{vT2}, vcc")
        A(f"buffer_store_dwordx4 {v(vF,4)}, v{vL16}, {s(rWS,4)}, s{t0} offen sc1")
        A(f"buffer_store_dwordx4 {v(vF+4,4)}, v{vL16}, {s(rWS,4)}, s{t0} offen offset:1024 sc1")
        A(f"s_branch {lE}")
        A.label(lV)
        gemm("v")
        A(f"s_lshl_b32 s{t0}, s{sRT}, 12")
        A(f"s_add_u32 s{t0}, s{t0}, {WS_KV}")
        A(f"v_cmp_eq_u32 vcc, 28, v{vL32}")
        A(f"v_mov_b32 v{vT1}, 0x3f803f80")
        A.nop(1)
        A(f"v_cndmask_b32 v{vT1}, 0, v{vT1}, vcc")
        A(f"v_cmp_lt_u32 vcc, 27, v{vL32}")
        A.nop(5)
        for i in range(8):
            A(f"v_cvt_pk_bf16_f32 v{vF+i}, v{vAcc+2*i}, v{vAcc+2*i+1}")
        for i in range(8):
            A(f"v_cndmask_b32 v{vF+i}, v{vF+i}, v{vT1}, vcc")
        A(f"buffer_store_dwordx4 {v(vF,4)}, v{vL16}, {s(rWS,4)}, s{t0} offen offset:2048 sc1")
        A(f"buffer_store_dwordx4 {v(vF+4,4)}, v{vL16}, {s(rWS,4)}, s{t0} offen offset:3072 sc1")
        A.label(lE)
        self.stamp("qkv stored")
        A(f"s_cmp_lt_u32 s{jid}, 784")
        A(f"s_cselect_b32 s{rJA+2}, {1792*896}, 0")
        A(f"s_cselect_b32 s{rSA+2}, {WS_END}, 0")
        ja_load()
        for k in range(4):
            A(f"buffer_load_dwordx4 {v(vJB+4*k,4)}, v{vJBo}, {s(rJG if k < 2 else rJU,4)}, s{jbS2 if k & 1 else jbS} offen")
        A(f"v_cmp_eq_u32 vcc, 0, v{vL}")
        A(f"v_mov_b32 v3, 0x7ff00000")
        A(f"v_mov_b32 v4, s{sTAG}")
        A(f"v_cndmask_b32 v{vONE}, v3, 0, vcc")
        A(f"v_mov_b32 v5, s{sXCC}")
        A(f"v_add_u32 v{vT0}, s{jobl}, v{vL16}")
        A(f"v_lshlrev_b32 v{vT1}, 7, v{vK8}")
        A(f"v_lshl_add_u32 v{vT1}, v{vMH}, 11, v{vT1}")
        A(f"v_and_b32 v{vT2}, 1, v{vCC}")
        A(f"v_lshl_add_u32 v{vT1}, v{vT2}, 4, v{vT1}")
        A(f"v_lshrrev_b32 v{vT2}, 1, v{vCC}")
        A(f"v_lshl_add_u32 v{vT1}, v{vT2}, 3, v{vT1}")
        A(f"v_add_u32 v{vT1}, s{jobl}, v{vT1}")
        A(f"s_lshl_b32 s{t0}, s{sL}, 7")
        A(f"s_add_u32 s{t0}, s{t0}, {WS_F1}")
        A.raw("    s_waitcnt vmcnt(6)")
        A.vm_done = A.vm - 6
        A("s_barrier")
        lnf = self.lab("nf1")
        A(f"s_cmp_lg_u32 s{sW}, 0")
        A(f"s_cbranch_scc1 {lnf}")
        A.raw(f"    buffer_store_dwordx2 v[4:5], v{vONE}, {s(rWS,4)}, s{t0} offen sc1")
        A.label(lnf)
        self.stamp("f1 sent")
        ja_read()
        A.wait_all()
        ja_store()
        for n in range(4):
            A(f"ds_write_b128 v{vT0}, {v(vJB+4*n,4)} offset:{n*1024}")
        A.wait_all(vm=False)
        toks = []
        for tt in range(4):
            A(f"ds_read_b64_tr_b16 {v(vJB+4*tt,2)}, v{vT1} offset:{tt*32}")
            toks.append(A(f"ds_read_b64_tr_b16 {v(vJB+4*tt+2,2)}, v{vT1} offset:{tt*32+512}"))
        for tt in range(4):
            A.wait(toks[tt])
            A(f"buffer_store_dwordx4 {v(vJB+4*tt,4)}, v{vL16}, {s(rSB,4)}, s{jbD} offen sc1")
            if tt < 3:
                A(f"s_add_u32 s{jbD}, s{jbD}, {28*1024}")
        self.stamp("jobs sent")

    vQ, vO, vS, vP, vKV, vSP = 16, 48, 112, 144, 160, 208
    N_WU_ATT = 14

    def wo_reg(self, f):
        if f < 64:
            return 256 + 4 * f
        if f < 75:
            return self.vSP + 4 * (f - 64)
        if f < 79:
            return self.vKV + 16 + 4 * (f - 75)
        if f < 83:
            return self.vKV + 32 + 4 * (f - 79)
        if f < 87:
            return self.vKV + 4 * (f - 83)
        if f < 95:
            return self.vS + 4 * (f - 87)
        return self.vP + 4 * (f - 95)

    def wo_load(self, f):
        A = self.A
        off = ((f // 7) * 8 + f % 7) * 1024
        if off // 4096 != self.wo_win:
            A(f"s_add_u32 s{self.sWO}, s{self.sWO}, {(off // 4096 - self.wo_win) * 4096}")
            self.wo_win = off // 4096
        self.tok["wo", f] = A(f"buffer_load_dwordx4 {r(self.wo_reg(f),4)}, v1, {s(rWS,4)}, s{self.sWO} offen offset:{off % 4096} sc1")

    def wu_prep(self, k):
        tile, p = divmod(k, 7)
        slot = tile if tile < 5 else tile - 5
        ops = []
        if p in (0, 4):
            ops.append(f"s_add_u32 m0, s{self.sWUL}, {slot * SLOT + p * 1024}")
            ops.append(f"s_add_u32 s{self.sWUC}, s{self.sWU}, {tile * SLOT + p * 1024}")
        return ops

    def wu_load(self, k):
        p = k % 7
        self.tok["wu", k] = self.A(f"buffer_load_dwordx4 v1, {s(rWS,4)}, s{self.sWUC} offen offset:{(p % 4) * 1024} sc1 lds")

    def p2(self):
        A = self.A
        self.tok = tok = {}
        self.sKV, self.sWO, self.sWU, self.sWUL, self.sWUC, t0, t1, t2 = sT[:8]
        sKV = self.sKV
        vQ, vO, vS, vP, vKV = self.vQ, self.vO, self.vS, self.vP, self.vKV
        vPA, vPB, vQa, vT0, vT1, vT2 = 6, 7, 8, 12, 13, 14
        A(f"v_and_b32 v{vT0}, 15, v0")
        A(f"s_lshl_b32 s{t0}, s{sW}, 6")
        A(f"s_add_u32 s{t0}, s{t0}, 3")
        A(f"v_lshl_add_u32 v{vPA}, v{vT0}, 2, s{t0}")
        A(f"s_lshl_b32 s{t0}, s{sG}, 4")
        A(f"v_add_u32 v{vT1}, s{t0}, v{vT0}")
        A(f"v_cmp_lt_u32 vcc, 15, v0")
        A(f"s_mul_i32 s{t0}, s{sW}, 14")
        A(f"s_add_u32 s{t0}, s{t0}, 196")
        A(f"v_cndmask_b32 v{vPA}, v{vPA}, v{vT1}, vcc")
        A(f"v_min_u32 v{vT1}, 13, v{vT0}")
        A(f"v_cmp_lt_u32 vcc, 31, v0")
        A(f"v_add_u32 v{vT1}, s{t0}, v{vT1}")
        A.nop(1)
        A(f"v_cndmask_b32 v{vPA}, v{vPA}, v{vT1}, vcc")
        A(f"v_lshlrev_b32 v{vPA}, 7, v{vPA}")
        A(f"v_add_u32 v{vPA}, {WS_F1}, v{vPA}")
        A(f"s_mul_i32 s{t0}, s{sJ}, 7")
        A(f"s_lshr_b32 s{t0}, s{t0}, 2")
        A(f"s_mul_i32 s{t0}, s{t0}, 7")
        A(f"v_min_u32 v{vT1}, 20, v0")
        A(f"v_add_u32 v{vT1}, s{t0}, v{vT1}")
        A(f"v_min_u32 v{vT1}, 195, v{vT1}")
        A(f"s_mul_i32 s{t0}, s{sCT}, 28")
        A(f"s_mul_i32 s{t1}, s{sW}, 7")
        A(f"s_add_u32 s{t0}, s{t0}, s{t1}")
        A(f"v_min_u32 v{vT2}, 6, v{vT0}")
        A(f"v_add_u32 v{vT2}, s{t0}, v{vT2}")
        A(f"v_cndmask_b32 v{vPB}, v{vT1}, v{vT2}, vcc")
        A(f"v_lshlrev_b32 v{vPB}, 7, v{vPB}")
        A(f"v_add_u32 v{vPB}, {WS_F1B}, v{vPB}")
        A(f"s_mul_i32 s{self.sWU}, s{sJ}, {7*SLOT}")
        A(f"s_mul_i32 s{self.sWUL}, s{sW}, 7168")
        A(f"s_add_u32 s{self.sWU}, s{self.sWU}, s{self.sWUL}")
        A(f"s_add_u32 s{self.sWU}, s{self.sWU}, {WS_WU}")
        self.poll(vPA, 10, "x1", width=2)
        self.stamp("x1 seen")
        A.label("L_attn")
        A(f"s_mul_i32 s{t0}, s{sL}, 7168")
        A(f"s_lshl_b32 s{t1}, s{sW}, 11")
        A(f"s_add_u32 s{t0}, s{t0}, s{t1}")
        A(f"s_add_u32 m0, s{t1}, {L_Q}")
        A(f"s_add_u32 s{t0}, s{t0}, {WS_Q}")
        A(f"s_lshl_b32 s{sKV}, s{sW}, 16")
        A(f"buffer_load_dwordx4 v1, {s(rWS,4)}, s{t0} offen sc1 lds")
        tq = A(f"buffer_load_dwordx4 v1, {s(rWS,4)}, s{t0} offen offset:1024 sc1 lds")
        A(f"s_add_u32 s{sKV}, s{sKV}, {WS_KV}")
        def kvload(it, fr):
            b = vKV + 16 * (it % 3) + 4 * fr
            tok["kv", it, fr] = A(f"buffer_load_dwordx4 {v(b,4)}, v1, {s(rWS,4)}, s{sKV} offen offset:{fr*1024} sc1")
        for it in range(2):
            for fr in range(4):
                kvload(it, fr)
            A(f"s_add_u32 s{sKV}, s{sKV}, 4096")
        A(f"s_mul_i32 s{self.sWO}, s{sW}, {14*8192}")
        A(f"s_add_u32 s{self.sWO}, s{self.sWO}, {WS_WO}")
        self.wo_win = 0
        A(f"v_bfe_u32 v{vT0}, v0, 3, 2")
        A(f"v_mul_u32_u24 v{vT0}, 448, v{vT0}")
        A(f"v_lshrrev_b32 v{vT1}, 5, v0")
        A(f"v_lshl_add_u32 v{vT0}, v{vT1}, 6, v{vT0}")
        A(f"v_and_b32 v{vT1}, 7, v0")
        A(f"v_lshl_add_u32 v{vT0}, v{vT1}, 3, v{vT0}")
        for n in range(4):
            A(f"s_add_u32 s{t0}, s{sW}, {n+1}")
            A(f"s_and_b32 s{t0}, s{t0}, 3")
            A(f"s_mul_i32 s{t0}, s{t0}, 1792")
            A(f"s_add_u32 s{t0}, s{t0}, {L_Q}")
            A(f"v_add_u32 v{vQa+n}, s{t0}, v{vT0}")
            A(f"v_mov_b64 {v(vQ+8*n+6,2)}, 0")
        A.wait(tq)
        A("s_barrier")
        lnf = self.lab("nf1b")
        A(f"s_cmp_lg_u32 s{sW}, 0")
        A(f"s_cbranch_scc1 {lnf}")
        A(f"s_lshl_b32 s{t0}, s{sL}, 7")
        A(f"s_add_u32 s{t0}, s{t0}, {WS_F1B}")
        A.raw(f"    buffer_store_dword v4, v{vONE}, {s(rWS,4)}, s{t0} offen sc1")
        A.label(lnf)
        A("s_mov_b32 exec_hi, 0")
        for n in range(4):
            A(f"ds_read_b64 {v(vQ+8*n+6,2)}, v{vQa+n} offset:384")
        A("s_mov_b32 exec_hi, -1")
        for n in range(4):
            for i in range(3):
                A(f"ds_read_b64 {v(vQ+8*n+2*i,2)}, v{vQa+n} offset:{i*128}")
        A.wait_all(vm=False)
        for n in range(3):
            A(f"s_add_u32 s{t0}, s{sW}, {n+1}")
            A(f"s_and_b32 s{t0}, s{t0}, 3")
            A(f"s_mul_i32 s{t0}, s{t0}, 12288")
            A(f"s_add_u32 s{t0}, s{t0}, {L_SC + n*4096}")
            A(f"v_add_u32 v{vQa+n}, s{t0}, v1")
        A(f"s_cmp_lg_u32 s{sMODE}, 0")
        A("s_cbranch_scc1 L_maxpass")
        A.label("L_attn_main")
        self.stamp("q ready")

        def smf(n, half):
            it, q = divmod(n, 4)
            d = vS + 16 * (n & 1)
            k = vKV + 16 * (it % 3) + 4 * half
            A(f"v_mfma_f32_32x32x16_bf16 {v(d,16)}, {v(k,4)}, {v(vQ+8*q+4*half,4)}, {v(d,16) if half else '0'}")
        def pmf(n, half):
            it, q = divmod(n, 4)
            d = vO + 16 * q
            vv = vKV + 16 * (it % 3) + 8 + 4 * half
            c = "0" if (it == 0 and half == 0) else v(d, 16)
            A(f"v_mfma_f32_32x32x16_bf16 {v(d,16)}, {v(vv,4)}, {v(vP+8*(n&1)+4*half,4)}, {c}")
        def owrite(slot, rq):
            A(f"ds_write_b128 v{vQa+slot}, {v(vO+16*slot+4*rq,4)} offset:{rq*1024}")

        sidew = {}
        def put(it, sl, fn):
            sidew.setdefault((it, sl), []).append(fn)
        for it in range(14):
            put(it, 0, lambda it=it: kvload(it + 2, 0))
            put(it, 2, lambda it=it: kvload(it + 2, 1))
            put(it, 4, lambda it=it: kvload(it + 2, 2))
            put(it, 6, lambda it=it: kvload(it + 2, 3))
            put(it, 7, lambda: A(f"s_add_u32 s{sKV}, s{sKV}, 4096"))
        for it in range(15):
            put(it, 11, lambda it=it: A.wait(tok["kv", it + 1, 3]))
        put(0, 5, lambda: A.wait(tok["kv", 0, 3]))
        put(1, 9, lambda: A("s_barrier"))
        f = 0
        for it in range(15):
            for sl in (1, 8, 10, 12, 14):
                put(it, sl, lambda f=f: self.wo_load(f))
                f += 1
        assert f == 75
        for k, sl in enumerate((0, 1, 2, 3)):
            put(15, sl, lambda k=k: self.wo_load(75 + k))
        for k, sl in enumerate((4, 5, 6, 7)):
            put(15, sl, lambda k=k: self.wo_load(79 + k))
        def f1b_load():
            tok["f1b"] = A(f"buffer_load_dword v11, v{vPB}, {s(rWS,4)}, 0 offen sc1")
        def f1b_test():
            A.wait(tok["f1b"])
            A(f"v_cmp_ne_u32 vcc, s{sTAG}, v11")
            A.nop(1)
            A("s_cbranch_vccnz L_f1b_spin")
            A.label("L_f1b_ok")
        put(2, 3, f1b_load)
        put(3, 13, f1b_test)
        k = 0
        for it in range(4, 15):
            for sl in (5, 15):
                if k < self.N_WU_ATT * (it - 3) * 2 // 22 + 1 and k < self.N_WU_ATT:
                    pre = self.wu_prep(k)
                    if pre:
                        put(it, sl - 2, lambda pre=pre: [A(x) for x in pre])
                    put(it, sl, lambda k=k: self.wu_load(k))
                    k += 1
        assert k == self.N_WU_ATT, k
        A.wait(tok["kv", 0, 1])
        smf(0, 0)
        smf(0, 1)
        A.nop(11)
        for n in range(64):
            it, q = divmod(n, 4)
            if n < 63:
                mf = [lambda: smf(n + 1, 0), lambda: smf(n + 1, 1)]
                mf += [lambda: pmf(n - 1, 0), lambda: pmf(n - 1, 1)] if n > 0 else [None, None]
            else:
                mf = [lambda: pmf(n - 1, 0), lambda: pmf(n - 1, 1), None, None]
            S, P = vS + 16 * (n & 1), vP + 8 * (n & 1)
            for j in range(4):
                if mf[j]:
                    mf[j]()
                for fn in sidew.get((it, 4 * q + j), []):
                    fn()
                if n == 62 and j >= 1:
                    owrite(0, j - 1)
                    if j == 3:
                        owrite(0, 3)
                if n == 63 and j >= 1:
                    owrite(1, j - 1)
                    if j == 3:
                        owrite(1, 3)
                for e in range(4):
                    A(f"v_exp_f32 v{S+4*j+e}, v{S+4*j+e}")
                A(f"v_cvt_pk_bf16_f32 v{P+2*j}, v{S+4*j}, v{S+4*j+1}")
                A(f"v_cvt_pk_bf16_f32 v{P+2*j+1}, v{S+4*j+2}, v{S+4*j+3}")
        owrite(2, 0)
        owrite(2, 1)
        pmf(63, 0)
        owrite(2, 2)
        pmf(63, 1)
        owrite(2, 3)
        self.stamp("attn loop")

    def p3(self):
        A = self.A
        tok = self.tok
        vQ, vO = self.vQ, self.vO
        t0, t1, t2, sHS = sT[5:9]
        vAcc, vXr = 16, 34
        vB = 48
        vR, vOw, vB0, vB1 = 8, 9, 10, 11
        vT0, vT1, vT2, vT3 = 12, 13, 14, 15
        vOwn = vO + 48
        A(f"v_and_b32 v{vT0}, 7, v0")
        A(f"v_lshrrev_b32 v{vT1}, 4, v0")
        A(f"v_mul_u32_u24 v{vT2}, 896, v{vT0}")
        A(f"v_lshl_add_u32 v{vT3}, v{vT1}, 3, v{vT2}")
        A(f"v_lshl_add_u32 v{vT2}, v{vT1}, 4, v{vT2}")
        A(f"s_mul_i32 s{t0}, s{sL}, 7168")
        A(f"s_mul_i32 s{t1}, s{sW}, 224")
        A(f"s_add_u32 s{t0}, s{t0}, s{t1}")
        for i in range(3):
            A(f"buffer_load_dwordx4 {v(vXr+4*i,4)}, v{vT2}, {s(rX,4)}, s{t0} offen offset:{64*i}")
        tx = A(f"buffer_load_dwordx2 {v(vXr+12,2)}, v{vT3}, {s(rX,4)}, s{t0} offen offset:192")
        A(f"s_mul_i32 s{t0}, s{sW}, 12288")
        A(f"s_add_u32 s{t0}, s{t0}, {L_SC}")
        A(f"v_add_u32 v{vR}, s{t0}, v1")
        A.wait_all(vm=False)
        A("s_barrier")
        tr_ = []
        for n in range(12):
            tr_.append(A(f"ds_read_b128 {v(vO+4*n,4)}, v{vR} offset:{n*1024}"))
            if n % 2 == 1:
                self.wo_load(83 + n // 2)
        A(f"v_mul_u32_u24 v{vB0}, {OB_STRIDE}, v{vT0}")
        A(f"v_bfe_u32 v{vT2}, v0, 3, 2")
        A(f"v_mad_u32_u24 v{vOw}, v{vT2}, 56, v{vB0}")
        A(f"v_lshrrev_b32 v{vT2}, 5, v0")
        A(f"v_lshl_add_u32 v{vOw}, v{vT2}, 3, v{vOw}")
        A(f"v_add_u32 v{vOw}, s{t0}, v{vOw}")
        A(f"v_lshl_add_u32 v{vB0}, v{vT1}, 4, v{vB0}")
        A(f"v_add_u32 v{vB0}, {L_SC}, v{vB0}")
        A(f"v_mul_u32_u24 v{vT2}, {12288-224}, v{vT2}")
        A(f"v_add_u32 v{vB1}, v{vB0}, v{vT2}")
        for n in range(12):
            A.wait(tr_[n])
            rq = n % 4
            for k in range(2):
                A(f"v_pk_add_f32 {v(vOwn+4*rq+2*k,2)}, {v(vOwn+4*rq+2*k,2)}, {v(vO+4*n+2*k,2)}")
        A(f"v_mov_b32 v{vT2}, v{vOwn+12}")
        A(f"v_mov_b32 v{vT3}, v{vOwn+12}")
        self.wo_load(89)
        self.wo_load(90)
        A(f"v_permlane32_swap_b32 v{vT2}, v{vT3}")
        A(f"s_mov_b32 s{t1}, {f32(2.0**-40)}")
        A(f"v_rcp_f32 v{vT2}, v{vT3}")
        A(f"v_cmp_nle_f32 vcc, s{t1}, v{vT3}")
        A(f"s_mov_b32 s{t1}, {f32(2.0**40)}")
        A(f"v_cmp_nge_f32 s[{sEX}:{sEX+1}], s{t1}, v{vT3}")
        for k in range(8):
            A(f"v_pk_mul_f32 {v(vOwn+2*k,2)}, {v(vOwn+2*k,2)}, {v(vT2,2)} op_sel_hi:[1,0]")
        A(f"s_or_b64 vcc, vcc, s[{sEX}:{sEX+1}]")
        A(f"s_cselect_b32 s{t1}, 1, 0")
        A(f"s_add_u32 s{t2}, s{t0}, 4096")
        for k in range(8):
            A(f"v_cvt_pk_bf16_f32 v{vOwn+k}, v{vOwn+2*k}, v{vOwn+2*k+1}")
        A(f"v_mov_b32 v{vT2}, s{t2}")
        A(f"v_mov_b32 v{vT3}, s{t1}")
        for i in range(3):
            A(f"ds_write_b64 v{vOw}, {v(vOwn+2*i,2)} offset:{16*i}")
        A("s_mov_b32 exec_hi, 0")
        A(f"ds_write_b64 v{vOw}, {v(vOwn+6,2)} offset:48")
        A(f"ds_write_b32 v{vT2}, v{vT3}")
        A("s_mov_b32 exec_hi, -1")
        for f in range(91, 95):
            self.wo_load(f)
        A(f"v_and_b32 v{vT2}, 3, v0")
        A(f"v_mul_u32_u24 v{vT2}, 12288, v{vT2}")
        A(f"v_add_u32 v{vT2}, {L_SC + 4096}, v{vT2}")
        A.wait_all(vm=False)
        A("s_barrier")
        tfl = A(f"ds_read_b32 v104, v{vT2}")
        tb = []
        for k in range(14):
            g = 4 * k
            reg, rem = divmod(g, 14)
            tb.append(A(f"ds_read_b128 {v(vB+4*k,4)}, v{vB1 if k in (3, 10) else vB0} offset:{reg*12288+rem*16}"))
        for f in range(95, 98):
            self.wo_load(f)
        A.wait(tx)
        A(f"s_mov_b32 s{t1}, 0xffff0000")
        for d in range(14):
            A(f"v_and_b32 v{vAcc+2*d+1}, s{t1}, v{vXr+d}") if vAcc + 2*d + 1 != vXr + d else None
            A(f"v_lshlrev_b32 v{vAcc+2*d}, 16, v{vXr+d}")
        A.wait(tfl)
        A(f"v_cmp_ne_u32 vcc, 0, v104")
        A(f"s_cmp_lg_u32 s{sMODE}, 0")
        A(f"s_cselect_b64 vcc, 0, vcc")
        A("s_cbranch_vccnz L_redo")
        self.stamp("o ready")
        wu = list(range(self.N_WU_ATT, 28))
        for k in range(14):
            for tt in range(7):
                f = 7 * k + tt
                A.wait(tb[k], tok["wo", f])
                A(f"v_mfma_f32_16x16x32_bf16 {v(vAcc+4*tt,4)}, {r(self.wo_reg(f),4)}, {v(vB+4*k,4)}, {v(vAcc+4*tt,4)}")
                if tt == 2 and wu:
                    for x in self.wu_prep(wu[0]):
                        A(x)
                if tt == 4 and wu:
                    self.wu_load(wu.pop(0))
        assert not wu
        self.stamp("wo done")
        vSt, vSo, vSo2 = 8, 9, 10
        A(f"v_lshrrev_b32 v{vT2}, 5, v0")
        A(f"v_lshlrev_b32 v{vSt}, 4, v{vT0}")
        A(f"v_lshl_add_u32 v{vT3}, v{vT2}, 7, v{vSt}")
        A(f"s_lshl_b32 s{t1}, s{sW}, 2")
        A(f"s_add_u32 s{t1}, s{t1}, {L_ST}")
        A(f"v_add_u32 v{vT3}, s{t1}, v{vT3}")
        A(f"v_add_u32 v11, {L_ST}, v{vSt}")
        A(f"s_and_b32 s{t1}, s{sL}, 3")
        A(f"v_pk_add_f32 v[48:49], {v(vAcc,2)}, {v(vAcc+2,2)}")
        A(f"v_pk_mul_f32 v[50:51], {v(vAcc,2)}, {v(vAcc,2)}")
        A(f"v_pk_fma_f32 v[50:51], {v(vAcc+2,2)}, {v(vAcc+2,2)}, v[50:51]")
        for k in range(2, 14):
            A(f"v_pk_add_f32 v[48:49], v[48:49], {v(vAcc+2*k,2)}")
            A(f"v_pk_fma_f32 v[50:51], {v(vAcc+2*k,2)}, {v(vAcc+2*k,2)}, v[50:51]")
        A("v_add_f32 v48, v48, v49")
        A("v_add_f32 v50, v50, v51")
        A(f"s_lshl_b32 s{t1}, s{t1}, 7")
        A(f"s_mul_i32 s{sHS}, s{sRT}, {SLOT}")
        A("v_permlane32_swap_b32 v48, v50")
        A("v_add_f32 v48, v48, v50")
        A("v_mov_b32 v49, v48")
        A(f"s_add_u32 s{sHS}, s{sHS}, s{t1}")
        A(f"s_add_u32 s{sHS}, s{sHS}, s{self.sWUL}")
        A("v_permlane16_swap_b32 v48, v49")
        A("v_add_f32 v48, v48, v49")
        A(f"ds_write_b32 v{vT3}, v48")
        A(f"v_and_b32 v{vT2}, 8, v0")
        A(f"v_cmp_ne_u32 vcc, 0, v{vT2}")
        A(f"v_mov_b32 v{vT2}, {WS_HN}")
        A(f"v_mov_b32 v{vT3}, {WS_H}")
        A(f"v_cndmask_b32 v{vT2}, v{vT2}, v{vT3}, vcc")
        A(f"v_add_u32 v{vT2}, v{vT2}, v{vSt}")
        A(f"v_lshl_add_u32 v{vSo}, v{vT1}, 9, v{vT2}")
        A(f"v_lshrrev_b32 v{vT3}, 1, v{vT1}")
        A(f"v_lshl_add_u32 v{vSo2}, v{vT3}, 9, v{vT2}")
        A(f"v_and_b32 v{vT3}, 1, v{vT1}")
        A(f"v_lshl_add_u32 v{vSo2}, v{vT3}, 3, v{vSo2}")
        A.wait_all(vm=False)
        A("s_barrier")
        A("ds_read_b128 v[48:51], v11")
        A("ds_read_b128 v[52:55], v11 offset:128")
        A(f"s_add_u32 s{t1}, s{sHS}, 4096")
        A.wait_all(vm=False)
        A("v_pk_add_f32 v[48:49], v[48:49], v[50:51]")
        A("v_pk_add_f32 v[52:53], v[52:53], v[54:55]")
        A("v_add_f32 v48, v48, v49")
        A("v_add_f32 v52, v52, v53")
        A(f"v_mul_f32 v48, {f32(1.0/448)}, v48")
        A("v_mul_f32 v49, v48, v48")
        A(f"v_mov_b32 v53, {f32(1.0/448)}")
        A("v_fma_f32 v52, v52, v53, -v49")
        A("v_max_f32 v52, 0, v52")
        A(f"v_add_f32 v52, {f32(1e-5)}, v52")
        A("v_rsq_f32 v52, v52")
        A.nop(1)
        A("v_mul_f32 v48, -v48, v52")
        A("v_cndmask_b32 v52, v52, 1.0, vcc")
        A("v_cndmask_b32 v48, v48, 0, vcc")
        for i in range(4):
            nreg = 4 if i < 3 else 2
            for k in range(nreg):
                a0 = vAcc + 8 * i + 2 * k
                A(f"v_pk_fma_f32 {v(a0,2)}, {v(a0,2)}, v[52:53], v[48:49] op_sel_hi:[1,0,0]")
            for k in range(nreg):
                a0 = vAcc + 8 * i + 2 * k
                A(f"v_cvt_pk_bf16_f32 v{56+4*i+k}, v{a0}, v{a0+1}")
            if i < 2:
                ts = A(f"buffer_store_dwordx4 {v(56+4*i,4)}, v{vSo}, {s(rWS,4)}, s{sHS} offen offset:{2048*i} sc1")
            elif i == 2:
                ts = A(f"buffer_store_dwordx4 {v(56+4*i,4)}, v{vSo}, {s(rWS,4)}, s{t1} offen sc1")
            else:
                ts = A(f"buffer_store_dwordx2 {v(56+4*i,2)}, v{vSo2}, {s(rWS,4)}, s{t1} offen offset:2048 sc1")
        self.stamp("hn stored")
        for k in range(28, 35):
            for x in self.wu_prep(k):
                A(x)
            self.wu_load(k)
        A(f"s_lshl_b32 s{t0}, s{sL}, 2")
        A(f"s_add_u32 s{t0}, s{t0}, s{sW}")
        A(f"s_lshl_b32 s{t0}, s{t0}, 7")
        A(f"s_add_u32 s{t0}, s{t0}, {WS_F2}")
        A.wait(ts)
        A(f"buffer_store_dword v4, v{vONE}, {s(rWS,4)}, s{t0} offen sc1")
        self.stamp("f2 sent")

    def wd_load(self, n):
        A = self.A
        k, e = divmod(n, 2)
        win = k // 2
        if win != self.wd_win:
            A(f"s_add_u32 s{self.sWD}, s{self.sWD}, {(win - self.wd_win) * 4096}")
            self.wd_win = win
        self.tok["wd", n] = A(f"buffer_load_dwordx4 {a(4*n,4)}, v{self.vWD+e}, {s(rWS,4)}, s{self.sWD} offen offset:{(k % 2) * 2048} sc1")

    def gelu_ops(self, acc, out):
        vT = 192
        seq = []
        for i in range(0, 8, 2):
            ops = []
            for k in (0, 1):
                g, u, t = acc + i + k, acc + 8 + i + k, vT + k
                ops.append([f"v_mul_f32 v{t}, v{g}, v{g}", f"v_fma_f32 v{t}, v{t}, s{self.sC1}, v{self.vC0}",
                            f"v_mul_f32 v{t}, v{t}, v{g}", f"v_exp_f32 v{t}, v{t}", f"v_mul_f32 v{u}, v{g}, v{u}",
                            f"v_add_f32 v{t}, 1.0, v{t}", f"v_rcp_f32 v{t}, v{t}", f"v_mul_f32 v{t}, v{t}, v{u}"])
            x, y = ops
            seq += [x[0], y[0], x[1], y[1], x[2], y[2], x[3], y[3], x[4], x[5], y[5], x[6], y[6], y[4], x[7], y[7]]
            seq.append(f"v_cvt_pk_bf16_f32 v{out + i // 2}, v{vT}, v{vT+1}")
        return seq

    def p4(self):
        A = self.A
        tok = self.tok
        t0, t1, sHN, sAS, self.sWD, self.sC1, sAS2 = sT[5:12]
        vHN, vAc, vWf, vOut = 16, 128, 176, 196
        self.vC0, self.vWD = 194, 8
        vPA, vW1, vW2 = 6, 10, 11
        c0 = -2.0 * math.log2(math.e) * math.sqrt(2.0 / math.pi)
        A(f"s_lshl_b32 s{t0}, s{sG}, 2")
        A(f"s_add_u32 s{t0}, s{t0}, s{sW}")
        A(f"s_lshl_b32 s{t1}, s{t0}, 11")
        A(f"s_add_u32 s{t1}, s{t1}, {WS_F2}")
        A(f"v_and_b32 v{vPA}, 15, v0")
        A(f"v_lshl_add_u32 v{vPA}, v{vPA}, 7, s{t1}")
        A(f"s_mul_i32 s{sHN}, s{t0}, {SLOT}")
        A(f"s_add_u32 s{sHN}, s{sHN}, {WS_HN}")
        A(f"s_mul_i32 s{sAS}, s{t0}, 112")
        A(f"s_mul_i32 s{t1}, s{sJ}, 7")
        A(f"s_add_u32 s{sAS}, s{sAS}, s{t1}")
        A(f"s_lshl_b32 s{sAS}, s{sAS}, 10")
        A(f"s_add_u32 s{sAS}, s{sAS}, {WS_A}")
        A(f"s_add_u32 s{sAS2}, s{sAS}, 4096")
        A(f"s_mul_i32 s{self.sWD}, s{sCT}, 112")
        A(f"s_mul_i32 s{t1}, s{sW}, 28")
        A(f"s_add_u32 s{self.sWD}, s{self.sWD}, s{t1}")
        A(f"s_lshl_b32 s{self.sWD}, s{self.sWD}, 11")
        A(f"s_add_u32 s{self.sWD}, s{self.sWD}, {WS_WD}")
        self.wd_win = 0
        A(f"s_and_b32 s{t1}, s{sW}, 1")
        A(f"s_lshl_b32 s{t1}, s{t1}, 10")
        A(f"v_add_u32 v{self.vWD}, s{t1}, v1")
        A(f"v_xor_b32 v{self.vWD+1}, 1024, v{self.vWD}")
        A(f"v_add_u32 v{vW1}, {2*SLOT}, v1")
        A(f"v_add_u32 v{vW2}, {4*SLOT}, v1")
        A(f"v_mov_b32 v{self.vC0}, {f32(c0)}")
        A(f"s_mov_b32 s{self.sC1}, {f32(c0 * 0.044715)}")
        self.poll(vPA, 12, "x2")
        A("s_barrier")
        self.stamp("x2 seen")
        def hn_load(k):
            if k and k % 4 == 0:
                A(f"s_add_u32 s{sHN}, s{sHN}, 4096")
            tok["hn", k] = A(f"buffer_load_dwordx4 {v(vHN+4*k,4)}, v1, {s(rWS,4)}, s{sHN} offen offset:{(k%4)*1024} sc1")
        NPRE = 10
        for k in range(NPRE):
            hn_load(k)
        order = [(i, k) for k in range(28) for i in (0, 1)] + [(i, k) for i in range(2, 7) for k in range(28)]
        NB = 4
        def wread(n):
            i, k = order[n]
            slot = i if i < 5 else i - 5
            base, off = {0: (1, 0), 1: (1, SLOT), 2: (vW1, 0), 3: (vW1, SLOT), 4: (vW2, 0)}[slot]
            tok["wf", n] = A(f"ds_read_b128 {v(vWf+4*(n%NB),4)}, v{base} offset:{off + k*1024}")
        for n in range(NB - 1):
            wread(n)
        gq = []
        vm_side = []
        wd_next = [0]
        def a_store(i):
            sb, off = (sAS, i * 1024) if i < 4 else (sAS2, (i - 4) * 1024)
            tok["as", i] = A(f"buffer_store_dwordx4 {v(vOut+4*(i&1),4)}, v1, {s(rWS,4)}, s{sb} offen offset:{off} sc1")
        cost = lambda o: 8 if o.startswith(("v_exp", "v_rcp")) else 4
        A.wait(tok["wf", 0], tok["hn", 0])
        wu_left = list(range(35, 49))
        for n, (i, k) in enumerate(order):
            acc = vAc + 16 * (i % 3)
            A(f"v_mfma_f32_32x32x16_bf16 {v(acc,16)}, {v(vWf+4*(n%NB),4)}, {v(vHN+4*k,4)}, {v(acc,16) if k else '0'}")
            budget = 20
            if n + 1 < len(order):
                pre = [tok["wf", n + 1]]
                if n < 56:
                    pre.append(tok["hn", order[n + 1][1]])
                A.wait(*pre)
            nr = n + NB - 1
            if nr < len(order):
                if order[nr] == (5, 0):
                    A.wait(tok["wu", 48])
                    A("s_barrier")
                wread(nr)
            if n == 56:
                A("s_barrier")
            if n < 56:
                if n % 2 == 0 and n // 2 + NPRE < 28:
                    hn_load(n // 2 + NPRE)
                elif n >= 38 and n % 2 == 0:
                    self.wd_load(wd_next[0]); wd_next[0] += 1
            elif wu_left and n % 2 == 1:
                kk = wu_left.pop(0)
                for x in self.wu_prep(kk):
                    A(x)
                    budget -= 4
                self.wu_load(kk)
                budget -= 4
            elif not wu_left and n % 2 == 1 and wd_next[0] < 56:
                self.wd_load(wd_next[0]); wd_next[0] += 1
                budget -= 6
            if k == 27:
                for o in self.gelu_ops(acc, vOut + 4 * (i & 1)):
                    gq.append((n + 4, o))
                gq.append((n + 4, lambda i=i: a_store(i)))
            while gq and gq[0][0] <= n:
                o = gq[0][1]
                c = cost(o) if isinstance(o, str) else 8
                if c > budget:
                    break
                budget -= c
                gq.pop(0)
                A(o) if isinstance(o, str) else o()
            if k == 27 and i >= 2:
                nxt = vAc + 16 * ((i + 1) % 3)
                assert not any(isinstance(o, str) and f"v{nxt+7}," in o + "," for _, o in gq), "accumulator reused before its activation is done"
        assert wd_next[0] == 56, wd_next
        self.stamp("up mfma")
        A.nop(12)
        for _, o in gq:
            A(o) if isinstance(o, str) else o()
        A(f"s_lshl_b32 s{t0}, s{sL}, 2")
        A(f"s_add_u32 s{t0}, s{t0}, s{sW}")
        A(f"s_lshl_b32 s{t0}, s{t0}, 8")
        A(f"s_add_u32 s{t0}, s{t0}, {WS_F3}")
        A.wait(tok["as", 6])
        A(f"buffer_store_dword v4, v{vONE}, {s(rWS,4)}, s{t0} offen sc1")
        self.stamp("f3 sent")

    def p5(self):
        A = self.A
        tok = self.tok
        t0, t1, t2, sA0 = sT[5:9]
        vAcc, vRing, NRING = 16, 80, 24
        vPA, vA0, vA1, vRd, vHo, vOo = 6, 8, 9, 10, 11, 12
        vWr = 13
        vH = 176
        A(f"s_cmp_ge_u32 s{sJ}, 14")
        A("s_cbranch_scc1 L_idle")
        A(f"s_lshl_b32 s{t0}, s{sG}, 4")
        A(f"s_lshl_b32 s{t1}, s{sW}, 2")
        A(f"s_add_u32 s{t0}, s{t0}, s{t1}")
        A(f"s_lshl_b32 s{t0}, s{t0}, 1")
        A(f"s_add_u32 s{t0}, s{t0}, s{sRH}")
        A(f"s_lshl_b32 s{t0}, s{t0}, 9")
        A(f"s_add_u32 s{t0}, s{t0}, {WS_F3}")
        A(f"v_bfe_u32 v{vPA}, v0, 1, 2")
        A(f"v_lshl_add_u32 v{vPA}, v{vPA}, 10, s{t0}")
        A(f"v_and_b32 v{vA0}, 1, v0")
        A(f"v_lshl_add_u32 v{vPA}, v{vA0}, 8, v{vPA}")
        A(f"s_lshl_b32 s{t0}, s{sG}, 1")
        A(f"s_add_u32 s{t0}, s{t0}, s{sRH}")
        A(f"s_lshl_b32 s{t0}, s{t0}, 1")
        A(f"s_mul_i32 s{sA0}, s{t0}, 112")
        A(f"s_mul_i32 s{t1}, s{sW}, 28")
        A(f"s_add_u32 s{sA0}, s{sA0}, s{t1}")
        A(f"s_lshl_b32 s{sA0}, s{sA0}, 10")
        A(f"s_add_u32 s{sA0}, s{sA0}, {WS_A}")
        A(f"s_lshr_b32 s{t1}, s{sW}, 1")
        A(f"s_mul_i32 s{t2}, s{t1}, {112*1024}")
        A(f"v_add_u32 v{vA0}, s{t2}, v1")
        A(f"s_sub_u32 s{t2}, {112*1024}, s{t2}")
        A(f"v_add_u32 v{vA1}, s{t2}, v1")
        A(f"s_add_u32 s{t0}, s{t0}, s{t1}")
        A(f"s_and_b32 s{t1}, s{sW}, 1")
        A(f"s_lshl_b32 s{t2}, s{sCT}, 1")
        A(f"s_add_u32 s{t1}, s{t1}, s{t2}")
        A(f"v_and_b32 v{vOo}, 31, v0")
        A(f"v_lshrrev_b32 v{vRd}, 5, v0")
        A(f"v_lshlrev_b32 v{vHo}, 4, v{vOo}")
        A(f"v_lshl_add_u32 v{vHo}, v{vRd}, 10, v{vHo}")
        A(f"v_mul_u32_u24 v{vOo}, 896, v{vOo}")
        A(f"v_lshl_add_u32 v{vOo}, v{vRd}, 5, v{vOo}")
        A(f"s_mul_i32 s{t0}, s{t0}, {SLOT}")
        A(f"s_lshl_b32 s{t2}, s{t1}, 6")
        A(f"s_add_u32 s{t2}, s{t2}, s{t0}")
        A(f"v_add_u32 v{vOo}, s{t2}, v{vOo}")
        A(f"s_lshl_b32 s{t2}, s{t1}, 11")
        A(f"s_add_u32 s{t2}, s{t2}, s{t0}")
        A(f"s_add_u32 s{t2}, s{t2}, {WS_H}")
        A(f"v_add_u32 v{vHo}, s{t2}, v{vHo}")
        for n in range(1, 4):
            A(f"s_xor_b32 s{t0}, s{sW}, {n}")
            A(f"s_mul_i32 s{t0}, s{t0}, 12288")
            A(f"s_add_u32 s{t0}, s{t0}, {L_SC + (n-1)*4096}")
            A(f"v_add_u32 v{vWr+n-1}, s{t0}, v1")
        A(f"s_mul_i32 s{t0}, s{sW}, 12288")
        A(f"s_add_u32 s{t0}, s{t0}, {L_SC}")
        A(f"v_add_u32 v{vRd}, s{t0}, v1")
        self.poll(vPA, 14 + 162, "x3")
        self.stamp("x3 seen")
        win = [0]
        def a_load(n):
            k, rho = divmod(n, 2)
            if k // 4 != win[0]:
                A(f"s_add_u32 s{sA0}, s{sA0}, {(k // 4 - win[0]) * 4096}")
                win[0] = k // 4
            tok["a", n] = A(f"buffer_load_dwordx4 {v(vRing+4*(n%NRING),4)}, v{vA1 if rho else vA0}, {s(rWS,4)}, s{sA0} offen offset:{(k%4)*1024} sc1")
        NPRE = 12
        for n in range(NPRE):
            a_load(n)
        nl = NPRE
        def mf(k, e, rho):
            d = vAcc + 16 * (2 * rho + e)
            A(f"v_mfma_f32_32x32x16_bf16 {v(d,16)}, {a(8*k+4*e,4)}, {v(vRing+4*((2*k+rho)%NRING),4)}, {v(d,16) if k else '0'}")
        KT = 4
        for k in range(28 - KT):
            A.wait(tok["a", 2 * k + 1])
            for j, (rho, e) in enumerate(((0, 0), (0, 1), (1, 0), (1, 1))):
                mf(k, e, rho)
                if j in (0, 2) and nl < 56:
                    a_load(nl); nl += 1
                if j == 1 and k == 22:
                    A(f"buffer_load_dwordx4 {v(vH,4)}, v{vHo}, {s(rWS,4)}, 0 offen sc1")
                    th = A(f"buffer_load_dwordx4 {v(vH+4,4)}, v{vHo}, {s(rWS,4)}, 0 offen offset:512 sc1")
        assert nl == 56
        A.wait(tok["a", 55])
        def pw(n, rq):
            A(f"ds_write_b128 v{vWr+n-1}, {v(vAcc+16*n+4*rq,4)} offset:{rq*1024}")
        for n in (3, 2, 1, 0):
            for x, k in enumerate(range(28 - KT, 28)):
                mf(k, n & 1, n >> 1)
                if n <= 1:
                    if x == 0:
                        A.nop(7 if n == 1 else 3)
                    pw(n + 2, x)
        A.nop(4)
        for rq in range(4):
            pw(1, rq)
        self.stamp("down mfma")
        A.wait(th)
        A(f"s_mov_b32 s{t0}, 0xffff0000")
        for d in range(8):
            A(f"v_lshlrev_b32 v{vH+8+2*d}, 16, v{vH+d}")
            A(f"v_and_b32 v{vH+8+2*d+1}, s{t0}, v{vH+d}")
        for k in range(8):
            A(f"v_pk_add_f32 {v(vAcc+2*k,2)}, {v(vAcc+2*k,2)}, {v(vH+8+2*k,2)}")
        A.wait_all(vm=False)
        A("s_barrier")
        tr_ = []
        for half in range(2):
            for n in range(3):
                for rq in (2 * half, 2 * half + 1):
                    tr_.append((rq, vRing + 16 * n + 4 * rq, A(f"ds_read_b128 {v(vRing+16*n+4*rq,4)}, v{vRd} offset:{n*4096+rq*1024}")))
        for half in range(2):
            for rq, reg, tk in tr_[6 * half: 6 * half + 6]:
                A.wait(tk)
                for k in range(2):
                    A(f"v_pk_add_f32 {v(vAcc+4*rq+2*k,2)}, {v(vAcc+4*rq+2*k,2)}, {v(reg+2*k,2)}")
            for k in range(4):
                A(f"v_cvt_pk_bf16_f32 v{vH+4*half+k}, v{vAcc+8*half+2*k}, v{vAcc+8*half+2*k+1}")
            A(f"buffer_store_dwordx4 {v(vH+4*half,4)}, v{vOo}, {s(rOUT,4)}, 0 offen offset:{16*half}")
        self.stamp("out stored")

    def tail(self):
        A = self.A
        if self.stop in ("setup", "p1"):
            return
        A.label("L_f1b_spin")
        self.poll(7, 11, "f1b")
        A("s_branch L_f1b_ok")
        A.label("L_maxpass")
        self.maxpass()
        A("s_branch L_attn_main")
        if self.stop == "p2":
            return
        A.label("L_redo")
        A(f"s_mov_b32 s{sMODE}, 1")
        A.wait_all()
        A("s_barrier")
        A("s_branch L_attn")
        if self.stop in ("p3", "p4"):
            return
        A.label("L_idle")
        t0 = sT[5]
        A(f"s_cmp_lg_u32 s{sL}, 15")
        A("s_cbranch_scc1 L_idle_end")
        A(f"s_lshl_b32 s{t0}, s{sW}, 13")
        A(f"s_add_u32 s{t0}, s{t0}, {WS_F1}")
        A(f"v_lshl_add_u32 v6, v0, 7, s{t0}")
        self.poll(6, 8, "all")
        A("s_barrier")
        A(f"s_cmp_lg_u32 s{sW}, 0")
        A("s_cbranch_scc1 L_idle_end")
        A(f"buffer_store_dword v4, v{vONE}, {s(rWS,4)}, 0 offen sc1")
        A.label("L_idle_end")
        self.end()

    def maxpass(self):
        A = self.A
        vQ, vS = self.vQ, self.vS
        t0, t1 = sT[5:7]
        vM, vK = 48, 56
        A.wait_all()
        A("s_barrier")
        for n in range(4):
            A(f"v_mov_b32 v{vM+n}, 0xff800000")
        A(f"s_lshl_b32 s{t0}, s{sW}, 16")
        A(f"s_add_u32 s{t0}, s{t0}, {WS_KV}")
        A(f"s_mov_b32 s{t1}, 0")
        A.label("L_mp_loop")
        A(f"buffer_load_dwordx4 {v(vK,4)}, v1, {s(rWS,4)}, s{t0} offen sc1")
        A(f"buffer_load_dwordx4 {v(vK+4,4)}, v1, {s(rWS,4)}, s{t0} offen offset:1024 sc1")
        A.wait_all(lg=False)
        for n in range(4):
            A(f"v_mfma_f32_32x32x16_bf16 {v(vS,16)}, {v(vK,4)}, {v(vQ+8*n,4)}, 0")
            A(f"v_mfma_f32_32x32x16_bf16 {v(vS,16)}, {v(vK+4,4)}, {v(vQ+8*n+4,4)}, {v(vS,16)}")
            A.nop(12)
            for k in range(8):
                A(f"v_max3_f32 v{vM+n}, v{vM+n}, v{vS+2*k}, v{vS+2*k+1}")
        A(f"s_add_u32 s{t0}, s{t0}, 4096")
        A(f"s_add_u32 s{t1}, s{t1}, 1")
        A(f"s_cmp_lt_u32 s{t1}, 16")
        A("s_cbranch_scc1 L_mp_loop")
        A("v_lshlrev_b32 v64, 2, v0")
        for n in range(4):
            A(f"s_add_u32 s{t0}, s{sW}, {n+1}")
            A(f"s_and_b32 s{t0}, s{t0}, 3")
            A(f"s_lshl_b32 s{t0}, s{t0}, 10")
            A(f"s_add_u32 s{t0}, s{t0}, {L_SC}")
            A(f"v_and_b32 v65, 31, v0")
            A(f"v_lshl_add_u32 v{68+n}, v65, 2, s{t0}")
            A(f"s_lshl_b32 s{t1}, s{sW}, 8")
            A(f"s_add_u32 s{t0}, s{t0}, s{t1}")
            A(f"v_add_u32 v65, s{t0}, v64")
            A(f"ds_write_b32 v65, v{vM+n}")
        A.wait_all(vm=False)
        A("s_barrier")
        for n in range(4):
            for k in range(8):
                A(f"ds_read_b32 v{72+k}, v{68+n} offset:{128*k}")
            A.wait_all(vm=False)
            A("v_max3_f32 v72, v72, v73, v74")
            A("v_max3_f32 v72, v72, v75, v76")
            A("v_max3_f32 v72, v72, v77, v78")
            A("v_max_f32 v72, v72, v79")
            A("v_sub_f32 v72, 0, v72")
            A("v_and_b32 v73, 0xffff0000, v72")
            A("v_sub_f32 v72, v72, v73")
            A("v_and_b32 v74, 0xffff0000, v72")
            A("v_sub_f32 v72, v72, v74")
            A("v_lshrrev_b32 v73, 16, v73")
            A("v_or_b32 v73, v73, v74")
            A("v_lshrrev_b32 v72, 16, v72")
            A("s_mov_b32 exec_lo, 0")
            A(f"v_mov_b32 v{vQ+8*n+6}, v73")
            A(f"v_mov_b32 v{vQ+8*n+7}, v72")
            A("s_mov_b32 exec_lo, -1")
        A("s_barrier")

    def build(self):
        A = self.A
        head = open("sequential_preLN__grouped_kv_mqa__geglu_ffn__prompt.s.ref").read().splitlines()
        for line in head:
            if line.startswith("; Override"):
                break
            A.raw(line)
        A.raw(f"; @launch grid=(256,1,1) block=(256,1,1) lds={LDS_BYTES}")
        A.raw('.amdgcn_target "amdgcn-amd-amdhsa--gfx950"')
        A.raw(".text")
        A.raw(f".globl {KNAME}")
        A.raw(".p2align 8")
        A.raw(f".type {KNAME},@function")
        A.label(KNAME)
        phases = [("setup", self.setup), ("p1", self.p1)]
        for nm in ("p2", "p3", "p4", "p5"):
            if hasattr(self, nm):
                phases.append((nm, getattr(self, nm)))
        for nm, fn in phases:
            A.comment(f"================ {nm} ================")
            fn()
            if self.stop == nm:
                break
        self.end()
        if hasattr(self, "tail"):
            self.tail()
        A.label("L_exit")
        A("s_endpgm")
        A.raw('.section .rodata,"a"')
        A.raw(".p2align 6")
        A.raw(f".amdhsa_kernel {KNAME}")
        for d in ("next_free_vgpr 512", "next_free_sgpr 102", "accum_offset 256", "group_segment_fixed_size 0",
                  "kernarg_size 96", "user_sgpr_count 2", "user_sgpr_kernarg_segment_ptr 1", "system_sgpr_workgroup_id_x 1"):
            A.raw("  .amdhsa_" + d)
        A.raw(".end_amdhsa_kernel")
        return A.text()


if __name__ == "__main__":
    import argparse
    ap = argparse.ArgumentParser()
    ap.add_argument("-o", default="k.s")
    ap.add_argument("--stop")
    ap.add_argument("--stamps", action="store_true")
    args = ap.parse_args()
    txt = Gen(args.stop, args.stamps).build()
    open(args.o, "w").write(txt)
    lint(txt)
```

```python
import sys, math, struct
from asmlib import *

KNAME = "sequential_preLN__grouped_kv_mqa__geglu_ffn__prompt_kernel"

WS_REF = 0
WS_F1 = 0x1000
WS_F1B = 0x9000
WS_F2 = 0x20000
WS_F3 = 0x40000
WS_KV = 0x80000
WS_WO = 0xC0000
WS_STAMP = 0x140000
WS_Q = 0x200000
WS_HN = 0x400000
WS_H = 0x600000
WS_WD = 0x800000
WS_WU = 0xA00000
WS_A = 0xE00000
WS_END = 0x1500000

SLOT = 28672
L_SC = 4 * SLOT
L_XN = L_SC
L_JOB = L_SC + SLOT
L_Q = L_SC
L_ST = 160768
LDS_BYTES = 163840
OB_STRIDE = 288

def f32(x):
    return "0x%08x" % struct.unpack("<I", struct.pack("<f", x))[0]

sB = 2
sPX, sPWQ, sPWK, sPWV, sPWO, sPWS, sPWG, sPWU, sPWD, sPOUT = 4, 6, 8, 10, 12, 14, 16, 18, 20, 22
rWS, rX, rW, rJA, rJG, rJU, rOUT, rSA, rSB = 24, 28, 32, 36, 40, 44, 48, 52, 56
sL, sW, sRT, sC, sG, sJ, sTAG, sXCC, sREF, sMODE = 60, 61, 62, 63, 64, 65, 66, 67, 68, 69
sCT, sRH = 70, 71
sT = list(range(72, 88)) + list(range(94, 102))
sSTAMP = 88
sSPIN = 91
sEX = 92
vONE = 2
SPIN_MAX = 400000


def srd(A, r, ptr, size):
    A(f"s_mov_b32 s{r}, s{ptr}")
    A(f"s_mov_b32 s{r+1}, s{ptr+1}")
    A(f"s_mov_b32 s{r+2}, {size}")
    A(f"s_mov_b32 s{r+3}, 0x00020000")


class Gen:
    def __init__(self, stop=None, stamps=False, dbg=None):
        self.dbg = dbg
        self.A = Asm()
        self.stop = stop
        self.stamps = stamps
        self.nstamp = 0
        self.uid = 0

    def lab(self, base):
        self.uid += 1
        return f"L_{base}_{self.uid}"

    def stamp(self, name):
        if not self.stamps:
            return
        A = self.A
        A.raw(f"    s_memrealtime s[{sSTAMP}:{sSTAMP+1}]")
        A.raw(f"    s_memtime s[{sEX}:{sEX+1}]")
        A.raw("    s_waitcnt lgkmcnt(0)")
        A.lg_done = A.lg
        A(f"v_writelane_b32 v255, s{sSTAMP}, {self.nstamp}")
        A(f"v_writelane_b32 v255, s{sEX}, {self.nstamp + 32}")
        self.nstamp += 1

    def stamp_flush(self):
        if not self.stamps:
            return
        A = self.A
        A(f"s_lshl_b32 s{sT[0]}, s{sL}, 2")
        A(f"s_add_u32 s{sT[0]}, s{sT[0]}, s{sW}")
        A(f"s_lshl_b32 s{sT[0]}, s{sT[0]}, 8")
        A(f"s_add_u32 s{sT[0]}, s{sT[0]}, {WS_STAMP}")
        A("v_mbcnt_lo_u32_b32 v254, -1, 0")
        A("v_mbcnt_hi_u32_b32 v254, -1, v254")
        A("v_lshlrev_b32 v254, 2, v254")
        A(f"buffer_store_dword v255, v254, {s(rWS,4)}, s{sT[0]} offen")
        if self.dbg is not None:
            l = self.lab("nodbg")
            A(f"s_lshl_b32 s{sT[0]}, s{sL}, 2")
            A(f"s_add_u32 s{sT[0]}, s{sT[0]}, s{sW}")
            A(f"s_cmp_lg_u32 s{sT[0]}, {self.dbg}")
            A(f"s_cbranch_scc1 {l}")
            A(f"s_load_dwordx2 s[{rJA}:{rJA+1}], s[0:1], 80")
            A(f"s_mov_b32 s{rJA+2}, 64")
            A(f"s_mov_b32 s{rJA+3}, 0x00020000")
            A(f"v_readlane_b32 s{sT[0]}, v255, 0")
            A("v_lshrrev_b32 v254, 1, v254")
            A.wait_all()
            A(f"v_subrev_u32 v255, s{sT[0]}, v255")
            A(f"buffer_store_short v255, v254, {s(rJA,4)}, 0 offen")
            A.label(l)

    def end(self):
        self.stamp_flush()
        self.A("s_endpgm")

    def poll(self, vaddr, vtmp, name, width=1):
        A = self.A
        l0, l1 = self.lab(name), self.lab(name + "_ok")
        A(f"s_mov_b32 s{sSPIN}, 0")
        A.label(l0)
        if width == 1:
            A(f"buffer_load_dword v{vtmp}, v{vaddr}, {s(rWS,4)}, 0 offen sc1")
        else:
            A(f"buffer_load_dwordx2 {v(vtmp,2)}, v{vaddr}, {s(rWS,4)}, 0 offen sc1")
        A.wait_all(lg=False)
        A(f"v_cmp_ne_u32 vcc, s{sTAG}, v{vtmp}")
        A(f"s_add_u32 s{sSPIN}, s{sSPIN}, 1")
        A(f"s_cbranch_vccz {l1}")
        A(f"s_cmp_lt_u32 s{sSPIN}, {SPIN_MAX}")
        A(f"s_cbranch_scc1 {l0}")
        A.label(l1)

    def setup(self):
        A = self.A
        A(f"s_cmp_ge_u32 s{sB}, 256")
        A("s_cbranch_scc1 L_exit")
        if self.stamps:
            A("v_mov_b32 v255, 0")
        self.stamp("entry")
        A("s_load_dwordx8 s[4:11], s[0:1], 0")
        A("s_load_dwordx2 s[12:13], s[0:1], 32")
        A("s_load_dwordx2 s[14:15], s[0:1], 88")
        A("s_load_dwordx8 s[16:23], s[0:1], 48")
        A("v_lshrrev_b32 v1, 6, v0")
        A("v_and_b32 v0, 63, v0")
        A(f"v_readfirstlane_b32 s{sW}, v1")
        A(f"s_and_b32 s{sL}, s{sB}, 7")
        A(f"s_lshl_b32 s{sL}, s{sL}, 5")
        A(f"s_lshr_b32 s{sT[0]}, s{sB}, 3")
        A(f"s_add_u32 s{sL}, s{sL}, s{sT[0]}")
        A(f"s_lshr_b32 s{sRT}, s{sL}, 2")
        A(f"s_and_b32 s{sC}, s{sL}, 3")
        A(f"s_lshr_b32 s{sG}, s{sL}, 4")
        A(f"s_and_b32 s{sJ}, s{sL}, 15")
        A(f"s_getreg_b32 s{sXCC}, hwreg(HW_REG_XCC_ID, 0, 4)")
        A(f"s_cmp_ge_u32 s{sJ}, 7")
        A(f"s_cselect_b32 s{sRH}, 1, 0")
        A(f"s_mul_i32 s{sT[0]}, s{sRH}, 7")
        A(f"s_sub_u32 s{sCT}, s{sJ}, s{sT[0]}")
        A(f"s_min_u32 s{sCT}, s{sCT}, 6")
        A(f"s_mov_b32 s{sMODE}, 0")

    def p1(self):
        A = self.A
        (rot, xb, ct1, ci, jid, jaS, jaS2, jaE, jaE2, jaD, jobl, wB, wN, wC, lB, lC, wcur,
         jbD, jbS, jbS2, t0, t1, t2) = sT[:23]
        vL, vL16 = 0, 1
        vXo, vWo, vJAo, vJBo = 2, 3, 4, 5
        vX = 8
        vJB = 36
        vJAt, vWt, vRR, vCC, vH, vMH, vK8, vT0, vXw, vL32, vT1, vT2 = range(52, 64)
        vF = 64
        vTmp = 120
        vXr = 124
        vJA1, vJA2, vJA3, vJR = 200, 201, 202, 204
        A(f"v_lshlrev_b32 v{vL16}, 4, v{vL}")
        A(f"v_lshrrev_b32 v6, 3, v{vL}")
        A(f"v_and_b32 v7, 7, v{vL}")
        A(f"v_mul_u32_u24 v{vXo}, 896, v6")
        A(f"v_lshl_add_u32 v{vXo}, v7, 4, v{vXo}")
        A(f"s_and_b32 s{rot}, s{sRT}, 7")
        A(f"s_cmp_eq_u32 s{rot}, 7")
        A(f"s_cselect_b32 s{rot}, 0, s{rot}")
        A(f"s_lshl_b32 s{xb}, s{sRT}, 2")
        A(f"s_add_u32 s{xb}, s{xb}, s{sW}")
        A(f"s_mul_i32 s{xb}, s{xb}, {8*896}")
        A(f"s_lshl_b32 s{ct1}, s{sC}, 2")
        A(f"s_add_u32 s{ct1}, s{ct1}, s{sW}")
        A(f"v_bfe_u32 v{vRR}, v{vL}, 2, 2")
        A(f"v_and_b32 v{vCC}, 3, v{vL}")
        A(f"v_lshrrev_b32 v{vH}, 5, v{vL}")
        A(f"v_bfe_u32 v{vMH}, v{vL}, 4, 1")
        A(f"v_lshl_add_u32 v{vK8}, v{vH}, 3, v{vRR}")
        lkv, lj2 = self.lab("w_kv"), self.lab("w_join")
        A(f"s_and_b32 s{t0}, s{sW}, 1")
        A(f"s_cmp_ge_u32 s{ct1}, 14")
        A(f"s_cbranch_scc1 {lkv}")
        A(f"s_lshr_b32 s{wB}, s{ct1}, 1")
        A(f"s_lshl_b32 s{wB}, s{wB}, 7")
        A(f"s_mul_i32 s{wN}, s{t0}, {32*896}")
        A(f"s_add_u32 s{wB}, s{wB}, s{wN}")
        A(f"s_mov_b32 s{wN}, {8*896-1024}")
        A(f"s_mov_b32 s{wC}, {64*896}")
        A(f"s_lshr_b32 s{lB}, s{sW}, 1")
        A(f"s_mul_i32 s{lB}, s{lB}, {2*SLOT}")
        A(f"v_lshlrev_b32 v{vWt}, 7, v{vK8}")
        A(f"v_lshrrev_b32 v{vT0}, 1, v{vRR}")
        A(f"v_xor_b32 v{vT0}, s{t0}, v{vT0}")
        A(f"v_lshl_add_u32 v{vWt}, v{vT0}, 6, v{vWt}")
        A(f"v_add_u32 v{vWt}, s{lB}, v{vWt}")
        A(f"s_lshl_b32 s{lC}, s{t0}, 12")
        A(f"s_add_u32 s{lB}, s{lB}, s{lC}")
        A(f"s_mov_b32 s{lC}, 8192")
        A(f"v_lshlrev_b32 v{vT0}, 6, v{vMH}")
        A(f"v_xor_b32 v{vWo}, v{vXo}, v{vT0}")
        A(f"s_branch {lj2}")
        A.label(lkv)
        A(f"s_mov_b32 s{wB}, 0")
        A(f"s_mov_b32 s{wN}, 0")
        A(f"s_mov_b32 s{wC}, {64*56}")
        A(f"s_mul_i32 s{lB}, s{sW}, {SLOT}")
        A(f"s_mov_b32 s{lC}, 4096")
        A(f"v_mul_u32_u24 v{vWt}, 56, v{vK8}")
        A(f"v_add_u32 v{vWt}, s{lB}, v{vWt}")
        A(f"v_mov_b32 v{vWo}, v{vL16}")
        A.label(lj2)
        A(f"v_lshl_add_u32 v{vWt}, v{vMH}, 5, v{vWt}")
        A(f"v_lshl_add_u32 v{vWt}, v{vCC}, 3, v{vWt}")
        A(f"s_mov_b32 s{rX+2}, {2048*896}")
        A(f"s_mov_b32 s{rX+3}, 0x00020000")
        A(f"s_mov_b32 s{rW+3}, 0x00020000")
        A(f"s_mov_b32 s{ci}, s{rot}")
        A.wait_all(vm=False)
        self.stamp("kernarg")
        A(f"s_mov_b32 s{rX}, s{sPX}")
        A(f"s_mov_b32 s{rX+1}, s{sPX+1}")
        tx = []
        for i in range(7):
            A(f"s_lshl_b32 s{t0}, s{ci}, 7")
            A(f"s_add_u32 s{t0}, s{t0}, s{xb}")
            tx.append(A(f"buffer_load_dwordx4 {v(vX+4*i,4)}, v{vXo}, {s(rX,4)}, s{t0} offen"))
            if i < 6:
                A(f"s_add_u32 s{ci}, s{ci}, 1")
                A(f"s_cmp_eq_u32 s{ci}, 7")
                A(f"s_cselect_b32 s{ci}, 0, s{ci}")
        A(f"s_cmp_eq_u32 s{ct1}, 14")
        A(f"s_cselect_b32 s{rW}, s{sPWK}, s{sPWV}")
        A(f"s_cselect_b32 s{rW+1}, s{sPWK+1}, s{sPWV+1}")
        A(f"s_cmp_lt_u32 s{ct1}, 14")
        A(f"s_cselect_b32 s{rW}, s{sPWQ}, s{rW}")
        A(f"s_cselect_b32 s{rW+1}, s{sPWQ+1}, s{rW+1}")
        A(f"s_mov_b32 s{t0}, {448*56}")
        A(f"s_cselect_b32 s{rW+2}, {448*896}, s{t0}")
        A(f"s_mov_b32 s{ci}, s{rot}")
        tok = {}
        side = []
        def wload(i, n):
            def f():
                if n == 0:
                    if i > 0:
                        A(f"s_add_u32 s{lB}, s{lB}, s{lC}")
                        A(f"s_add_u32 s{ci}, s{ci}, 1")
                        A(f"s_cmp_eq_u32 s{ci}, 7")
                        A(f"s_cselect_b32 s{ci}, 0, s{ci}")
                    A(f"s_mul_i32 s{wcur}, s{ci}, s{wC}")
                    A(f"s_mov_b32 m0, s{lB}")
                    A(f"s_add_u32 s{wcur}, s{wcur}, s{wB}")
                else:
                    A(f"s_add_u32 s{wcur}, s{wcur}, s{wN}")
                tok["w", i] = A(f"buffer_load_dwordx4 v{vWo}, {s(rW,4)}, s{wcur} offen offset:{n*1024} lds")
            return f
        for i in range(7):
            for n in range(4):
                side.append(wload(i, n))
        def ja_load():
            A(f"s_mov_b32 m0, s{jobl}")
            A.nop(1)
            A(f"buffer_load_dwordx4 v{vJAo}, {s(rJA,4)}, s{jaS} offen lds")
            tok["ja"] = A(f"buffer_load_dwordx4 v{vJAo}, {s(rJA,4)}, s{jaS2} offen offset:1024 lds")
        def ja_read():
            A.wait(tok["ja"])
            A(f"ds_read_b64_tr_b16 {v(vJR,2)}, v{vJAt}")
            A(f"ds_read_b64_tr_b16 {v(vJR+2,2)}, v{vJA1}")
            A(f"ds_read_b64_tr_b16 {v(vJR+4,2)}, v{vJA2}")
            A(f"ds_read_b64_tr_b16 {v(vJR+6,2)}, v{vJA3}")
        def ja_store():
            A(f"buffer_store_dwordx4 {v(vJR,4)}, v{vL16}, {s(rSA,4)}, s{jaD} offen sc1")
            A(f"buffer_store_dwordx4 {v(vJR+4,4)}, v{vL16}, {s(rSA,4)}, s{jaD} offen offset:1024 sc1")
        def pop(n=1):
            for _ in range(n):
                if side:
                    side.pop(0)()
        pop(4)
        A(f"s_load_dword s{sREF}, s[{sPWS}:{sPWS+1}], {WS_REF}")
        srd(A, rWS, sPWS, WS_END)
        pop(4)
        A(f"s_lshl_b32 s{jid}, s{sL}, 2")
        A(f"s_add_u32 s{jid}, s{jid}, s{sW}")
        lwo, ljoin = self.lab("ja_wo"), self.lab("ja_join")
        A(f"s_mov_b32 s{rJA+3}, 0x00020000")
        A(f"s_cmp_ge_u32 s{jid}, 784")
        A(f"s_cbranch_scc1 {lwo}")
        A(f"s_mov_b32 s{rJA}, s{sPWD}")
        A(f"s_mov_b32 s{rJA+1}, s{sPWD+1}")
        A(f"s_mov_b32 s{rJA+2}, 0")
        A(f"s_mul_i32 s{t0}, s{sL}, 2341")
        A(f"s_lshr_b32 s{t0}, s{t0}, 16")
        A(f"s_mul_i32 s{t1}, s{t0}, 112")
        A(f"s_sub_u32 s{t1}, s{jid}, s{t1}")
        A(f"s_mul_i32 s{jaS}, s{t1}, {16*896}")
        A(f"s_lshl_b32 s{t0}, s{t0}, 7")
        A(f"s_add_u32 s{jaS}, s{jaS}, s{t0}")
        A(f"s_add_u32 s{jaS2}, s{jaS}, {8*896-1024}")
        A(f"s_mov_b32 s{jaE}, 512")
        A(f"s_mov_b32 s{jaE2}, 64")
        A(f"s_lshl_b32 s{jaD}, s{jid}, 11")
        A(f"s_add_u32 s{jaD}, s{jaD}, {WS_WD}")
        A(f"v_mov_b32 v{vJAo}, v{vXo}")
        A(f"v_lshlrev_b32 v{vJAt}, 7, v{vK8}")
        A(f"v_and_b32 v{vT0}, 1, v{vCC}")
        A(f"v_lshl_add_u32 v{vJAt}, v{vT0}, 5, v{vJAt}")
        A(f"v_lshl_add_u32 v{vJAt}, v{vMH}, 4, v{vJAt}")
        A(f"v_lshrrev_b32 v{vT0}, 1, v{vCC}")
        A(f"v_lshl_add_u32 v{vJAt}, v{vT0}, 3, v{vJAt}")
        A(f"s_branch {ljoin}")
        A.label(lwo)
        A(f"s_mov_b32 s{rJA}, s{sPWO}")
        A(f"s_mov_b32 s{rJA+1}, s{sPWO+1}")
        A(f"s_cmp_lt_u32 s{jid}, 1008")
        A(f"s_cselect_b32 s{rJA+2}, {448*896}, 0")
        A(f"s_sub_u32 s{t0}, s{jid}, 784")
        A(f"s_lshl_b32 s{jaD}, s{t0}, 11")
        A(f"s_add_u32 s{jaD}, s{jaD}, {WS_WO}")
        A(f"s_mul_i32 s{t1}, s{t0}, 1171")
        A(f"s_lshr_b32 s{t1}, s{t1}, 16")
        A(f"s_mul_i32 s{t2}, s{t1}, 56")
        A(f"s_sub_u32 s{t2}, s{t0}, s{t2}")
        A(f"s_lshr_b32 s{t2}, s{t2}, 2")
        A(f"s_and_b32 s{t0}, s{t0}, 3")
        A(f"s_mul_i32 s{jaS}, s{t2}, {32*896}")
        A(f"s_mul_i32 s{t1}, s{t1}, 224")
        A(f"s_add_u32 s{jaS}, s{jaS}, s{t1}")
        A(f"s_lshl_b32 s{t1}, s{t0}, 6")
        A(f"s_add_u32 s{jaS}, s{jaS}, s{t1}")
        A(f"s_add_u32 s{jaS2}, s{jaS}, {16*896-1024}")
        A(f"s_mov_b32 s{jaE}, 256")
        A(f"s_mov_b32 s{jaE2}, 8")
        A(f"s_cmp_eq_u32 s{t0}, 3")
        A(f"s_cselect_b32 s{t0}, 3, 4")
        A(f"v_lshrrev_b32 v{vT0}, 2, v{vL}")
        A(f"v_mul_u32_u24 v{vJAo}, 896, v{vT0}")
        A(f"v_lshl_add_u32 v{vJAo}, v{vCC}, 4, v{vJAo}")
        A(f"v_lshrrev_b32 v{vT0}, 4, v{vL}")
        A(f"v_lshl_add_u32 v{vT0}, v{vT0}, 3, v{vRR}")
        A(f"v_lshlrev_b32 v{vJAt}, 6, v{vT0}")
        A(f"v_lshlrev_b32 v{vT0}, s{t0}, v{vCC}")
        A(f"v_add_u32 v{vJAt}, v{vJAt}, v{vT0}")
        A.label(ljoin)
        A(f"s_mul_i32 s{jobl}, s{sW}, 5120")
        A(f"s_add_u32 s{jobl}, s{jobl}, {L_JOB}")
        A(f"v_add_u32 v{vJAt}, s{jobl}, v{vJAt}")
        ja_load()
        A(f"v_add_u32 v{vJA1}, s{jaE}, v{vJAt}")
        A(f"v_add_u32 v{vJA2}, s{jaE2}, v{vJAt}")
        A(f"v_add_u32 v{vJA3}, s{jaE2}, v{vJA1}")
        A(f"v_mul_u32_u24 v{vJBo}, 3584, v6")
        A(f"v_lshl_add_u32 v{vJBo}, v7, 4, v{vJBo}")
        A(f"s_cmp_lt_u32 s{jid}, 784")
        A(f"s_cselect_b32 s{t0}, {448*3584}, 0")
        A(f"s_cselect_b32 s{t1}, {WS_END}, 0")
        srd(A, rJG, sPWG, f"s{t0}")
        srd(A, rJU, sPWU, f"s{t0}")
        srd(A, rSB, sPWS, f"s{t1}")
        pop()
        A(f"s_mul_i32 s{t0}, s{jid}, 2341")
        A(f"s_lshr_b32 s{t0}, s{t0}, 16")
        A(f"s_mul_i32 s{t1}, s{t0}, 28")
        A(f"s_sub_u32 s{t1}, s{jid}, s{t1}")
        A(f"s_mul_i32 s{jbD}, s{t0}, 112")
        A(f"s_add_u32 s{jbD}, s{jbD}, s{t1}")
        A(f"s_lshl_b32 s{jbD}, s{jbD}, 10")
        A(f"s_add_u32 s{jbD}, s{jbD}, {WS_WU}")
        A(f"s_mul_i32 s{t1}, s{t1}, {16*3584}")
        A(f"s_lshl_b32 s{t0}, s{t0}, 7")
        A(f"s_add_u32 s{jbS}, s{t0}, s{t1}")
        A(f"s_add_u32 s{jbS2}, s{jbS}, {8*3584}")
        pop()
        A(f"s_cmp_lg_u32 s{rJA+2}, 0")
        A(f"s_cselect_b32 s{t1}, {WS_END}, 0")
        srd(A, rSA, sPWS, f"s{t1}")
        srd(A, rOUT, sPOUT, 2048 * 896)
        A(f"s_lshl_b32 s{t0}, s{sW}, 3")
        A(f"v_xor_b32 v{vXw}, v6, v7")
        A(f"v_add_u32 v{vXw}, s{t0}, v{vXw}")
        A(f"v_lshlrev_b32 v{vXw}, 4, v{vXw}")
        A(f"v_lshl_add_u32 v{vXw}, v7, 9, v{vXw}")
        A(f"v_add_u32 v{vXw}, {L_XN}, v{vXw}")
        A(f"v_and_b32 v{vL32}, 31, v{vL}")
        pop()
        for q in range(4):
            A(f"v_add_u32 v{vT0}, {2*q}, v{vH}")
            A(f"v_xor_b32 v{vT1}, v{vL32}, v{vT0}")
            A(f"v_lshlrev_b32 v{vT1}, 4, v{vT1}")
            A(f"v_lshl_add_u32 v{vT1}, v{vT0}, 9, v{vT1}")
            A(f"v_add_u32 v{vXr+q}, {L_XN}, v{vT1}")
        pop()
        A(f"s_mov_b32 s{t0}, 0xffff0000")
        for i in range(7):
            A.wait(tx[i])
            if i in (1, 3, 5, 6):
                pop()
            for k in range(4):
                A(f"v_lshlrev_b32 v{vF+8*i+2*k}, 16, v{vX+4*i+k}")
                A(f"v_and_b32 v{vF+8*i+2*k+1}, s{t0}, v{vX+4*i+k}")
            if i == 0:
                A(f"v_pk_add_f32 {v(vTmp,2)}, {v(vF,2)}, {v(vF+2,2)}")
                A(f"v_pk_add_f32 {v(vTmp+2,2)}, {v(vF+4,2)}, {v(vF+6,2)}")
            else:
                for k in range(4):
                    d = vTmp + 2 * (k & 1)
                    A(f"v_pk_add_f32 {v(d,2)}, {v(d,2)}, {v(vF+8*i+2*k,2)}")
        self.stamp("x arrived")
        def red8():
            A(f"v_pk_add_f32 {v(vTmp,2)}, {v(vTmp,2)}, {v(vTmp+2,2)}")
            A(f"v_add_f32 v{vTmp}, v{vTmp}, v{vTmp+1}")
            for n, m in enumerate(("quad_perm:[1,0,3,2]", "quad_perm:[2,3,0,1]", "row_half_mirror")):
                if n == 1:
                    pop()
                else:
                    A.nop(2)
                A(f"v_add_f32_dpp v{vTmp}, v{vTmp}, v{vTmp} {m} row_mask:0xf bank_mask:0xf")
        red8()
        A(f"v_mul_f32 v{vTmp}, {f32(-1.0/448)}, v{vTmp}")
        for k in range(28):
            A(f"v_pk_add_f32 {v(vF+2*k,2)}, {v(vF+2*k,2)}, {v(vTmp,2)} op_sel_hi:[1,0]")
            if k == 14:
                pop()
        A(f"v_pk_mul_f32 {v(vTmp,2)}, {v(vF,2)}, {v(vF,2)}")
        A(f"v_pk_mul_f32 {v(vTmp+2,2)}, {v(vF+2,2)}, {v(vF+2,2)}")
        for k in range(2, 28):
            d = vTmp + 2 * (k & 1)
            A(f"v_pk_fma_f32 {v(d,2)}, {v(vF+2*k,2)}, {v(vF+2*k,2)}, {v(d,2)}")
            if k == 10:
                pop()
        red8()
        A(f"v_mov_b32 v{vTmp+1}, {f32(1e-5)}")
        A(f"v_fmamk_f32 v{vTmp}, v{vTmp}, {f32(1.0/448)}, v{vTmp+1}")
        A(f"v_rsq_f32 v{vTmp}, v{vTmp}")
        ja_read()
        for i in range(7):
            for k in range(4):
                A(f"v_pk_mul_f32 {v(vF+8*i+2*k,2)}, {v(vF+8*i+2*k,2)}, {v(vTmp,2)} op_sel_hi:[1,0]")
            for k in range(4):
                A(f"v_cvt_pk_bf16_f32 v{vX+4*i+k}, v{vF+8*i+2*k}, v{vF+8*i+2*k+1}")
            A(f"ds_write_b128 v{vXw}, {v(vX+4*i,4)} offset:{i*4096}")
            if i in (0, 2, 4, 6):
                pop()
        A.wait_all(vm=False)
        ja_store()
        self.stamp("ln1 done")
        A(f"s_mul_i32 s{sTAG}, s{sREF}, 0x9E3779B1")
        A(f"s_add_u32 s{sTAG}, s{sTAG}, 0x7F4A7C15")
        vAcc, vWf, vXf, NB = 128, 144, 176, 5
        lK, lV, lE = self.lab("g_k"), self.lab("g_v"), self.lab("g_end")
        A(f"s_cmp_eq_u32 s{ct1}, 14")
        A(f"s_cbranch_scc1 {lK}")
        A(f"s_cmp_eq_u32 s{ct1}, 15")
        A(f"s_cbranch_scc1 {lV}")
        state = (A.vm, A.lg, A.vm_done, A.lg_done)
        side_left = list(side)
        bar_at = {0: 2, 12: 4, 20: 5, 24: 6}
        def gemm(kind):
            A.vm, A.lg, A.vm_done, A.lg_done = state
            side[:] = side_left
            cs, ks, es = (8192, 2048, 512) if kind == "q" else (4096, 896, 224)
            rt = {}
            def reads(n):
                if n in bar_at:
                    A.wait(tok["w", bar_at[n]])
                    A("s_barrier")
                pos, q, b = n // 4, n % 4, 4 * (n % NB)
                A(f"ds_read_b128 {v(vXf+b,4)}, v{vXr+q} offset:{pos*4096}")
                A(f"ds_read_b64_tr_b16 {v(vWf+b,2)}, v{vWt} offset:{pos*cs+q*ks}")
                rt[n] = A(f"ds_read_b64_tr_b16 {v(vWf+b+2,2)}, v{vWt} offset:{pos*cs+q*ks+es}")
            for n in range(NB - 1):
                reads(n)
            for n in range(28):
                A.wait(rt[n])
                b = 4 * (n % NB)
                wa, xa = v(vWf + b, 4), v(vXf + b, 4)
                if kind == "v":
                    wa, xa = xa, wa
                A(f"v_mfma_f32_32x32x16_bf16 {v(vAcc,16)}, {wa}, {xa}, {'0' if n == 0 else v(vAcc,16)}")
                if n + NB - 1 < 28:
                    reads(n + NB - 1)
                pop()
            assert not side
        gemm("q")
        A(f"v_bfe_u32 v{vT0}, v{vL}, 3, 2")
        A(f"v_mul_u32_u24 v{vT0}, 7168, v{vT0}")
        A(f"v_lshl_add_u32 v{vT0}, v{vH}, 6, v{vT0}")
        A(f"v_lshl_add_u32 v{vT0}, v7, 3, v{vT0}")
        A(f"s_mul_i32 s{t0}, s{sRT}, {4*7168}")
        A(f"s_lshl_b32 s{t1}, s{ct1}, 9")
        A(f"s_add_u32 s{t0}, s{t0}, s{t1}")
        A(f"s_add_u32 s{t0}, s{t0}, {WS_Q}")
        A.nop(4)
        for i in range(4):
            A(f"v_cvt_pk_bf16_f32 v{vF+2*i}, v{vAcc+4*i}, v{vAcc+4*i+1}")
            A(f"v_cvt_pk_bf16_f32 v{vF+2*i+1}, v{vAcc+4*i+2}, v{vAcc+4*i+3}")
            A(f"buffer_store_dwordx2 {v(vF+2*i,2)}, v{vT0}, {s(rWS,4)}, s{t0} offen offset:{i*128} sc1")
        A(f"s_branch {lE}")
        A.label(lK)
        gemm("k")
        A(f"s_lshl_b32 s{t0}, s{sRT}, 12")
        A(f"s_add_u32 s{t0}, s{t0}, {WS_KV}")
        A(f"s_mov_b32 s{t1}, {f32(28 ** -0.5 * math.log2(math.e))}")
        A(f"v_cmp_lt_u32 vcc, 31, v{vL}")
        A(f"v_mov_b32 v{vT1}, 0x3f803f80")
        A(f"v_mov_b32 v{vT2}, 0x00003f80")
        A.nop(6)
        for i in range(16):
            A(f"v_mul_f32 v{vAcc+i}, s{t1}, v{vAcc+i}")
        for i in range(8):
            A(f"v_cvt_pk_bf16_f32 v{vF+i}, v{vAcc+2*i}, v{vAcc+2*i+1}")
        A(f"v_cndmask_b32 v{vF+6}, v{vF+6}, v{vT1}, vcc")
        A(f"v_cndmask_b32 v{vF+7}, v{vF+7}, v{vT2}, vcc")
        A(f"buffer_store_dwordx4 {v(vF,4)}, v{vL16}, {s(rWS,4)}, s{t0} offen sc1")
        A(f"buffer_store_dwordx4 {v(vF+4,4)}, v{vL16}, {s(rWS,4)}, s{t0} offen offset:1024 sc1")
        A(f"s_branch {lE}")
        A.label(lV)
        gemm("v")
        A(f"s_lshl_b32 s{t0}, s{sRT}, 12")
        A(f"s_add_u32 s{t0}, s{t0}, {WS_KV}")
        A(f"v_cmp_eq_u32 vcc, 28, v{vL32}")
        A(f"v_mov_b32 v{vT1}, 0x3f803f80")
        A.nop(1)
        A(f"v_cndmask_b32 v{vT1}, 0, v{vT1}, vcc")
        A(f"v_cmp_lt_u32 vcc, 27, v{vL32}")
        A.nop(5)
        for i in range(8):
            A(f"v_cvt_pk_bf16_f32 v{vF+i}, v{vAcc+2*i}, v{vAcc+2*i+1}")
        for i in range(8):
            A(f"v_cndmask_b32 v{vF+i}, v{vF+i}, v{vT1}, vcc")
        A(f"buffer_store_dwordx4 {v(vF,4)}, v{vL16}, {s(rWS,4)}, s{t0} offen offset:2048 sc1")
        A(f"buffer_store_dwordx4 {v(vF+4,4)}, v{vL16}, {s(rWS,4)}, s{t0} offen offset:3072 sc1")
        A.label(lE)
        self.stamp("qkv stored")
        A(f"s_cmp_lt_u32 s{jid}, 784")
        A(f"s_cselect_b32 s{rJA+2}, {1792*896}, 0")
        A(f"s_cselect_b32 s{rSA+2}, {WS_END}, 0")
        ja_load()
        for k in range(4):
            A(f"buffer_load_dwordx4 {v(vJB+4*k,4)}, v{vJBo}, {s(rJG if k < 2 else rJU,4)}, s{jbS2 if k & 1 else jbS} offen")
        A(f"v_cmp_eq_u32 vcc, 0, v{vL}")
        A(f"v_mov_b32 v3, 0x7ff00000")
        A(f"v_mov_b32 v4, s{sTAG}")
        A(f"v_cndmask_b32 v{vONE}, v3, 0, vcc")
        A(f"v_mov_b32 v5, s{sXCC}")
        A(f"v_add_u32 v{vT0}, s{jobl}, v{vL16}")
        A(f"v_lshlrev_b32 v{vT1}, 7, v{vK8}")
        A(f"v_lshl_add_u32 v{vT1}, v{vMH}, 11, v{vT1}")
        A(f"v_and_b32 v{vT2}, 1, v{vCC}")
        A(f"v_lshl_add_u32 v{vT1}, v{vT2}, 4, v{vT1}")
        A(f"v_lshrrev_b32 v{vT2}, 1, v{vCC}")
        A(f"v_lshl_add_u32 v{vT1}, v{vT2}, 3, v{vT1}")
        A(f"v_add_u32 v{vT1}, s{jobl}, v{vT1}")
        A(f"s_lshl_b32 s{t0}, s{sL}, 7")
        A(f"s_add_u32 s{t0}, s{t0}, {WS_F1}")
        A.raw("    s_waitcnt vmcnt(6)")
        A.vm_done = A.vm - 6
        A("s_barrier")
        lnf = self.lab("nf1")
        A(f"s_cmp_lg_u32 s{sW}, 0")
        A(f"s_cbranch_scc1 {lnf}")
        A.raw(f"    buffer_store_dwordx2 v[4:5], v{vONE}, {s(rWS,4)}, s{t0} offen sc1")
        A.label(lnf)
        self.stamp("f1 sent")
        ja_read()
        A.wait_all()
        ja_store()
        for n in range(4):
            A(f"ds_write_b128 v{vT0}, {v(vJB+4*n,4)} offset:{n*1024}")
        A.wait_all(vm=False)
        toks = []
        for tt in range(4):
            A(f"ds_read_b64_tr_b16 {v(vJB+4*tt,2)}, v{vT1} offset:{tt*32}")
            toks.append(A(f"ds_read_b64_tr_b16 {v(vJB+4*tt+2,2)}, v{vT1} offset:{tt*32+512}"))
        for tt in range(4):
            A.wait(toks[tt])
            A(f"buffer_store_dwordx4 {v(vJB+4*tt,4)}, v{vL16}, {s(rSB,4)}, s{jbD} offen sc1")
            if tt < 3:
                A(f"s_add_u32 s{jbD}, s{jbD}, {28*1024}")
        self.stamp("jobs sent")

    vQ, vO, vS, vP, vKV, vSP = 16, 48, 112, 144, 160, 208
    N_WU_ATT = 14

    def wo_reg(self, f):
        if f < 64:
            return 256 + 4 * f
        if f < 75:
            return self.vSP + 4 * (f - 64)
        if f < 79:
            return self.vKV + 16 + 4 * (f - 75)
        if f < 83:
            return self.vKV + 32 + 4 * (f - 79)
        if f < 87:
            return self.vKV + 4 * (f - 83)
        if f < 95:
            return self.vS + 4 * (f - 87)
        return self.vP + 4 * (f - 95)

    def wo_load(self, f):
        A = self.A
        off = ((f // 7) * 8 + f % 7) * 1024
        if off // 4096 != self.wo_win:
            A(f"s_add_u32 s{self.sWO}, s{self.sWO}, {(off // 4096 - self.wo_win) * 4096}")
            self.wo_win = off // 4096
        self.tok["wo", f] = A(f"buffer_load_dwordx4 {r(self.wo_reg(f),4)}, v1, {s(rWS,4)}, s{self.sWO} offen offset:{off % 4096} sc1")

    def wu_prep(self, k):
        tile, p = divmod(k, 7)
        slot = tile if tile < 5 else tile - 5
        ops = []
        if p in (0, 4):
            ops.append(f"s_add_u32 m0, s{self.sWUL}, {slot * SLOT + p * 1024}")
            ops.append(f"s_add_u32 s{self.sWUC}, s{self.sWU}, {tile * SLOT + p * 1024}")
        return ops

    def wu_load(self, k):
        p = k % 7
        self.tok["wu", k] = self.A(f"buffer_load_dwordx4 v1, {s(rWS,4)}, s{self.sWUC} offen offset:{(p % 4) * 1024} sc1 lds")

    def p2(self):
        A = self.A
        self.tok = tok = {}
        self.sKV, self.sWO, self.sWU, self.sWUL, self.sWUC, t0, t1, t2 = sT[:8]
        sKV = self.sKV
        vQ, vO, vS, vP, vKV = self.vQ, self.vO, self.vS, self.vP, self.vKV
        vPA, vPB, vQa, vT0, vT1, vT2 = 6, 7, 8, 12, 13, 14
        A(f"v_and_b32 v{vT0}, 15, v0")
        A(f"s_lshl_b32 s{t0}, s{sW}, 6")
        A(f"s_add_u32 s{t0}, s{t0}, 3")
        A(f"v_lshl_add_u32 v{vPA}, v{vT0}, 2, s{t0}")
        A(f"s_lshl_b32 s{t0}, s{sG}, 4")
        A(f"v_add_u32 v{vT1}, s{t0}, v{vT0}")
        A(f"v_cmp_lt_u32 vcc, 15, v0")
        A(f"s_mul_i32 s{t0}, s{sW}, 14")
        A(f"s_add_u32 s{t0}, s{t0}, 196")
        A(f"v_cndmask_b32 v{vPA}, v{vPA}, v{vT1}, vcc")
        A(f"v_min_u32 v{vT1}, 13, v{vT0}")
        A(f"v_cmp_lt_u32 vcc, 31, v0")
        A(f"v_add_u32 v{vT1}, s{t0}, v{vT1}")
        A.nop(1)
        A(f"v_cndmask_b32 v{vPA}, v{vPA}, v{vT1}, vcc")
        A(f"v_lshlrev_b32 v{vPA}, 7, v{vPA}")
        A(f"v_add_u32 v{vPA}, {WS_F1}, v{vPA}")
        A(f"s_mul_i32 s{t0}, s{sJ}, 7")
        A(f"s_lshr_b32 s{t0}, s{t0}, 2")
        A(f"s_mul_i32 s{t0}, s{t0}, 7")
        A(f"v_min_u32 v{vT1}, 20, v0")
        A(f"v_add_u32 v{vT1}, s{t0}, v{vT1}")
        A(f"v_min_u32 v{vT1}, 195, v{vT1}")
        A(f"s_mul_i32 s{t0}, s{sCT}, 28")
        A(f"s_mul_i32 s{t1}, s{sW}, 7")
        A(f"s_add_u32 s{t0}, s{t0}, s{t1}")
        A(f"v_min_u32 v{vT2}, 6, v{vT0}")
        A(f"v_add_u32 v{vT2}, s{t0}, v{vT2}")
        A(f"v_cndmask_b32 v{vPB}, v{vT1}, v{vT2}, vcc")
        A(f"v_lshlrev_b32 v{vPB}, 7, v{vPB}")
        A(f"v_add_u32 v{vPB}, {WS_F1B}, v{vPB}")
        A(f"s_mul_i32 s{self.sWU}, s{sJ}, {7*SLOT}")
        A(f"s_mul_i32 s{self.sWUL}, s{sW}, 7168")
        A(f"s_add_u32 s{self.sWU}, s{self.sWU}, s{self.sWUL}")
        A(f"s_add_u32 s{self.sWU}, s{self.sWU}, {WS_WU}")
        self.poll(vPA, 10, "x1", width=2)
        self.stamp("x1 seen")
        A.label("L_attn")
        A(f"s_mul_i32 s{t0}, s{sL}, 7168")
        A(f"s_lshl_b32 s{t1}, s{sW}, 11")
        A(f"s_add_u32 s{t0}, s{t0}, s{t1}")
        A(f"s_add_u32 m0, s{t1}, {L_Q}")
        A(f"s_add_u32 s{t0}, s{t0}, {WS_Q}")
        A(f"s_lshl_b32 s{sKV}, s{sW}, 16")
        A(f"buffer_load_dwordx4 v1, {s(rWS,4)}, s{t0} offen sc1 lds")
        tq = A(f"buffer_load_dwordx4 v1, {s(rWS,4)}, s{t0} offen offset:1024 sc1 lds")
        A(f"s_add_u32 s{sKV}, s{sKV}, {WS_KV}")
        def kvload(it, fr):
            b = vKV + 16 * (it % 3) + 4 * fr
            tok["kv", it, fr] = A(f"buffer_load_dwordx4 {v(b,4)}, v1, {s(rWS,4)}, s{sKV} offen offset:{fr*1024} sc1")
        for it in range(2):
            for fr in range(4):
                kvload(it, fr)
            A(f"s_add_u32 s{sKV}, s{sKV}, 4096")
        A(f"s_mul_i32 s{self.sWO}, s{sW}, {14*8192}")
        A(f"s_add_u32 s{self.sWO}, s{self.sWO}, {WS_WO}")
        self.wo_win = 0
        A(f"v_bfe_u32 v{vT0}, v0, 3, 2")
        A(f"v_mul_u32_u24 v{vT0}, 448, v{vT0}")
        A(f"v_lshrrev_b32 v{vT1}, 5, v0")
        A(f"v_lshl_add_u32 v{vT0}, v{vT1}, 6, v{vT0}")
        A(f"v_and_b32 v{vT1}, 7, v0")
        A(f"v_lshl_add_u32 v{vT0}, v{vT1}, 3, v{vT0}")
        for n in range(4):
            A(f"s_add_u32 s{t0}, s{sW}, {n+1}")
            A(f"s_and_b32 s{t0}, s{t0}, 3")
            A(f"s_mul_i32 s{t0}, s{t0}, 1792")
            A(f"s_add_u32 s{t0}, s{t0}, {L_Q}")
            A(f"v_add_u32 v{vQa+n}, s{t0}, v{vT0}")
            A(f"v_mov_b64 {v(vQ+8*n+6,2)}, 0")
        A.wait(tq)
        A("s_barrier")
        lnf = self.lab("nf1b")
        A(f"s_cmp_lg_u32 s{sW}, 0")
        A(f"s_cbranch_scc1 {lnf}")
        A(f"s_lshl_b32 s{t0}, s{sL}, 7")
        A(f"s_add_u32 s{t0}, s{t0}, {WS_F1B}")
        A.raw(f"    buffer_store_dword v4, v{vONE}, {s(rWS,4)}, s{t0} offen sc1")
        A.label(lnf)
        A("s_mov_b32 exec_hi, 0")
        for n in range(4):
            A(f"ds_read_b64 {v(vQ+8*n+6,2)}, v{vQa+n} offset:384")
        A("s_mov_b32 exec_hi, -1")
        for n in range(4):
            for i in range(3):
                A(f"ds_read_b64 {v(vQ+8*n+2*i,2)}, v{vQa+n} offset:{i*128}")
        A.wait_all(vm=False)
        for n in range(3):
            A(f"s_add_u32 s{t0}, s{sW}, {n+1}")
            A(f"s_and_b32 s{t0}, s{t0}, 3")
            A(f"s_mul_i32 s{t0}, s{t0}, 12288")
            A(f"s_add_u32 s{t0}, s{t0}, {L_SC + n*4096}")
            A(f"v_add_u32 v{vQa+n}, s{t0}, v1")
        A(f"s_cmp_lg_u32 s{sMODE}, 0")
        A("s_cbranch_scc1 L_maxpass")
        A.label("L_attn_main")
        self.stamp("q ready")

        def smf(n, half):
            it, q = divmod(n, 4)
            d = vS + 16 * (n & 1)
            k = vKV + 16 * (it % 3) + 4 * half
            A(f"v_mfma_f32_32x32x16_bf16 {v(d,16)}, {v(k,4)}, {v(vQ+8*q+4*half,4)}, {v(d,16) if half else '0'}")
        def pmf(n, half):
            it, q = divmod(n, 4)
            d = vO + 16 * q
            vv = vKV + 16 * (it % 3) + 8 + 4 * half
            c = "0" if (it == 0 and half == 0) else v(d, 16)
            A(f"v_mfma_f32_32x32x16_bf16 {v(d,16)}, {v(vv,4)}, {v(vP+8*(n&1)+4*half,4)}, {c}")
        def owrite(slot, rq):
            A(f"ds_write_b128 v{vQa+slot}, {v(vO+16*slot+4*rq,4)} offset:{rq*1024}")

        sidew = {}
        def put(it, sl, fn):
            sidew.setdefault((it, sl), []).append(fn)
        for it in range(14):
            put(it, 0, lambda it=it: kvload(it + 2, 0))
            put(it, 2, lambda it=it: kvload(it + 2, 1))
            put(it, 4, lambda it=it: kvload(it + 2, 2))
            put(it, 6, lambda it=it: kvload(it + 2, 3))
            put(it, 7, lambda: A(f"s_add_u32 s{sKV}, s{sKV}, 4096"))
        for it in range(15):
            put(it, 11, lambda it=it: A.wait(tok["kv", it + 1, 3]))
        put(0, 5, lambda: A.wait(tok["kv", 0, 3]))
        put(1, 9, lambda: A("s_barrier"))
        f = 0
        for it in range(15):
            for sl in (1, 8, 10, 12, 14):
                put(it, sl, lambda f=f: self.wo_load(f))
                f += 1
        assert f == 75
        for k, sl in enumerate((0, 1, 2, 3)):
            put(15, sl, lambda k=k: self.wo_load(75 + k))
        for k, sl in enumerate((4, 5, 6, 7)):
            put(15, sl, lambda k=k: self.wo_load(79 + k))
        def f1b_load():
            tok["f1b"] = A(f"buffer_load_dword v11, v{vPB}, {s(rWS,4)}, 0 offen sc1")
        def f1b_test():
            A.wait(tok["f1b"])
            A(f"v_cmp_ne_u32 vcc, s{sTAG}, v11")
            A.nop(1)
            A("s_cbranch_vccnz L_f1b_spin")
            A.label("L_f1b_ok")
        put(2, 3, f1b_load)
        put(3, 13, f1b_test)
        k = 0
        for it in range(4, 15):
            for sl in (5, 15):
                if k < self.N_WU_ATT * (it - 3) * 2 // 22 + 1 and k < self.N_WU_ATT:
                    pre = self.wu_prep(k)
                    if pre:
                        put(it, sl - 2, lambda pre=pre: [A(x) for x in pre])
                    put(it, sl, lambda k=k: self.wu_load(k))
                    k += 1
        assert k == self.N_WU_ATT, k
        A.wait(tok["kv", 0, 1])
        smf(0, 0)
        smf(0, 1)
        A.nop(11)
        for n in range(64):
            it, q = divmod(n, 4)
            if n < 63:
                mf = [lambda: smf(n + 1, 0), lambda: smf(n + 1, 1)]
                mf += [lambda: pmf(n - 1, 0), lambda: pmf(n - 1, 1)] if n > 0 else [None, None]
            else:
                mf = [lambda: pmf(n - 1, 0), lambda: pmf(n - 1, 1), None, None]
            S, P = vS + 16 * (n & 1), vP + 8 * (n & 1)
            for j in range(4):
                if mf[j]:
                    mf[j]()
                for fn in sidew.get((it, 4 * q + j), []):
                    fn()
                if n == 62 and j >= 1:
                    owrite(0, j - 1)
                    if j == 3:
                        owrite(0, 3)
                if n == 63 and j >= 1:
                    owrite(1, j - 1)
                    if j == 3:
                        owrite(1, 3)
                for e in range(4):
                    A(f"v_exp_f32 v{S+4*j+e}, v{S+4*j+e}")
                A(f"v_cvt_pk_bf16_f32 v{P+2*j}, v{S+4*j}, v{S+4*j+1}")
                A(f"v_cvt_pk_bf16_f32 v{P+2*j+1}, v{S+4*j+2}, v{S+4*j+3}")
        owrite(2, 0)
        owrite(2, 1)
        pmf(63, 0)
        owrite(2, 2)
        pmf(63, 1)
        owrite(2, 3)
        self.stamp("attn loop")

    def p3(self):
        A = self.A
        tok = self.tok
        vQ, vO = self.vQ, self.vO
        t0, t1, t2, sHS = sT[5:9]
        vAcc, vXr = 16, 34
        vB = 48
        vR, vOw, vB0, vB1 = 8, 9, 10, 11
        vT0, vT1, vT2, vT3 = 12, 13, 14, 15
        vOwn = vO + 48
        A(f"v_and_b32 v{vT0}, 7, v0")
        A(f"v_lshrrev_b32 v{vT1}, 4, v0")
        A(f"v_mul_u32_u24 v{vT2}, 896, v{vT0}")
        A(f"v_lshl_add_u32 v{vT3}, v{vT1}, 3, v{vT2}")
        A(f"v_lshl_add_u32 v{vT2}, v{vT1}, 4, v{vT2}")
        A(f"s_mul_i32 s{t0}, s{sL}, 7168")
        A(f"s_mul_i32 s{t1}, s{sW}, 224")
        A(f"s_add_u32 s{t0}, s{t0}, s{t1}")
        for i in range(3):
            A(f"buffer_load_dwordx4 {v(vXr+4*i,4)}, v{vT2}, {s(rX,4)}, s{t0} offen offset:{64*i}")
        tx = A(f"buffer_load_dwordx2 {v(vXr+12,2)}, v{vT3}, {s(rX,4)}, s{t0} offen offset:192")
        A(f"s_mul_i32 s{t0}, s{sW}, 12288")
        A(f"s_add_u32 s{t0}, s{t0}, {L_SC}")
        A(f"v_add_u32 v{vR}, s{t0}, v1")
        A.wait_all(vm=False)
        A("s_barrier")
        tr_ = []
        for n in range(12):
            tr_.append(A(f"ds_read_b128 {v(vO+4*n,4)}, v{vR} offset:{n*1024}"))
            if n % 2 == 1:
                self.wo_load(83 + n // 2)
        A(f"v_mul_u32_u24 v{vB0}, {OB_STRIDE}, v{vT0}")
        A(f"v_bfe_u32 v{vT2}, v0, 3, 2")
        A(f"v_mad_u32_u24 v{vOw}, v{vT2}, 56, v{vB0}")
        A(f"v_lshrrev_b32 v{vT2}, 5, v0")
        A(f"v_lshl_add_u32 v{vOw}, v{vT2}, 3, v{vOw}")
        A(f"v_add_u32 v{vOw}, s{t0}, v{vOw}")
        A(f"v_lshl_add_u32 v{vB0}, v{vT1}, 4, v{vB0}")
        A(f"v_add_u32 v{vB0}, {L_SC}, v{vB0}")
        A(f"v_mul_u32_u24 v{vT2}, {12288-224}, v{vT2}")
        A(f"v_add_u32 v{vB1}, v{vB0}, v{vT2}")
        for n in range(12):
            A.wait(tr_[n])
            rq = n % 4
            for k in range(2):
                A(f"v_pk_add_f32 {v(vOwn+4*rq+2*k,2)}, {v(vOwn+4*rq+2*k,2)}, {v(vO+4*n+2*k,2)}")
        A(f"v_mov_b32 v{vT2}, v{vOwn+12}")
        A(f"v_mov_b32 v{vT3}, v{vOwn+12}")
        self.wo_load(89)
        self.wo_load(90)
        A(f"v_permlane32_swap_b32 v{vT2}, v{vT3}")
        A(f"s_mov_b32 s{t1}, {f32(2.0**-40)}")
        A(f"v_rcp_f32 v{vT2}, v{vT3}")
        A(f"v_cmp_nle_f32 vcc, s{t1}, v{vT3}")
        A(f"s_mov_b32 s{t1}, {f32(2.0**40)}")
        A(f"v_cmp_nge_f32 s[{sEX}:{sEX+1}], s{t1}, v{vT3}")
        for k in range(8):
            A(f"v_pk_mul_f32 {v(vOwn+2*k,2)}, {v(vOwn+2*k,2)}, {v(vT2,2)} op_sel_hi:[1,0]")
        A(f"s_or_b64 vcc, vcc, s[{sEX}:{sEX+1}]")
        A(f"s_cselect_b32 s{t1}, 1, 0")
        A(f"s_add_u32 s{t2}, s{t0}, 4096")
        for k in range(8):
            A(f"v_cvt_pk_bf16_f32 v{vOwn+k}, v{vOwn+2*k}, v{vOwn+2*k+1}")
        A(f"v_mov_b32 v{vT2}, s{t2}")
        A(f"v_mov_b32 v{vT3}, s{t1}")
        for i in range(3):
            A(f"ds_write_b64 v{vOw}, {v(vOwn+2*i,2)} offset:{16*i}")
        A("s_mov_b32 exec_hi, 0")
        A(f"ds_write_b64 v{vOw}, {v(vOwn+6,2)} offset:48")
        A(f"ds_write_b32 v{vT2}, v{vT3}")
        A("s_mov_b32 exec_hi, -1")
        for f in range(91, 95):
            self.wo_load(f)
        A(f"v_and_b32 v{vT2}, 3, v0")
        A(f"v_mul_u32_u24 v{vT2}, 12288, v{vT2}")
        A(f"v_add_u32 v{vT2}, {L_SC + 4096}, v{vT2}")
        A.wait_all(vm=False)
        A("s_barrier")
        tfl = A(f"ds_read_b32 v104, v{vT2}")
        tb = []
        for k in range(14):
            g = 4 * k
            reg, rem = divmod(g, 14)
            tb.append(A(f"ds_read_b128 {v(vB+4*k,4)}, v{vB1 if k in (3, 10) else vB0} offset:{reg*12288+rem*16}"))
        for f in range(95, 98):
            self.wo_load(f)
        A.wait(tx)
        A(f"s_mov_b32 s{t1}, 0xffff0000")
        for d in range(14):
            A(f"v_and_b32 v{vAcc+2*d+1}, s{t1}, v{vXr+d}") if vAcc + 2*d + 1 != vXr + d else None
            A(f"v_lshlrev_b32 v{vAcc+2*d}, 16, v{vXr+d}")
        A.wait(tfl)
        A(f"v_cmp_ne_u32 vcc, 0, v104")
        A(f"s_cmp_lg_u32 s{sMODE}, 0")
        A(f"s_cselect_b64 vcc, 0, vcc")
        A("s_cbranch_vccnz L_redo")
        self.stamp("o ready")
        wu = list(range(self.N_WU_ATT, 28))
        for k in range(14):
            for tt in range(7):
                f = 7 * k + tt
                A.wait(tb[k], tok["wo", f])
                A(f"v_mfma_f32_16x16x32_bf16 {v(vAcc+4*tt,4)}, {r(self.wo_reg(f),4)}, {v(vB+4*k,4)}, {v(vAcc+4*tt,4)}")
                if tt == 2 and wu:
                    for x in self.wu_prep(wu[0]):
                        A(x)
                if tt == 4 and wu:
                    self.wu_load(wu.pop(0))
        assert not wu
        self.stamp("wo done")
        vSt, vSo, vSo2 = 8, 9, 10
        A(f"v_lshrrev_b32 v{vT2}, 5, v0")
        A(f"v_lshlrev_b32 v{vSt}, 4, v{vT0}")
        A(f"v_lshl_add_u32 v{vT3}, v{vT2}, 7, v{vSt}")
        A(f"s_lshl_b32 s{t1}, s{sW}, 2")
        A(f"s_add_u32 s{t1}, s{t1}, {L_ST}")
        A(f"v_add_u32 v{vT3}, s{t1}, v{vT3}")
        A(f"v_add_u32 v11, {L_ST}, v{vSt}")
        A(f"s_and_b32 s{t1}, s{sL}, 3")
        A(f"v_pk_add_f32 v[48:49], {v(vAcc,2)}, {v(vAcc+2,2)}")
        A(f"v_pk_mul_f32 v[50:51], {v(vAcc,2)}, {v(vAcc,2)}")
        A(f"v_pk_fma_f32 v[50:51], {v(vAcc+2,2)}, {v(vAcc+2,2)}, v[50:51]")
        for k in range(2, 14):
            A(f"v_pk_add_f32 v[48:49], v[48:49], {v(vAcc+2*k,2)}")
            A(f"v_pk_fma_f32 v[50:51], {v(vAcc+2*k,2)}, {v(vAcc+2*k,2)}, v[50:51]")
        A("v_add_f32 v48, v48, v49")
        A("v_add_f32 v50, v50, v51")
        A(f"s_lshl_b32 s{t1}, s{t1}, 7")
        A(f"s_mul_i32 s{sHS}, s{sRT}, {SLOT}")
        A("v_permlane32_swap_b32 v48, v50")
        A("v_add_f32 v48, v48, v50")
        A("v_mov_b32 v49, v48")
        A(f"s_add_u32 s{sHS}, s{sHS}, s{t1}")
        A(f"s_add_u32 s{sHS}, s{sHS}, s{self.sWUL}")
        A("v_permlane16_swap_b32 v48, v49")
        A("v_add_f32 v48, v48, v49")
        A(f"ds_write_b32 v{vT3}, v48")
        A(f"v_and_b32 v{vT2}, 8, v0")
        A(f"v_cmp_ne_u32 vcc, 0, v{vT2}")
        A(f"v_mov_b32 v{vT2}, {WS_HN}")
        A(f"v_mov_b32 v{vT3}, {WS_H}")
        A(f"v_cndmask_b32 v{vT2}, v{vT2}, v{vT3}, vcc")
        A(f"v_add_u32 v{vT2}, v{vT2}, v{vSt}")
        A(f"v_lshl_add_u32 v{vSo}, v{vT1}, 9, v{vT2}")
        A(f"v_lshrrev_b32 v{vT3}, 1, v{vT1}")
        A(f"v_lshl_add_u32 v{vSo2}, v{vT3}, 9, v{vT2}")
        A(f"v_and_b32 v{vT3}, 1, v{vT1}")
        A(f"v_lshl_add_u32 v{vSo2}, v{vT3}, 3, v{vSo2}")
        A.wait_all(vm=False)
        A("s_barrier")
        A("ds_read_b128 v[48:51], v11")
        A("ds_read_b128 v[52:55], v11 offset:128")
        A(f"s_add_u32 s{t1}, s{sHS}, 4096")
        A.wait_all(vm=False)
        A("v_pk_add_f32 v[48:49], v[48:49], v[50:51]")
        A("v_pk_add_f32 v[52:53], v[52:53], v[54:55]")
        A("v_add_f32 v48, v48, v49")
        A("v_add_f32 v52, v52, v53")
        A(f"v_mul_f32 v48, {f32(1.0/448)}, v48")
        A("v_mul_f32 v49, v48, v48")
        A(f"v_mov_b32 v53, {f32(1.0/448)}")
        A("v_fma_f32 v52, v52, v53, -v49")
        A("v_max_f32 v52, 0, v52")
        A(f"v_add_f32 v52, {f32(1e-5)}, v52")
        A("v_rsq_f32 v52, v52")
        A.nop(1)
        A("v_mul_f32 v48, -v48, v52")
        A("v_cndmask_b32 v52, v52, 1.0, vcc")
        A("v_cndmask_b32 v48, v48, 0, vcc")
        for i in range(4):
            nreg = 4 if i < 3 else 2
            for k in range(nreg):
                a0 = vAcc + 8 * i + 2 * k
                A(f"v_pk_fma_f32 {v(a0,2)}, {v(a0,2)}, v[52:53], v[48:49] op_sel_hi:[1,0,0]")
            for k in range(nreg):
                a0 = vAcc + 8 * i + 2 * k
                A(f"v_cvt_pk_bf16_f32 v{56+4*i+k}, v{a0}, v{a0+1}")
            if i < 2:
                ts = A(f"buffer_store_dwordx4 {v(56+4*i,4)}, v{vSo}, {s(rWS,4)}, s{sHS} offen offset:{2048*i} sc1")
            elif i == 2:
                ts = A(f"buffer_store_dwordx4 {v(56+4*i,4)}, v{vSo}, {s(rWS,4)}, s{t1} offen sc1")
            else:
                ts = A(f"buffer_store_dwordx2 {v(56+4*i,2)}, v{vSo2}, {s(rWS,4)}, s{t1} offen offset:2048 sc1")
        self.stamp("hn stored")
        for k in range(28, 35):
            for x in self.wu_prep(k):
                A(x)
            self.wu_load(k)
        A(f"s_lshl_b32 s{t0}, s{sL}, 2")
        A(f"s_add_u32 s{t0}, s{t0}, s{sW}")
        A(f"s_lshl_b32 s{t0}, s{t0}, 7")
        A(f"s_add_u32 s{t0}, s{t0}, {WS_F2}")
        A.wait(ts)
        A(f"buffer_store_dword v4, v{vONE}, {s(rWS,4)}, s{t0} offen sc1")
        self.stamp("f2 sent")

    def wd_load(self, n):
        A = self.A
        k, e = divmod(n, 2)
        win = k // 2
        if win != self.wd_win:
            A(f"s_add_u32 s{self.sWD}, s{self.sWD}, {(win - self.wd_win) * 4096}")
            self.wd_win = win
        self.tok["wd", n] = A(f"buffer_load_dwordx4 {a(4*n,4)}, v{self.vWD+e}, {s(rWS,4)}, s{self.sWD} offen offset:{(k % 2) * 2048} sc1")

    def gelu_ops(self, acc, out):
        vT = 192
        seq = []
        for i in range(0, 8, 2):
            ops = []
            for k in (0, 1):
                g, u, t = acc + i + k, acc + 8 + i + k, vT + k
                ops.append([f"v_mul_f32 v{t}, v{g}, v{g}", f"v_fma_f32 v{t}, v{t}, s{self.sC1}, v{self.vC0}",
                            f"v_mul_f32 v{t}, v{t}, v{g}", f"v_exp_f32 v{t}, v{t}", f"v_mul_f32 v{u}, v{g}, v{u}",
                            f"v_add_f32 v{t}, 1.0, v{t}", f"v_rcp_f32 v{t}, v{t}", f"v_mul_f32 v{t}, v{t}, v{u}"])
            x, y = ops
            seq += [x[0], y[0], x[1], y[1], x[2], y[2], x[3], y[3], x[4], x[5], y[5], x[6], y[6], y[4], x[7], y[7]]
            seq.append(f"v_cvt_pk_bf16_f32 v{out + i // 2}, v{vT}, v{vT+1}")
        return seq

    def p4(self):
        A = self.A
        tok = self.tok
        t0, t1, sHN, sAS, self.sWD, self.sC1, sAS2 = sT[5:12]
        vHN, vAc, vWf, vOut = 16, 128, 176, 196
        self.vC0, self.vWD = 194, 8
        vPA, vW1, vW2 = 6, 10, 11
        c0 = -2.0 * math.log2(math.e) * math.sqrt(2.0 / math.pi)
        A(f"s_lshl_b32 s{t0}, s{sG}, 2")
        A(f"s_add_u32 s{t0}, s{t0}, s{sW}")
        A(f"s_lshl_b32 s{t1}, s{t0}, 11")
        A(f"s_add_u32 s{t1}, s{t1}, {WS_F2}")
        A(f"v_and_b32 v{vPA}, 15, v0")
        A(f"v_lshl_add_u32 v{vPA}, v{vPA}, 7, s{t1}")
        A(f"s_mul_i32 s{sHN}, s{t0}, {SLOT}")
        A(f"s_add_u32 s{sHN}, s{sHN}, {WS_HN}")
        A(f"s_mul_i32 s{sAS}, s{t0}, 112")
        A(f"s_mul_i32 s{t1}, s{sJ}, 7")
        A(f"s_add_u32 s{sAS}, s{sAS}, s{t1}")
        A(f"s_lshl_b32 s{sAS}, s{sAS}, 10")
        A(f"s_add_u32 s{sAS}, s{sAS}, {WS_A}")
        A(f"s_add_u32 s{sAS2}, s{sAS}, 4096")
        A(f"s_mul_i32 s{self.sWD}, s{sCT}, 112")
        A(f"s_mul_i32 s{t1}, s{sW}, 28")
        A(f"s_add_u32 s{self.sWD}, s{self.sWD}, s{t1}")
        A(f"s_lshl_b32 s{self.sWD}, s{self.sWD}, 11")
        A(f"s_add_u32 s{self.sWD}, s{self.sWD}, {WS_WD}")
        self.wd_win = 0
        A(f"s_and_b32 s{t1}, s{sW}, 1")
        A(f"s_lshl_b32 s{t1}, s{t1}, 10")
        A(f"v_add_u32 v{self.vWD}, s{t1}, v1")
        A(f"v_xor_b32 v{self.vWD+1}, 1024, v{self.vWD}")
        A(f"v_add_u32 v{vW1}, {2*SLOT}, v1")
        A(f"v_add_u32 v{vW2}, {4*SLOT}, v1")
        A(f"v_mov_b32 v{self.vC0}, {f32(c0)}")
        A(f"s_mov_b32 s{self.sC1}, {f32(c0 * 0.044715)}")
        self.poll(vPA, 12, "x2")
        A("s_barrier")
        self.stamp("x2 seen")
        def hn_load(k):
            if k and k % 4 == 0:
                A(f"s_add_u32 s{sHN}, s{sHN}, 4096")
            tok["hn", k] = A(f"buffer_load_dwordx4 {v(vHN+4*k,4)}, v1, {s(rWS,4)}, s{sHN} offen offset:{(k%4)*1024} sc1")
        NPRE = 10
        for k in range(NPRE):
            hn_load(k)
        order = [(i, k) for k in range(28) for i in (0, 1)] + [(i, k) for i in range(2, 7) for k in range(28)]
        NB = 4
        def wread(n):
            i, k = order[n]
            slot = i if i < 5 else i - 5
            base, off = {0: (1, 0), 1: (1, SLOT), 2: (vW1, 0), 3: (vW1, SLOT), 4: (vW2, 0)}[slot]
            tok["wf", n] = A(f"ds_read_b128 {v(vWf+4*(n%NB),4)}, v{base} offset:{off + k*1024}")
        for n in range(NB - 1):
            wread(n)
        gq = []
        vm_side = []
        wd_next = [0]
        def a_store(i):
            sb, off = (sAS, i * 1024) if i < 4 else (sAS2, (i - 4) * 1024)
            tok["as", i] = A(f"buffer_store_dwordx4 {v(vOut+4*(i&1),4)}, v1, {s(rWS,4)}, s{sb} offen offset:{off} sc1")
        cost = lambda o: 8 if o.startswith(("v_exp", "v_rcp")) else 4
        A.wait(tok["wf", 0], tok["hn", 0])
        wu_left = list(range(35, 49))
        for n, (i, k) in enumerate(order):
            acc = vAc + 16 * (i % 3)
            A(f"v_mfma_f32_32x32x16_bf16 {v(acc,16)}, {v(vWf+4*(n%NB),4)}, {v(vHN+4*k,4)}, {v(acc,16) if k else '0'}")
            budget = 20
            if n + 1 < len(order):
                pre = [tok["wf", n + 1]]
                if n < 56:
                    pre.append(tok["hn", order[n + 1][1]])
                A.wait(*pre)
            nr = n + NB - 1
            if nr < len(order):
                if order[nr] == (5, 0):
                    A.wait(tok["wu", 48])
                    A("s_barrier")
                wread(nr)
            if n == 56:
                A("s_barrier")
            if n < 56:
                if n % 2 == 0 and n // 2 + NPRE < 28:
                    hn_load(n // 2 + NPRE)
                elif n >= 38 and n % 2 == 0:
                    self.wd_load(wd_next[0]); wd_next[0] += 1
            elif wu_left and n % 2 == 1:
                kk = wu_left.pop(0)
                for x in self.wu_prep(kk):
                    A(x)
                    budget -= 4
                self.wu_load(kk)
                budget -= 4
            elif not wu_left and n % 2 == 1 and wd_next[0] < 56:
                self.wd_load(wd_next[0]); wd_next[0] += 1
                budget -= 6
            if k == 27:
                for o in self.gelu_ops(acc, vOut + 4 * (i & 1)):
                    gq.append((n + 4, o))
                gq.append((n + 4, lambda i=i: a_store(i)))
            while gq and gq[0][0] <= n:
                o = gq[0][1]
                c = cost(o) if isinstance(o, str) else 8
                if c > budget:
                    break
                budget -= c
                gq.pop(0)
                A(o) if isinstance(o, str) else o()
            if k == 27 and i >= 2:
                nxt = vAc + 16 * ((i + 1) % 3)
                assert not any(isinstance(o, str) and f"v{nxt+7}," in o + "," for _, o in gq), "accumulator reused before its activation is done"
        assert wd_next[0] == 56, wd_next
        self.stamp("up mfma")
        A.nop(12)
        for _, o in gq:
            A(o) if isinstance(o, str) else o()
        A(f"s_lshl_b32 s{t0}, s{sL}, 2")
        A(f"s_add_u32 s{t0}, s{t0}, s{sW}")
        A(f"s_lshl_b32 s{t0}, s{t0}, 8")
        A(f"s_add_u32 s{t0}, s{t0}, {WS_F3}")
        A.wait(tok["as", 6])
        A(f"buffer_store_dword v4, v{vONE}, {s(rWS,4)}, s{t0} offen sc1")
        self.stamp("f3 sent")

    def p5(self):
        A = self.A
        tok = self.tok
        t0, t1, t2, sA0 = sT[5:9]
        vAcc, vRing, NRING = 16, 80, 24
        vPA, vA0, vA1, vRd, vHo, vOo = 6, 8, 9, 10, 11, 12
        vWr = 13
        vH = 176
        A(f"s_cmp_ge_u32 s{sJ}, 14")
        A("s_cbranch_scc1 L_idle")
        A(f"s_lshl_b32 s{t0}, s{sG}, 4")
        A(f"s_lshl_b32 s{t1}, s{sW}, 2")
        A(f"s_add_u32 s{t0}, s{t0}, s{t1}")
        A(f"s_lshl_b32 s{t0}, s{t0}, 1")
        A(f"s_add_u32 s{t0}, s{t0}, s{sRH}")
        A(f"s_lshl_b32 s{t0}, s{t0}, 9")
        A(f"s_add_u32 s{t0}, s{t0}, {WS_F3}")
        A(f"v_bfe_u32 v{vPA}, v0, 1, 2")
        A(f"v_lshl_add_u32 v{vPA}, v{vPA}, 10, s{t0}")
        A(f"v_and_b32 v{vA0}, 1, v0")
        A(f"v_lshl_add_u32 v{vPA}, v{vA0}, 8, v{vPA}")
        A(f"s_lshl_b32 s{t0}, s{sG}, 1")
        A(f"s_add_u32 s{t0}, s{t0}, s{sRH}")
        A(f"s_lshl_b32 s{t0}, s{t0}, 1")
        A(f"s_mul_i32 s{sA0}, s{t0}, 112")
        A(f"s_mul_i32 s{t1}, s{sW}, 28")
        A(f"s_add_u32 s{sA0}, s{sA0}, s{t1}")
        A(f"s_lshl_b32 s{sA0}, s{sA0}, 10")
        A(f"s_add_u32 s{sA0}, s{sA0}, {WS_A}")
        A(f"s_lshr_b32 s{t1}, s{sW}, 1")
        A(f"s_mul_i32 s{t2}, s{t1}, {112*1024}")
        A(f"v_add_u32 v{vA0}, s{t2}, v1")
        A(f"s_sub_u32 s{t2}, {112*1024}, s{t2}")
        A(f"v_add_u32 v{vA1}, s{t2}, v1")
        A(f"s_add_u32 s{t0}, s{t0}, s{t1}")
        A(f"s_and_b32 s{t1}, s{sW}, 1")
        A(f"s_lshl_b32 s{t2}, s{sCT}, 1")
        A(f"s_add_u32 s{t1}, s{t1}, s{t2}")
        A(f"v_and_b32 v{vOo}, 31, v0")
        A(f"v_lshrrev_b32 v{vRd}, 5, v0")
        A(f"v_lshlrev_b32 v{vHo}, 4, v{vOo}")
        A(f"v_lshl_add_u32 v{vHo}, v{vRd}, 10, v{vHo}")
        A(f"v_mul_u32_u24 v{vOo}, 896, v{vOo}")
        A(f"v_lshl_add_u32 v{vOo}, v{vRd}, 5, v{vOo}")
        A(f"s_mul_i32 s{t0}, s{t0}, {SLOT}")
        A(f"s_lshl_b32 s{t2}, s{t1}, 6")
        A(f"s_add_u32 s{t2}, s{t2}, s{t0}")
        A(f"v_add_u32 v{vOo}, s{t2}, v{vOo}")
        A(f"s_lshl_b32 s{t2}, s{t1}, 11")
        A(f"s_add_u32 s{t2}, s{t2}, s{t0}")
        A(f"s_add_u32 s{t2}, s{t2}, {WS_H}")
        A(f"v_add_u32 v{vHo}, s{t2}, v{vHo}")
        for n in range(1, 4):
            A(f"s_xor_b32 s{t0}, s{sW}, {n}")
            A(f"s_mul_i32 s{t0}, s{t0}, 12288")
            A(f"s_add_u32 s{t0}, s{t0}, {L_SC + (n-1)*4096}")
            A(f"v_add_u32 v{vWr+n-1}, s{t0}, v1")
        A(f"s_mul_i32 s{t0}, s{sW}, 12288")
        A(f"s_add_u32 s{t0}, s{t0}, {L_SC}")
        A(f"v_add_u32 v{vRd}, s{t0}, v1")
        self.poll(vPA, 14 + 162, "x3")
        self.stamp("x3 seen")
        win = [0]
        def a_load(n):
            k, rho = divmod(n, 2)
            if k // 4 != win[0]:
                A(f"s_add_u32 s{sA0}, s{sA0}, {(k // 4 - win[0]) * 4096}")
                win[0] = k // 4
            tok["a", n] = A(f"buffer_load_dwordx4 {v(vRing+4*(n%NRING),4)}, v{vA1 if rho else vA0}, {s(rWS,4)}, s{sA0} offen offset:{(k%4)*1024} sc1")
        NPRE = 12
        for n in range(NPRE):
            a_load(n)
        nl = NPRE
        def mf(k, e, rho):
            d = vAcc + 16 * (2 * rho + e)
            A(f"v_mfma_f32_32x32x16_bf16 {v(d,16)}, {a(8*k+4*e,4)}, {v(vRing+4*((2*k+rho)%NRING),4)}, {v(d,16) if k else '0'}")
        KT = 4
        for k in range(28 - KT):
            A.wait(tok["a", 2 * k + 1])
            for j, (rho, e) in enumerate(((0, 0), (0, 1), (1, 0), (1, 1))):
                mf(k, e, rho)
                if j in (0, 2) and nl < 56:
                    a_load(nl); nl += 1
                if j == 1 and k == 22:
                    A(f"buffer_load_dwordx4 {v(vH,4)}, v{vHo}, {s(rWS,4)}, 0 offen sc1")
                    th = A(f"buffer_load_dwordx4 {v(vH+4,4)}, v{vHo}, {s(rWS,4)}, 0 offen offset:512 sc1")
        assert nl == 56
        A.wait(tok["a", 55])
        def pw(n, rq):
            A(f"ds_write_b128 v{vWr+n-1}, {v(vAcc+16*n+4*rq,4)} offset:{rq*1024}")
        for n in (3, 2, 1, 0):
            for x, k in enumerate(range(28 - KT, 28)):
                mf(k, n & 1, n >> 1)
                if n <= 1:
                    if x == 0:
                        A.nop(7 if n == 1 else 3)
                    pw(n + 2, x)
        A.nop(4)
        for rq in range(4):
            pw(1, rq)
        self.stamp("down mfma")
        A.wait(th)
        A(f"s_mov_b32 s{t0}, 0xffff0000")
        for d in range(8):
            A(f"v_lshlrev_b32 v{vH+8+2*d}, 16, v{vH+d}")
            A(f"v_and_b32 v{vH+8+2*d+1}, s{t0}, v{vH+d}")
        for k in range(8):
            A(f"v_pk_add_f32 {v(vAcc+2*k,2)}, {v(vAcc+2*k,2)}, {v(vH+8+2*k,2)}")
        A.wait_all(vm=False)
        A("s_barrier")
        tr_ = []
        for half in range(2):
            for n in range(3):
                for rq in (2 * half, 2 * half + 1):
                    tr_.append((rq, vRing + 16 * n + 4 * rq, A(f"ds_read_b128 {v(vRing+16*n+4*rq,4)}, v{vRd} offset:{n*4096+rq*1024}")))
        for half in range(2):
            for rq, reg, tk in tr_[6 * half: 6 * half + 6]:
                A.wait(tk)
                for k in range(2):
                    A(f"v_pk_add_f32 {v(vAcc+4*rq+2*k,2)}, {v(vAcc+4*rq+2*k,2)}, {v(reg+2*k,2)}")
            for k in range(4):
                A(f"v_cvt_pk_bf16_f32 v{vH+4*half+k}, v{vAcc+8*half+2*k}, v{vAcc+8*half+2*k+1}")
            A(f"buffer_store_dwordx4 {v(vH+4*half,4)}, v{vOo}, {s(rOUT,4)}, 0 offen offset:{16*half}")
        self.stamp("out stored")

    def tail(self):
        A = self.A
        if self.stop in ("setup", "p1"):
            return
        A.label("L_f1b_spin")
        self.poll(7, 11, "f1b")
        A("s_branch L_f1b_ok")
        A.label("L_maxpass")
        self.maxpass()
        A("s_branch L_attn_main")
        if self.stop == "p2":
            return
        A.label("L_redo")
        A(f"s_mov_b32 s{sMODE}, 1")
        A.wait_all()
        A("s_barrier")
        A("s_branch L_attn")
        if self.stop in ("p3", "p4"):
            return
        A.label("L_idle")
        t0 = sT[5]
        A(f"s_cmp_lg_u32 s{sL}, 15")
        A("s_cbranch_scc1 L_idle_end")
        A(f"s_lshl_b32 s{t0}, s{sW}, 13")
        A(f"s_add_u32 s{t0}, s{t0}, {WS_F1}")
        A(f"v_lshl_add_u32 v6, v0, 7, s{t0}")
        self.poll(6, 8, "all")
        A("s_barrier")
        A(f"s_cmp_lg_u32 s{sW}, 0")
        A("s_cbranch_scc1 L_idle_end")
        A(f"buffer_store_dword v4, v{vONE}, {s(rWS,4)}, 0 offen sc1")
        A.label("L_idle_end")
        self.end()

    def maxpass(self):
        A = self.A
        vQ, vS = self.vQ, self.vS
        t0, t1 = sT[5:7]
        vM, vK = 48, 56
        A.wait_all()
        A("s_barrier")
        for n in range(4):
            A(f"v_mov_b32 v{vM+n}, 0xff800000")
        A(f"s_lshl_b32 s{t0}, s{sW}, 16")
        A(f"s_add_u32 s{t0}, s{t0}, {WS_KV}")
        A(f"s_mov_b32 s{t1}, 0")
        A.label("L_mp_loop")
        A(f"buffer_load_dwordx4 {v(vK,4)}, v1, {s(rWS,4)}, s{t0} offen sc1")
        A(f"buffer_load_dwordx4 {v(vK+4,4)}, v1, {s(rWS,4)}, s{t0} offen offset:1024 sc1")
        A.wait_all(lg=False)
        for n in range(4):
            A(f"v_mfma_f32_32x32x16_bf16 {v(vS,16)}, {v(vK,4)}, {v(vQ+8*n,4)}, 0")
            A(f"v_mfma_f32_32x32x16_bf16 {v(vS,16)}, {v(vK+4,4)}, {v(vQ+8*n+4,4)}, {v(vS,16)}")
            A.nop(12)
            for k in range(8):
                A(f"v_max3_f32 v{vM+n}, v{vM+n}, v{vS+2*k}, v{vS+2*k+1}")
        A(f"s_add_u32 s{t0}, s{t0}, 4096")
        A(f"s_add_u32 s{t1}, s{t1}, 1")
        A(f"s_cmp_lt_u32 s{t1}, 16")
        A("s_cbranch_scc1 L_mp_loop")
        A("v_lshlrev_b32 v64, 2, v0")
        for n in range(4):
            A(f"s_add_u32 s{t0}, s{sW}, {n+1}")
            A(f"s_and_b32 s{t0}, s{t0}, 3")
            A(f"s_lshl_b32 s{t0}, s{t0}, 10")
            A(f"s_add_u32 s{t0}, s{t0}, {L_SC}")
            A(f"v_and_b32 v65, 31, v0")
            A(f"v_lshl_add_u32 v{68+n}, v65, 2, s{t0}")
            A(f"s_lshl_b32 s{t1}, s{sW}, 8")
            A(f"s_add_u32 s{t0}, s{t0}, s{t1}")
            A(f"v_add_u32 v65, s{t0}, v64")
            A(f"ds_write_b32 v65, v{vM+n}")
        A.wait_all(vm=False)
        A("s_barrier")
        for n in range(4):
            for k in range(8):
                A(f"ds_read_b32 v{72+k}, v{68+n} offset:{128*k}")
            A.wait_all(vm=False)
            A("v_max3_f32 v72, v72, v73, v74")
            A("v_max3_f32 v72, v72, v75, v76")
            A("v_max3_f32 v72, v72, v77, v78")
            A("v_max_f32 v72, v72, v79")
            A("v_sub_f32 v72, 0, v72")
            A("v_and_b32 v73, 0xffff0000, v72")
            A("v_sub_f32 v72, v72, v73")
            A("v_and_b32 v74, 0xffff0000, v72")
            A("v_sub_f32 v72, v72, v74")
            A("v_lshrrev_b32 v73, 16, v73")
            A("v_or_b32 v73, v73, v74")
            A("v_lshrrev_b32 v72, 16, v72")
            A("s_mov_b32 exec_lo, 0")
            A(f"v_mov_b32 v{vQ+8*n+6}, v73")
            A(f"v_mov_b32 v{vQ+8*n+7}, v72")
            A("s_mov_b32 exec_lo, -1")
        A("s_barrier")

    def build(self):
        A = self.A
        head = open("sequential_preLN__grouped_kv_mqa__geglu_ffn__prompt.s.ref").read().splitlines()
        for line in head:
            if line.startswith("; Override"):
                break
            A.raw(line)
        A.raw(f"; @launch grid=(256,1,1) block=(256,1,1) lds={LDS_BYTES}")
        A.raw('.amdgcn_target "amdgcn-amd-amdhsa--gfx950"')
        A.raw(".text")
        A.raw(f".globl {KNAME}")
        A.raw(".p2align 8")
        A.raw(f".type {KNAME},@function")
        A.label(KNAME)
        phases = [("setup", self.setup), ("p1", self.p1)]
        for nm in ("p2", "p3", "p4", "p5"):
            if hasattr(self, nm):
                phases.append((nm, getattr(self, nm)))
        for nm, fn in phases:
            A.comment(f"================ {nm} ================")
            fn()
            if self.stop == nm:
                break
        self.end()
        if hasattr(self, "tail"):
            self.tail()
        A.label("L_exit")
        A("s_endpgm")
        A.raw('.section .rodata,"a"')
        A.raw(".p2align 6")
        A.raw(f".amdhsa_kernel {KNAME}")
        for d in ("next_free_vgpr 512", "next_free_sgpr 102", "accum_offset 256", "group_segment_fixed_size 0",
                  "kernarg_size 96", "user_sgpr_count 2", "user_sgpr_kernarg_segment_ptr 1", "system_sgpr_workgroup_id_x 1"):
            A.raw("  .amdhsa_" + d)
        A.raw(".end_amdhsa_kernel")
        return A.text()


if __name__ == "__main__":
    import argparse
    ap = argparse.ArgumentParser()
    ap.add_argument("-o", default="k.s")
    ap.add_argument("--stop")
    ap.add_argument("--stamps", action="store_true")
    ap.add_argument("--dbg", type=int)
    args = ap.parse_args()
    txt = Gen(args.stop, args.stamps, args.dbg).build()
    open(args.o, "w").write(txt)
    lint(txt)
```

```python
import sys, math, struct
from asmlib import *

KNAME = "sequential_preLN__grouped_kv_mqa__geglu_ffn__prompt_kernel"

WS_REF = 0
WS_F1 = 0x1000
WS_F1B = 0x9000
WS_F2 = 0x20000
WS_F3 = 0x40000
WS_KV = 0x80000
WS_WO = 0xC0000
WS_STAMP = 0x140000
WS_Q = 0x200000
WS_HN = 0x400000
WS_H = 0x600000
WS_WD = 0x800000
WS_WU = 0xA00000
WS_A = 0xE00000
WS_END = 0x1500000

SLOT = 28672
L_SC = 4 * SLOT
L_XN = L_SC
L_JOB = L_SC + SLOT
L_Q = L_SC
L_ST = 160768
LDS_BYTES = 163840
OB_STRIDE = 288

def f32(x):
    return "0x%08x" % struct.unpack("<I", struct.pack("<f", x))[0]

sB = 2
sPX, sPWQ, sPWK, sPWV, sPWO, sPWS, sPWG, sPWU, sPWD, sPOUT = 4, 6, 8, 10, 12, 14, 16, 18, 20, 22
rWS, rX, rW, rJA, rJG, rJU, rOUT, rSA, rSB = 24, 28, 32, 36, 40, 44, 48, 52, 56
sL, sW, sRT, sC, sG, sJ, sTAG, sXCC, sREF, sMODE = 60, 61, 62, 63, 64, 65, 66, 67, 68, 69
sCT, sRH = 70, 71
sT = list(range(72, 88)) + list(range(94, 102))
sSTAMP = 88
sSPIN = 91
sEX = 92
vONE = 2
SPIN_MAX = 400000


def srd(A, r, ptr, size):
    A(f"s_mov_b32 s{r}, s{ptr}")
    A(f"s_mov_b32 s{r+1}, s{ptr+1}")
    A(f"s_mov_b32 s{r+2}, {size}")
    A(f"s_mov_b32 s{r+3}, 0x00020000")


class Gen:
    def __init__(self, stop=None, stamps=False, dbg=None, amp=None):
        self.dbg = dbg
        self.amp = amp
        self.A = Asm()
        self.stop = stop
        self.stamps = stamps
        self.nstamp = 0
        self.uid = 0

    def lab(self, base):
        self.uid += 1
        return f"L_{base}_{self.uid}"

    def stamp(self, name):
        if not self.stamps:
            return
        A = self.A
        A.raw(f"    s_memrealtime s[{sSTAMP}:{sSTAMP+1}]")
        A.raw(f"    s_memtime s[{sEX}:{sEX+1}]")
        A.raw("    s_waitcnt lgkmcnt(0)")
        A.lg_done = A.lg
        A(f"v_writelane_b32 v255, s{sSTAMP}, {self.nstamp}")
        A(f"v_writelane_b32 v255, s{sEX}, {self.nstamp + 32}")
        self.nstamp += 1

    def stamp_flush(self):
        if not self.stamps:
            return
        A = self.A
        A(f"s_lshl_b32 s{sT[0]}, s{sL}, 2")
        A(f"s_add_u32 s{sT[0]}, s{sT[0]}, s{sW}")
        A(f"s_lshl_b32 s{sT[0]}, s{sT[0]}, 8")
        A(f"s_add_u32 s{sT[0]}, s{sT[0]}, {WS_STAMP}")
        A("v_mbcnt_lo_u32_b32 v254, -1, 0")
        A("v_mbcnt_hi_u32_b32 v254, -1, v254")
        A("v_lshlrev_b32 v254, 2, v254")
        A(f"buffer_store_dword v255, v254, {s(rWS,4)}, s{sT[0]} offen")
        if self.dbg is not None:
            l = self.lab("nodbg")
            A(f"s_lshl_b32 s{sT[0]}, s{sL}, 2")
            A(f"s_add_u32 s{sT[0]}, s{sT[0]}, s{sW}")
            A(f"s_cmp_lg_u32 s{sT[0]}, {self.dbg}")
            A(f"s_cbranch_scc1 {l}")
            A(f"s_load_dwordx2 s[{rJA}:{rJA+1}], s[0:1], 80")
            A(f"s_mov_b32 s{rJA+2}, 64")
            A(f"s_mov_b32 s{rJA+3}, 0x00020000")
            A(f"v_readlane_b32 s{sT[0]}, v255, 0")
            A("v_lshrrev_b32 v254, 1, v254")
            A.wait_all()
            A(f"v_subrev_u32 v255, s{sT[0]}, v255")
            A(f"buffer_store_short v255, v254, {s(rJA,4)}, 0 offen")
            if self.amp:
                i, j = self.amp
                l2 = self.lab("amp")
                A(f"v_readlane_b32 s{sT[0]}, v255, {i}")
                A(f"v_readlane_b32 s{sT[1]}, v255, {j}")
                A.raw(f"    s_memrealtime s[{sSTAMP}:{sSTAMP+1}]")
                A(f"s_sub_u32 s{sT[0]}, s{sT[1]}, s{sT[0]}")
                A(f"s_min_u32 s{sT[0]}, s{sT[0]}, 20000")
                A(f"s_lshl_b32 s{sT[0]}, s{sT[0]}, 2")
                A.raw("    s_waitcnt lgkmcnt(0)")
                A(f"s_add_u32 s{sT[0]}, s{sT[0]}, s{sSTAMP}")
                A.label(l2)
                A.raw(f"    s_memrealtime s[{sSTAMP}:{sSTAMP+1}]")
                A.raw("    s_waitcnt lgkmcnt(0)")
                A(f"s_sub_u32 s{sT[1]}, s{sSTAMP}, s{sT[0]}")
                A(f"s_cmp_lt_i32 s{sT[1]}, 0")
                A(f"s_cbranch_scc1 {l2}")
            A.label(l)

    def end(self):
        self.stamp_flush()
        self.A("s_endpgm")

    def poll(self, vaddr, vtmp, name, width=1):
        A = self.A
        l0, l1 = self.lab(name), self.lab(name + "_ok")
        A(f"s_mov_b32 s{sSPIN}, 0")
        A.label(l0)
        if width == 1:
            A(f"buffer_load_dword v{vtmp}, v{vaddr}, {s(rWS,4)}, 0 offen sc1")
        else:
            A(f"buffer_load_dwordx2 {v(vtmp,2)}, v{vaddr}, {s(rWS,4)}, 0 offen sc1")
        A.wait_all(lg=False)
        A(f"v_cmp_ne_u32 vcc, s{sTAG}, v{vtmp}")
        A(f"s_add_u32 s{sSPIN}, s{sSPIN}, 1")
        A(f"s_cbranch_vccz {l1}")
        A(f"s_cmp_lt_u32 s{sSPIN}, {SPIN_MAX}")
        A(f"s_cbranch_scc1 {l0}")
        A.label(l1)

    def setup(self):
        A = self.A
        A(f"s_cmp_ge_u32 s{sB}, 256")
        A("s_cbranch_scc1 L_exit")
        if self.stamps:
            A("v_mov_b32 v255, 0")
        self.stamp("entry")
        A("s_load_dwordx8 s[4:11], s[0:1], 0")
        A("s_load_dwordx2 s[12:13], s[0:1], 32")
        A("s_load_dwordx2 s[14:15], s[0:1], 88")
        A("s_load_dwordx8 s[16:23], s[0:1], 48")
        A("v_lshrrev_b32 v1, 6, v0")
        A("v_and_b32 v0, 63, v0")
        A(f"v_readfirstlane_b32 s{sW}, v1")
        A(f"s_and_b32 s{sL}, s{sB}, 7")
        A(f"s_lshl_b32 s{sL}, s{sL}, 5")
        A(f"s_lshr_b32 s{sT[0]}, s{sB}, 3")
        A(f"s_add_u32 s{sL}, s{sL}, s{sT[0]}")
        A(f"s_lshr_b32 s{sRT}, s{sL}, 2")
        A(f"s_and_b32 s{sC}, s{sL}, 3")
        A(f"s_lshr_b32 s{sG}, s{sL}, 4")
        A(f"s_and_b32 s{sJ}, s{sL}, 15")
        A(f"s_getreg_b32 s{sXCC}, hwreg(HW_REG_XCC_ID, 0, 4)")
        A(f"s_cmp_ge_u32 s{sJ}, 7")
        A(f"s_cselect_b32 s{sRH}, 1, 0")
        A(f"s_mul_i32 s{sT[0]}, s{sRH}, 7")
        A(f"s_sub_u32 s{sCT}, s{sJ}, s{sT[0]}")
        A(f"s_min_u32 s{sCT}, s{sCT}, 6")
        A(f"s_mov_b32 s{sMODE}, 0")

    def p1(self):
        A = self.A
        (rot, xb, ct1, ci, jid, jaS, jaS2, jaE, jaE2, jaD, jobl, wB, wN, wC, lB, lC, wcur,
         jbD, jbS, jbS2, t0, t1, t2) = sT[:23]
        vL, vL16 = 0, 1
        vXo, vWo, vJAo, vJBo = 2, 3, 4, 5
        vX = 8
        vJB = 36
        vJAt, vWt, vRR, vCC, vH, vMH, vK8, vT0, vXw, vL32, vT1, vT2 = range(52, 64)
        vF = 64
        vTmp = 120
        vXr = 124
        vJA1, vJA2, vJA3, vJR = 200, 201, 202, 204
        A(f"v_lshlrev_b32 v{vL16}, 4, v{vL}")
        A(f"v_lshrrev_b32 v6, 3, v{vL}")
        A(f"v_and_b32 v7, 7, v{vL}")
        A(f"v_mul_u32_u24 v{vXo}, 896, v6")
        A(f"v_lshl_add_u32 v{vXo}, v7, 4, v{vXo}")
        A(f"s_and_b32 s{rot}, s{sRT}, 7")
        A(f"s_cmp_eq_u32 s{rot}, 7")
        A(f"s_cselect_b32 s{rot}, 0, s{rot}")
        A(f"s_lshl_b32 s{xb}, s{sRT}, 2")
        A(f"s_add_u32 s{xb}, s{xb}, s{sW}")
        A(f"s_mul_i32 s{xb}, s{xb}, {8*896}")
        A(f"s_lshl_b32 s{ct1}, s{sC}, 2")
        A(f"s_add_u32 s{ct1}, s{ct1}, s{sW}")
        A(f"v_bfe_u32 v{vRR}, v{vL}, 2, 2")
        A(f"v_and_b32 v{vCC}, 3, v{vL}")
        A(f"v_lshrrev_b32 v{vH}, 5, v{vL}")
        A(f"v_bfe_u32 v{vMH}, v{vL}, 4, 1")
        A(f"v_lshl_add_u32 v{vK8}, v{vH}, 3, v{vRR}")
        lkv, lj2 = self.lab("w_kv"), self.lab("w_join")
        A(f"s_and_b32 s{t0}, s{sW}, 1")
        A(f"s_cmp_ge_u32 s{ct1}, 14")
        A(f"s_cbranch_scc1 {lkv}")
        A(f"s_lshr_b32 s{wB}, s{ct1}, 1")
        A(f"s_lshl_b32 s{wB}, s{wB}, 7")
        A(f"s_mul_i32 s{wN}, s{t0}, {32*896}")
        A(f"s_add_u32 s{wB}, s{wB}, s{wN}")
        A(f"s_mov_b32 s{wN}, {8*896-1024}")
        A(f"s_mov_b32 s{wC}, {64*896}")
        A(f"s_lshr_b32 s{lB}, s{sW}, 1")
        A(f"s_mul_i32 s{lB}, s{lB}, {2*SLOT}")
        A(f"v_lshlrev_b32 v{vWt}, 7, v{vK8}")
        A(f"v_lshrrev_b32 v{vT0}, 1, v{vRR}")
        A(f"v_xor_b32 v{vT0}, s{t0}, v{vT0}")
        A(f"v_lshl_add_u32 v{vWt}, v{vT0}, 6, v{vWt}")
        A(f"v_add_u32 v{vWt}, s{lB}, v{vWt}")
        A(f"s_lshl_b32 s{lC}, s{t0}, 12")
        A(f"s_add_u32 s{lB}, s{lB}, s{lC}")
        A(f"s_mov_b32 s{lC}, 8192")
        A(f"v_lshlrev_b32 v{vT0}, 6, v{vMH}")
        A(f"v_xor_b32 v{vWo}, v{vXo}, v{vT0}")
        A(f"s_branch {lj2}")
        A.label(lkv)
        A(f"s_mov_b32 s{wB}, 0")
        A(f"s_mov_b32 s{wN}, 0")
        A(f"s_mov_b32 s{wC}, {64*56}")
        A(f"s_mul_i32 s{lB}, s{sW}, {SLOT}")
        A(f"s_mov_b32 s{lC}, 4096")
        A(f"v_mul_u32_u24 v{vWt}, 56, v{vK8}")
        A(f"v_add_u32 v{vWt}, s{lB}, v{vWt}")
        A(f"v_mov_b32 v{vWo}, v{vL16}")
        A.label(lj2)
        A(f"v_lshl_add_u32 v{vWt}, v{vMH}, 5, v{vWt}")
        A(f"v_lshl_add_u32 v{vWt}, v{vCC}, 3, v{vWt}")
        A(f"s_mov_b32 s{rX+2}, {2048*896}")
        A(f"s_mov_b32 s{rX+3}, 0x00020000")
        A(f"s_mov_b32 s{rW+3}, 0x00020000")
        A(f"s_mov_b32 s{ci}, s{rot}")
        A.wait_all(vm=False)
        self.stamp("kernarg")
        A(f"s_mov_b32 s{rX}, s{sPX}")
        A(f"s_mov_b32 s{rX+1}, s{sPX+1}")
        tx = []
        for i in range(7):
            A(f"s_lshl_b32 s{t0}, s{ci}, 7")
            A(f"s_add_u32 s{t0}, s{t0}, s{xb}")
            tx.append(A(f"buffer_load_dwordx4 {v(vX+4*i,4)}, v{vXo}, {s(rX,4)}, s{t0} offen"))
            if i < 6:
                A(f"s_add_u32 s{ci}, s{ci}, 1")
                A(f"s_cmp_eq_u32 s{ci}, 7")
                A(f"s_cselect_b32 s{ci}, 0, s{ci}")
        A(f"s_cmp_eq_u32 s{ct1}, 14")
        A(f"s_cselect_b32 s{rW}, s{sPWK}, s{sPWV}")
        A(f"s_cselect_b32 s{rW+1}, s{sPWK+1}, s{sPWV+1}")
        A(f"s_cmp_lt_u32 s{ct1}, 14")
        A(f"s_cselect_b32 s{rW}, s{sPWQ}, s{rW}")
        A(f"s_cselect_b32 s{rW+1}, s{sPWQ+1}, s{rW+1}")
        A(f"s_mov_b32 s{t0}, {448*56}")
        A(f"s_cselect_b32 s{rW+2}, {448*896}, s{t0}")
        A(f"s_mov_b32 s{ci}, s{rot}")
        tok = {}
        side = []
        def wload(i, n):
            def f():
                if n == 0:
                    if i > 0:
                        A(f"s_add_u32 s{lB}, s{lB}, s{lC}")
                        A(f"s_add_u32 s{ci}, s{ci}, 1")
                        A(f"s_cmp_eq_u32 s{ci}, 7")
                        A(f"s_cselect_b32 s{ci}, 0, s{ci}")
                    A(f"s_mul_i32 s{wcur}, s{ci}, s{wC}")
                    A(f"s_mov_b32 m0, s{lB}")
                    A(f"s_add_u32 s{wcur}, s{wcur}, s{wB}")
                else:
                    A(f"s_add_u32 s{wcur}, s{wcur}, s{wN}")
                tok["w", i] = A(f"buffer_load_dwordx4 v{vWo}, {s(rW,4)}, s{wcur} offen offset:{n*1024} lds")
            return f
        for i in range(7):
            for n in range(4):
                side.append(wload(i, n))
        def ja_load():
            A(f"s_mov_b32 m0, s{jobl}")
            A.nop(1)
            A(f"buffer_load_dwordx4 v{vJAo}, {s(rJA,4)}, s{jaS} offen lds")
            tok["ja"] = A(f"buffer_load_dwordx4 v{vJAo}, {s(rJA,4)}, s{jaS2} offen offset:1024 lds")
        def ja_read():
            A.wait(tok["ja"])
            A(f"ds_read_b64_tr_b16 {v(vJR,2)}, v{vJAt}")
            A(f"ds_read_b64_tr_b16 {v(vJR+2,2)}, v{vJA1}")
            A(f"ds_read_b64_tr_b16 {v(vJR+4,2)}, v{vJA2}")
            A(f"ds_read_b64_tr_b16 {v(vJR+6,2)}, v{vJA3}")
        def ja_store():
            A(f"buffer_store_dwordx4 {v(vJR,4)}, v{vL16}, {s(rSA,4)}, s{jaD} offen sc1")
            A(f"buffer_store_dwordx4 {v(vJR+4,4)}, v{vL16}, {s(rSA,4)}, s{jaD} offen offset:1024 sc1")
        def pop(n=1):
            for _ in range(n):
                if side:
                    side.pop(0)()
        pop(4)
        A(f"s_load_dword s{sREF}, s[{sPWS}:{sPWS+1}], {WS_REF}")
        srd(A, rWS, sPWS, WS_END)
        pop(4)
        A(f"s_lshl_b32 s{jid}, s{sL}, 2")
        A(f"s_add_u32 s{jid}, s{jid}, s{sW}")
        lwo, ljoin = self.lab("ja_wo"), self.lab("ja_join")
        A(f"s_mov_b32 s{rJA+3}, 0x00020000")
        A(f"s_cmp_ge_u32 s{jid}, 784")
        A(f"s_cbranch_scc1 {lwo}")
        A(f"s_mov_b32 s{rJA}, s{sPWD}")
        A(f"s_mov_b32 s{rJA+1}, s{sPWD+1}")
        A(f"s_mov_b32 s{rJA+2}, 0")
        A(f"s_mul_i32 s{t0}, s{sL}, 2341")
        A(f"s_lshr_b32 s{t0}, s{t0}, 16")
        A(f"s_mul_i32 s{t1}, s{t0}, 112")
        A(f"s_sub_u32 s{t1}, s{jid}, s{t1}")
        A(f"s_mul_i32 s{jaS}, s{t1}, {16*896}")
        A(f"s_lshl_b32 s{t0}, s{t0}, 7")
        A(f"s_add_u32 s{jaS}, s{jaS}, s{t0}")
        A(f"s_add_u32 s{jaS2}, s{jaS}, {8*896-1024}")
        A(f"s_mov_b32 s{jaE}, 512")
        A(f"s_mov_b32 s{jaE2}, 64")
        A(f"s_lshl_b32 s{jaD}, s{jid}, 11")
        A(f"s_add_u32 s{jaD}, s{jaD}, {WS_WD}")
        A(f"v_mov_b32 v{vJAo}, v{vXo}")
        A(f"v_lshlrev_b32 v{vJAt}, 7, v{vK8}")
        A(f"v_and_b32 v{vT0}, 1, v{vCC}")
        A(f"v_lshl_add_u32 v{vJAt}, v{vT0}, 5, v{vJAt}")
        A(f"v_lshl_add_u32 v{vJAt}, v{vMH}, 4, v{vJAt}")
        A(f"v_lshrrev_b32 v{vT0}, 1, v{vCC}")
        A(f"v_lshl_add_u32 v{vJAt}, v{vT0}, 3, v{vJAt}")
        A(f"s_branch {ljoin}")
        A.label(lwo)
        A(f"s_mov_b32 s{rJA}, s{sPWO}")
        A(f"s_mov_b32 s{rJA+1}, s{sPWO+1}")
        A(f"s_cmp_lt_u32 s{jid}, 1008")
        A(f"s_cselect_b32 s{rJA+2}, {448*896}, 0")
        A(f"s_sub_u32 s{t0}, s{jid}, 784")
        A(f"s_lshl_b32 s{jaD}, s{t0}, 11")
        A(f"s_add_u32 s{jaD}, s{jaD}, {WS_WO}")
        A(f"s_mul_i32 s{t1}, s{t0}, 1171")
        A(f"s_lshr_b32 s{t1}, s{t1}, 16")
        A(f"s_mul_i32 s{t2}, s{t1}, 56")
        A(f"s_sub_u32 s{t2}, s{t0}, s{t2}")
        A(f"s_lshr_b32 s{t2}, s{t2}, 2")
        A(f"s_and_b32 s{t0}, s{t0}, 3")
        A(f"s_mul_i32 s{jaS}, s{t2}, {32*896}")
        A(f"s_mul_i32 s{t1}, s{t1}, 224")
        A(f"s_add_u32 s{jaS}, s{jaS}, s{t1}")
        A(f"s_lshl_b32 s{t1}, s{t0}, 6")
        A(f"s_add_u32 s{jaS}, s{jaS}, s{t1}")
        A(f"s_add_u32 s{jaS2}, s{jaS}, {16*896-1024}")
        A(f"s_mov_b32 s{jaE}, 256")
        A(f"s_mov_b32 s{jaE2}, 8")
        A(f"s_cmp_eq_u32 s{t0}, 3")
        A(f"s_cselect_b32 s{t0}, 3, 4")
        A(f"v_lshrrev_b32 v{vT0}, 2, v{vL}")
        A(f"v_mul_u32_u24 v{vJAo}, 896, v{vT0}")
        A(f"v_lshl_add_u32 v{vJAo}, v{vCC}, 4, v{vJAo}")
        A(f"v_lshrrev_b32 v{vT0}, 4, v{vL}")
        A(f"v_lshl_add_u32 v{vT0}, v{vT0}, 3, v{vRR}")
        A(f"v_lshlrev_b32 v{vJAt}, 6, v{vT0}")
        A(f"v_lshlrev_b32 v{vT0}, s{t0}, v{vCC}")
        A(f"v_add_u32 v{vJAt}, v{vJAt}, v{vT0}")
        A.label(ljoin)
        A(f"s_mul_i32 s{jobl}, s{sW}, 5120")
        A(f"s_add_u32 s{jobl}, s{jobl}, {L_JOB}")
        A(f"v_add_u32 v{vJAt}, s{jobl}, v{vJAt}")
        ja_load()
        A(f"v_add_u32 v{vJA1}, s{jaE}, v{vJAt}")
        A(f"v_add_u32 v{vJA2}, s{jaE2}, v{vJAt}")
        A(f"v_add_u32 v{vJA3}, s{jaE2}, v{vJA1}")
        A(f"v_mul_u32_u24 v{vJBo}, 3584, v6")
        A(f"v_lshl_add_u32 v{vJBo}, v7, 4, v{vJBo}")
        A(f"s_cmp_lt_u32 s{jid}, 784")
        A(f"s_cselect_b32 s{t0}, {448*3584}, 0")
        A(f"s_cselect_b32 s{t1}, {WS_END}, 0")
        srd(A, rJG, sPWG, f"s{t0}")
        srd(A, rJU, sPWU, f"s{t0}")
        srd(A, rSB, sPWS, f"s{t1}")
        pop()
        A(f"s_mul_i32 s{t0}, s{jid}, 2341")
        A(f"s_lshr_b32 s{t0}, s{t0}, 16")
        A(f"s_mul_i32 s{t1}, s{t0}, 28")
        A(f"s_sub_u32 s{t1}, s{jid}, s{t1}")
        A(f"s_mul_i32 s{jbD}, s{t0}, 112")
        A(f"s_add_u32 s{jbD}, s{jbD}, s{t1}")
        A(f"s_lshl_b32 s{jbD}, s{jbD}, 10")
        A(f"s_add_u32 s{jbD}, s{jbD}, {WS_WU}")
        A(f"s_mul_i32 s{t1}, s{t1}, {16*3584}")
        A(f"s_lshl_b32 s{t0}, s{t0}, 7")
        A(f"s_add_u32 s{jbS}, s{t0}, s{t1}")
        A(f"s_add_u32 s{jbS2}, s{jbS}, {8*3584}")
        pop()
        A(f"s_cmp_lg_u32 s{rJA+2}, 0")
        A(f"s_cselect_b32 s{t1}, {WS_END}, 0")
        srd(A, rSA, sPWS, f"s{t1}")
        srd(A, rOUT, sPOUT, 2048 * 896)
        A(f"s_lshl_b32 s{t0}, s{sW}, 3")
        A(f"v_xor_b32 v{vXw}, v6, v7")
        A(f"v_add_u32 v{vXw}, s{t0}, v{vXw}")
        A(f"v_lshlrev_b32 v{vXw}, 4, v{vXw}")
        A(f"v_lshl_add_u32 v{vXw}, v7, 9, v{vXw}")
        A(f"v_add_u32 v{vXw}, {L_XN}, v{vXw}")
        A(f"v_and_b32 v{vL32}, 31, v{vL}")
        pop()
        for q in range(4):
            A(f"v_add_u32 v{vT0}, {2*q}, v{vH}")
            A(f"v_xor_b32 v{vT1}, v{vL32}, v{vT0}")
            A(f"v_lshlrev_b32 v{vT1}, 4, v{vT1}")
            A(f"v_lshl_add_u32 v{vT1}, v{vT0}, 9, v{vT1}")
            A(f"v_add_u32 v{vXr+q}, {L_XN}, v{vT1}")
        pop()
        A(f"s_mov_b32 s{t0}, 0xffff0000")
        for i in range(7):
            A.wait(tx[i])
            if i in (1, 3, 5, 6):
                pop()
            for k in range(4):
                A(f"v_lshlrev_b32 v{vF+8*i+2*k}, 16, v{vX+4*i+k}")
                A(f"v_and_b32 v{vF+8*i+2*k+1}, s{t0}, v{vX+4*i+k}")
            if i == 0:
                A(f"v_pk_add_f32 {v(vTmp,2)}, {v(vF,2)}, {v(vF+2,2)}")
                A(f"v_pk_add_f32 {v(vTmp+2,2)}, {v(vF+4,2)}, {v(vF+6,2)}")
            else:
                for k in range(4):
                    d = vTmp + 2 * (k & 1)
                    A(f"v_pk_add_f32 {v(d,2)}, {v(d,2)}, {v(vF+8*i+2*k,2)}")
        self.stamp("x arrived")
        def red8():
            A(f"v_pk_add_f32 {v(vTmp,2)}, {v(vTmp,2)}, {v(vTmp+2,2)}")
            A(f"v_add_f32 v{vTmp}, v{vTmp}, v{vTmp+1}")
            for n, m in enumerate(("quad_perm:[1,0,3,2]", "quad_perm:[2,3,0,1]", "row_half_mirror")):
                if n == 1:
                    pop()
                else:
                    A.nop(2)
                A(f"v_add_f32_dpp v{vTmp}, v{vTmp}, v{vTmp} {m} row_mask:0xf bank_mask:0xf")
        red8()
        A(f"v_mul_f32 v{vTmp}, {f32(-1.0/448)}, v{vTmp}")
        for k in range(28):
            A(f"v_pk_add_f32 {v(vF+2*k,2)}, {v(vF+2*k,2)}, {v(vTmp,2)} op_sel_hi:[1,0]")
            if k == 14:
                pop()
        A(f"v_pk_mul_f32 {v(vTmp,2)}, {v(vF,2)}, {v(vF,2)}")
        A(f"v_pk_mul_f32 {v(vTmp+2,2)}, {v(vF+2,2)}, {v(vF+2,2)}")
        for k in range(2, 28):
            d = vTmp + 2 * (k & 1)
            A(f"v_pk_fma_f32 {v(d,2)}, {v(vF+2*k,2)}, {v(vF+2*k,2)}, {v(d,2)}")
            if k == 10:
                pop()
        red8()
        A(f"v_mov_b32 v{vTmp+1}, {f32(1e-5)}")
        A(f"v_fmamk_f32 v{vTmp}, v{vTmp}, {f32(1.0/448)}, v{vTmp+1}")
        A(f"v_rsq_f32 v{vTmp}, v{vTmp}")
        ja_read()
        for i in range(7):
            for k in range(4):
                A(f"v_pk_mul_f32 {v(vF+8*i+2*k,2)}, {v(vF+8*i+2*k,2)}, {v(vTmp,2)} op_sel_hi:[1,0]")
            for k in range(4):
                A(f"v_cvt_pk_bf16_f32 v{vX+4*i+k}, v{vF+8*i+2*k}, v{vF+8*i+2*k+1}")
            A(f"ds_write_b128 v{vXw}, {v(vX+4*i,4)} offset:{i*4096}")
            if i in (0, 2, 4, 6):
                pop()
        A.wait_all(vm=False)
        ja_store()
        self.stamp("ln1 done")
        A(f"s_mul_i32 s{sTAG}, s{sREF}, 0x9E3779B1")
        A(f"s_add_u32 s{sTAG}, s{sTAG}, 0x7F4A7C15")
        vAcc, vWf, vXf, NB = 128, 144, 176, 5
        lK, lV, lE = self.lab("g_k"), self.lab("g_v"), self.lab("g_end")
        A(f"s_cmp_eq_u32 s{ct1}, 14")
        A(f"s_cbranch_scc1 {lK}")
        A(f"s_cmp_eq_u32 s{ct1}, 15")
        A(f"s_cbranch_scc1 {lV}")
        state = (A.vm, A.lg, A.vm_done, A.lg_done)
        side_left = list(side)
        bar_at = {0: 2, 12: 4, 20: 5, 24: 6}
        def gemm(kind):
            A.vm, A.lg, A.vm_done, A.lg_done = state
            side[:] = side_left
            cs, ks, es = (8192, 2048, 512) if kind == "q" else (4096, 896, 224)
            rt = {}
            def reads(n):
                if n in bar_at:
                    A.wait(tok["w", bar_at[n]])
                    A("s_barrier")
                pos, q, b = n // 4, n % 4, 4 * (n % NB)
                A(f"ds_read_b128 {v(vXf+b,4)}, v{vXr+q} offset:{pos*4096}")
                A(f"ds_read_b64_tr_b16 {v(vWf+b,2)}, v{vWt} offset:{pos*cs+q*ks}")
                rt[n] = A(f"ds_read_b64_tr_b16 {v(vWf+b+2,2)}, v{vWt} offset:{pos*cs+q*ks+es}")
            for n in range(NB - 1):
                reads(n)
            for n in range(28):
                A.wait(rt[n])
                b = 4 * (n % NB)
                wa, xa = v(vWf + b, 4), v(vXf + b, 4)
                if kind == "v":
                    wa, xa = xa, wa
                A(f"v_mfma_f32_32x32x16_bf16 {v(vAcc,16)}, {wa}, {xa}, {'0' if n == 0 else v(vAcc,16)}")
                if n + NB - 1 < 28:
                    reads(n + NB - 1)
                pop()
            assert not side
        gemm("q")
        A(f"v_bfe_u32 v{vT0}, v{vL}, 3, 2")
        A(f"v_mul_u32_u24 v{vT0}, 7168, v{vT0}")
        A(f"v_lshl_add_u32 v{vT0}, v{vH}, 6, v{vT0}")
        A(f"v_lshl_add_u32 v{vT0}, v7, 3, v{vT0}")
        A(f"s_mul_i32 s{t0}, s{sRT}, {4*7168}")
        A(f"s_lshl_b32 s{t1}, s{ct1}, 9")
        A(f"s_add_u32 s{t0}, s{t0}, s{t1}")
        A(f"s_add_u32 s{t0}, s{t0}, {WS_Q}")
        A.nop(4)
        for i in range(4):
            A(f"v_cvt_pk_bf16_f32 v{vF+2*i}, v{vAcc+4*i}, v{vAcc+4*i+1}")
            A(f"v_cvt_pk_bf16_f32 v{vF+2*i+1}, v{vAcc+4*i+2}, v{vAcc+4*i+3}")
            A(f"buffer_store_dwordx2 {v(vF+2*i,2)}, v{vT0}, {s(rWS,4)}, s{t0} offen offset:{i*128} sc1")
        A(f"s_branch {lE}")
        A.label(lK)
        gemm("k")
        A(f"s_lshl_b32 s{t0}, s{sRT}, 12")
        A(f"s_add_u32 s{t0}, s{t0}, {WS_KV}")
        A(f"s_mov_b32 s{t1}, {f32(28 ** -0.5 * math.log2(math.e))}")
        A(f"v_cmp_lt_u32 vcc, 31, v{vL}")
        A(f"v_mov_b32 v{vT1}, 0x3f803f80")
        A(f"v_mov_b32 v{vT2}, 0x00003f80")
        A.nop(6)
        for i in range(16):
            A(f"v_mul_f32 v{vAcc+i}, s{t1}, v{vAcc+i}")
        for i in range(8):
            A(f"v_cvt_pk_bf16_f32 v{vF+i}, v{vAcc+2*i}, v{vAcc+2*i+1}")
        A(f"v_cndmask_b32 v{vF+6}, v{vF+6}, v{vT1}, vcc")
        A(f"v_cndmask_b32 v{vF+7}, v{vF+7}, v{vT2}, vcc")
        A(f"buffer_store_dwordx4 {v(vF,4)}, v{vL16}, {s(rWS,4)}, s{t0} offen sc1")
        A(f"buffer_store_dwordx4 {v(vF+4,4)}, v{vL16}, {s(rWS,4)}, s{t0} offen offset:1024 sc1")
        A(f"s_branch {lE}")
        A.label(lV)
        gemm("v")
        A(f"s_lshl_b32 s{t0}, s{sRT}, 12")
        A(f"s_add_u32 s{t0}, s{t0}, {WS_KV}")
        A(f"v_cmp_eq_u32 vcc, 28, v{vL32}")
        A(f"v_mov_b32 v{vT1}, 0x3f803f80")
        A.nop(1)
        A(f"v_cndmask_b32 v{vT1}, 0, v{vT1}, vcc")
        A(f"v_cmp_lt_u32 vcc, 27, v{vL32}")
        A.nop(5)
        for i in range(8):
            A(f"v_cvt_pk_bf16_f32 v{vF+i}, v{vAcc+2*i}, v{vAcc+2*i+1}")
        for i in range(8):
            A(f"v_cndmask_b32 v{vF+i}, v{vF+i}, v{vT1}, vcc")
        A(f"buffer_store_dwordx4 {v(vF,4)}, v{vL16}, {s(rWS,4)}, s{t0} offen offset:2048 sc1")
        A(f"buffer_store_dwordx4 {v(vF+4,4)}, v{vL16}, {s(rWS,4)}, s{t0} offen offset:3072 sc1")
        A.label(lE)
        self.stamp("qkv stored")
        A(f"s_cmp_lt_u32 s{jid}, 784")
        A(f"s_cselect_b32 s{rJA+2}, {1792*896}, 0")
        A(f"s_cselect_b32 s{rSA+2}, {WS_END}, 0")
        ja_load()
        for k in range(4):
            A(f"buffer_load_dwordx4 {v(vJB+4*k,4)}, v{vJBo}, {s(rJG if k < 2 else rJU,4)}, s{jbS2 if k & 1 else jbS} offen")
        A(f"v_cmp_eq_u32 vcc, 0, v{vL}")
        A(f"v_mov_b32 v3, 0x7ff00000")
        A(f"v_mov_b32 v4, s{sTAG}")
        A(f"v_cndmask_b32 v{vONE}, v3, 0, vcc")
        A(f"v_mov_b32 v5, s{sXCC}")
        A(f"v_add_u32 v{vT0}, s{jobl}, v{vL16}")
        A(f"v_lshlrev_b32 v{vT1}, 7, v{vK8}")
        A(f"v_lshl_add_u32 v{vT1}, v{vMH}, 11, v{vT1}")
        A(f"v_and_b32 v{vT2}, 1, v{vCC}")
        A(f"v_lshl_add_u32 v{vT1}, v{vT2}, 4, v{vT1}")
        A(f"v_lshrrev_b32 v{vT2}, 1, v{vCC}")
        A(f"v_lshl_add_u32 v{vT1}, v{vT2}, 3, v{vT1}")
        A(f"v_add_u32 v{vT1}, s{jobl}, v{vT1}")
        A(f"s_lshl_b32 s{t0}, s{sL}, 7")
        A(f"s_add_u32 s{t0}, s{t0}, {WS_F1}")
        A.raw("    s_waitcnt vmcnt(6)")
        A.vm_done = A.vm - 6
        A("s_barrier")
        lnf = self.lab("nf1")
        A(f"s_cmp_lg_u32 s{sW}, 0")
        A(f"s_cbranch_scc1 {lnf}")
        A.raw(f"    buffer_store_dwordx2 v[4:5], v{vONE}, {s(rWS,4)}, s{t0} offen sc1")
        A.label(lnf)
        self.stamp("f1 sent")
        ja_read()
        A.wait_all()
        ja_store()
        for n in range(4):
            A(f"ds_write_b128 v{vT0}, {v(vJB+4*n,4)} offset:{n*1024}")
        A.wait_all(vm=False)
        toks = []
        for tt in range(4):
            A(f"ds_read_b64_tr_b16 {v(vJB+4*tt,2)}, v{vT1} offset:{tt*32}")
            toks.append(A(f"ds_read_b64_tr_b16 {v(vJB+4*tt+2,2)}, v{vT1} offset:{tt*32+512}"))
        for tt in range(4):
            A.wait(toks[tt])
            A(f"buffer_store_dwordx4 {v(vJB+4*tt,4)}, v{vL16}, {s(rSB,4)}, s{jbD} offen sc1")
            if tt < 3:
                A(f"s_add_u32 s{jbD}, s{jbD}, {28*1024}")
        self.stamp("jobs sent")

    vQ, vO, vS, vP, vKV, vSP = 16, 48, 112, 144, 160, 208
    N_WU_ATT = 14

    def wo_reg(self, f):
        if f < 64:
            return 256 + 4 * f
        if f < 75:
            return self.vSP + 4 * (f - 64)
        if f < 79:
            return self.vKV + 16 + 4 * (f - 75)
        if f < 83:
            return self.vKV + 32 + 4 * (f - 79)
        if f < 87:
            return self.vKV + 4 * (f - 83)
        if f < 95:
            return self.vS + 4 * (f - 87)
        return self.vP + 4 * (f - 95)

    def wo_load(self, f):
        A = self.A
        off = ((f // 7) * 8 + f % 7) * 1024
        if off // 4096 != self.wo_win:
            A(f"s_add_u32 s{self.sWO}, s{self.sWO}, {(off // 4096 - self.wo_win) * 4096}")
            self.wo_win = off // 4096
        self.tok["wo", f] = A(f"buffer_load_dwordx4 {r(self.wo_reg(f),4)}, v1, {s(rWS,4)}, s{self.sWO} offen offset:{off % 4096} sc1")

    def wu_prep(self, k):
        tile, p = divmod(k, 7)
        slot = tile if tile < 5 else tile - 5
        ops = []
        if p in (0, 4):
            ops.append(f"s_add_u32 m0, s{self.sWUL}, {slot * SLOT + p * 1024}")
            ops.append(f"s_add_u32 s{self.sWUC}, s{self.sWU}, {tile * SLOT + p * 1024}")
        return ops

    def wu_load(self, k):
        p = k % 7
        self.tok["wu", k] = self.A(f"buffer_load_dwordx4 v1, {s(rWS,4)}, s{self.sWUC} offen offset:{(p % 4) * 1024} sc1 lds")

    def p2(self):
        A = self.A
        self.tok = tok = {}
        self.sKV, self.sWO, self.sWU, self.sWUL, self.sWUC, t0, t1, t2 = sT[:8]
        sKV = self.sKV
        vQ, vO, vS, vP, vKV = self.vQ, self.vO, self.vS, self.vP, self.vKV
        vPA, vPB, vQa, vT0, vT1, vT2 = 6, 7, 8, 12, 13, 14
        A(f"v_and_b32 v{vT0}, 15, v0")
        A(f"s_lshl_b32 s{t0}, s{sW}, 6")
        A(f"s_add_u32 s{t0}, s{t0}, 3")
        A(f"v_lshl_add_u32 v{vPA}, v{vT0}, 2, s{t0}")
        A(f"s_lshl_b32 s{t0}, s{sG}, 4")
        A(f"v_add_u32 v{vT1}, s{t0}, v{vT0}")
        A(f"v_cmp_lt_u32 vcc, 15, v0")
        A(f"s_mul_i32 s{t0}, s{sW}, 14")
        A(f"s_add_u32 s{t0}, s{t0}, 196")
        A(f"v_cndmask_b32 v{vPA}, v{vPA}, v{vT1}, vcc")
        A(f"v_min_u32 v{vT1}, 13, v{vT0}")
        A(f"v_cmp_lt_u32 vcc, 31, v0")
        A(f"v_add_u32 v{vT1}, s{t0}, v{vT1}")
        A.nop(1)
        A(f"v_cndmask_b32 v{vPA}, v{vPA}, v{vT1}, vcc")
        A(f"v_lshlrev_b32 v{vPA}, 7, v{vPA}")
        A(f"v_add_u32 v{vPA}, {WS_F1}, v{vPA}")
        A(f"s_mul_i32 s{t0}, s{sJ}, 7")
        A(f"s_lshr_b32 s{t0}, s{t0}, 2")
        A(f"s_mul_i32 s{t0}, s{t0}, 7")
        A(f"v_min_u32 v{vT1}, 20, v0")
        A(f"v_add_u32 v{vT1}, s{t0}, v{vT1}")
        A(f"v_min_u32 v{vT1}, 195, v{vT1}")
        A(f"s_mul_i32 s{t0}, s{sCT}, 28")
        A(f"s_mul_i32 s{t1}, s{sW}, 7")
        A(f"s_add_u32 s{t0}, s{t0}, s{t1}")
        A(f"v_min_u32 v{vT2}, 6, v{vT0}")
        A(f"v_add_u32 v{vT2}, s{t0}, v{vT2}")
        A(f"v_cndmask_b32 v{vPB}, v{vT1}, v{vT2}, vcc")
        A(f"v_lshlrev_b32 v{vPB}, 7, v{vPB}")
        A(f"v_add_u32 v{vPB}, {WS_F1B}, v{vPB}")
        A(f"s_mul_i32 s{self.sWU}, s{sJ}, {7*SLOT}")
        A(f"s_mul_i32 s{self.sWUL}, s{sW}, 7168")
        A(f"s_add_u32 s{self.sWU}, s{self.sWU}, s{self.sWUL}")
        A(f"s_add_u32 s{self.sWU}, s{self.sWU}, {WS_WU}")
        self.poll(vPA, 10, "x1", width=2)
        self.stamp("x1 seen")
        A.label("L_attn")
        A(f"s_mul_i32 s{t0}, s{sL}, 7168")
        A(f"s_lshl_b32 s{t1}, s{sW}, 11")
        A(f"s_add_u32 s{t0}, s{t0}, s{t1}")
        A(f"s_add_u32 m0, s{t1}, {L_Q}")
        A(f"s_add_u32 s{t0}, s{t0}, {WS_Q}")
        A(f"s_lshl_b32 s{sKV}, s{sW}, 16")
        A(f"buffer_load_dwordx4 v1, {s(rWS,4)}, s{t0} offen sc1 lds")
        tq = A(f"buffer_load_dwordx4 v1, {s(rWS,4)}, s{t0} offen offset:1024 sc1 lds")
        A(f"s_add_u32 s{sKV}, s{sKV}, {WS_KV}")
        def kvload(it, fr):
            b = vKV + 16 * (it % 3) + 4 * fr
            tok["kv", it, fr] = A(f"buffer_load_dwordx4 {v(b,4)}, v1, {s(rWS,4)}, s{sKV} offen offset:{fr*1024} sc1")
        for it in range(2):
            for fr in range(4):
                kvload(it, fr)
            A(f"s_add_u32 s{sKV}, s{sKV}, 4096")
        A(f"s_mul_i32 s{self.sWO}, s{sW}, {14*8192}")
        A(f"s_add_u32 s{self.sWO}, s{self.sWO}, {WS_WO}")
        self.wo_win = 0
        A(f"v_bfe_u32 v{vT0}, v0, 3, 2")
        A(f"v_mul_u32_u24 v{vT0}, 448, v{vT0}")
        A(f"v_lshrrev_b32 v{vT1}, 5, v0")
        A(f"v_lshl_add_u32 v{vT0}, v{vT1}, 6, v{vT0}")
        A(f"v_and_b32 v{vT1}, 7, v0")
        A(f"v_lshl_add_u32 v{vT0}, v{vT1}, 3, v{vT0}")
        for n in range(4):
            A(f"s_add_u32 s{t0}, s{sW}, {n+1}")
            A(f"s_and_b32 s{t0}, s{t0}, 3")
            A(f"s_mul_i32 s{t0}, s{t0}, 1792")
            A(f"s_add_u32 s{t0}, s{t0}, {L_Q}")
            A(f"v_add_u32 v{vQa+n}, s{t0}, v{vT0}")
            A(f"v_mov_b64 {v(vQ+8*n+6,2)}, 0")
        A.wait(tq)
        A("s_barrier")
        lnf = self.lab("nf1b")
        A(f"s_cmp_lg_u32 s{sW}, 0")
        A(f"s_cbranch_scc1 {lnf}")
        A(f"s_lshl_b32 s{t0}, s{sL}, 7")
        A(f"s_add_u32 s{t0}, s{t0}, {WS_F1B}")
        A.raw(f"    buffer_store_dword v4, v{vONE}, {s(rWS,4)}, s{t0} offen sc1")
        A.label(lnf)
        A("s_mov_b32 exec_hi, 0")
        for n in range(4):
            A(f"ds_read_b64 {v(vQ+8*n+6,2)}, v{vQa+n} offset:384")
        A("s_mov_b32 exec_hi, -1")
        for n in range(4):
            for i in range(3):
                A(f"ds_read_b64 {v(vQ+8*n+2*i,2)}, v{vQa+n} offset:{i*128}")
        A.wait_all(vm=False)
        for n in range(3):
            A(f"s_add_u32 s{t0}, s{sW}, {n+1}")
            A(f"s_and_b32 s{t0}, s{t0}, 3")
            A(f"s_mul_i32 s{t0}, s{t0}, 12288")
            A(f"s_add_u32 s{t0}, s{t0}, {L_SC + n*4096}")
            A(f"v_add_u32 v{vQa+n}, s{t0}, v1")
        A(f"s_cmp_lg_u32 s{sMODE}, 0")
        A("s_cbranch_scc1 L_maxpass")
        A.label("L_attn_main")
        self.stamp("q ready")

        def smf(n, half):
            it, q = divmod(n, 4)
            d = vS + 16 * (n & 1)
            k = vKV + 16 * (it % 3) + 4 * half
            A(f"v_mfma_f32_32x32x16_bf16 {v(d,16)}, {v(k,4)}, {v(vQ+8*q+4*half,4)}, {v(d,16) if half else '0'}")
        def pmf(n, half):
            it, q = divmod(n, 4)
            d = vO + 16 * q
            vv = vKV + 16 * (it % 3) + 8 + 4 * half
            c = "0" if (it == 0 and half == 0) else v(d, 16)
            A(f"v_mfma_f32_32x32x16_bf16 {v(d,16)}, {v(vv,4)}, {v(vP+8*(n&1)+4*half,4)}, {c}")
        def owrite(slot, rq):
            A(f"ds_write_b128 v{vQa+slot}, {v(vO+16*slot+4*rq,4)} offset:{rq*1024}")

        sidew = {}
        def put(it, sl, fn):
            sidew.setdefault((it, sl), []).append(fn)
        for it in range(14):
            put(it, 0, lambda it=it: kvload(it + 2, 0))
            put(it, 2, lambda it=it: kvload(it + 2, 1))
            put(it, 4, lambda it=it: kvload(it + 2, 2))
            put(it, 6, lambda it=it: kvload(it + 2, 3))
            put(it, 7, lambda: A(f"s_add_u32 s{sKV}, s{sKV}, 4096"))
        for it in range(15):
            put(it, 11, lambda it=it: A.wait(tok["kv", it + 1, 3]))
        put(0, 5, lambda: A.wait(tok["kv", 0, 3]))
        put(1, 9, lambda: A("s_barrier"))
        f = 0
        for it in range(15):
            for sl in (1, 8, 10, 12, 14):
                put(it, sl, lambda f=f: self.wo_load(f))
                f += 1
        assert f == 75
        for k, sl in enumerate((0, 1, 2, 3)):
            put(15, sl, lambda k=k: self.wo_load(75 + k))
        for k, sl in enumerate((4, 5, 6, 7)):
            put(15, sl, lambda k=k: self.wo_load(79 + k))
        def f1b_load():
            tok["f1b"] = A(f"buffer_load_dword v11, v{vPB}, {s(rWS,4)}, 0 offen sc1")
        def f1b_test():
            A.wait(tok["f1b"])
            A(f"v_cmp_ne_u32 vcc, s{sTAG}, v11")
            A.nop(1)
            A("s_cbranch_vccnz L_f1b_spin")
            A.label("L_f1b_ok")
        put(2, 3, f1b_load)
        put(3, 13, f1b_test)
        k = 0
        for it in range(4, 15):
            for sl in (5, 15):
                if k < self.N_WU_ATT * (it - 3) * 2 // 22 + 1 and k < self.N_WU_ATT:
                    pre = self.wu_prep(k)
                    if pre:
                        put(it, sl - 2, lambda pre=pre: [A(x) for x in pre])
                    put(it, sl, lambda k=k: self.wu_load(k))
                    k += 1
        assert k == self.N_WU_ATT, k
        A.wait(tok["kv", 0, 1])
        smf(0, 0)
        smf(0, 1)
        A.nop(11)
        for n in range(64):
            it, q = divmod(n, 4)
            if n < 63:
                mf = [lambda: smf(n + 1, 0), lambda: smf(n + 1, 1)]
                mf += [lambda: pmf(n - 1, 0), lambda: pmf(n - 1, 1)] if n > 0 else [None, None]
            else:
                mf = [lambda: pmf(n - 1, 0), lambda: pmf(n - 1, 1), None, None]
            S, P = vS + 16 * (n & 1), vP + 8 * (n & 1)
            for j in range(4):
                if mf[j]:
                    mf[j]()
                for fn in sidew.get((it, 4 * q + j), []):
                    fn()
                if n == 62 and j >= 1:
                    owrite(0, j - 1)
                    if j == 3:
                        owrite(0, 3)
                if n == 63 and j >= 1:
                    owrite(1, j - 1)
                    if j == 3:
                        owrite(1, 3)
                for e in range(4):
                    A(f"v_exp_f32 v{S+4*j+e}, v{S+4*j+e}")
                A(f"v_cvt_pk_bf16_f32 v{P+2*j}, v{S+4*j}, v{S+4*j+1}")
                A(f"v_cvt_pk_bf16_f32 v{P+2*j+1}, v{S+4*j+2}, v{S+4*j+3}")
        owrite(2, 0)
        owrite(2, 1)
        pmf(63, 0)
        owrite(2, 2)
        pmf(63, 1)
        owrite(2, 3)
        self.stamp("attn loop")

    def p3(self):
        A = self.A
        tok = self.tok
        vQ, vO = self.vQ, self.vO
        t0, t1, t2, sHS = sT[5:9]
        vAcc, vXr = 16, 34
        vB = 48
        vR, vOw, vB0, vB1 = 8, 9, 10, 11
        vT0, vT1, vT2, vT3 = 12, 13, 14, 15
        vOwn = vO + 48
        A(f"v_and_b32 v{vT0}, 7, v0")
        A(f"v_lshrrev_b32 v{vT1}, 4, v0")
        A(f"v_mul_u32_u24 v{vT2}, 896, v{vT0}")
        A(f"v_lshl_add_u32 v{vT3}, v{vT1}, 3, v{vT2}")
        A(f"v_lshl_add_u32 v{vT2}, v{vT1}, 4, v{vT2}")
        A(f"s_mul_i32 s{t0}, s{sL}, 7168")
        A(f"s_mul_i32 s{t1}, s{sW}, 224")
        A(f"s_add_u32 s{t0}, s{t0}, s{t1}")
        for i in range(3):
            A(f"buffer_load_dwordx4 {v(vXr+4*i,4)}, v{vT2}, {s(rX,4)}, s{t0} offen offset:{64*i}")
        tx = A(f"buffer_load_dwordx2 {v(vXr+12,2)}, v{vT3}, {s(rX,4)}, s{t0} offen offset:192")
        A(f"s_mul_i32 s{t0}, s{sW}, 12288")
        A(f"s_add_u32 s{t0}, s{t0}, {L_SC}")
        A(f"v_add_u32 v{vR}, s{t0}, v1")
        A.wait_all(vm=False)
        A("s_barrier")
        tr_ = []
        for n in range(12):
            tr_.append(A(f"ds_read_b128 {v(vO+4*n,4)}, v{vR} offset:{n*1024}"))
            if n % 2 == 1:
                self.wo_load(83 + n // 2)
        A(f"v_mul_u32_u24 v{vB0}, {OB_STRIDE}, v{vT0}")
        A(f"v_bfe_u32 v{vT2}, v0, 3, 2")
        A(f"v_mad_u32_u24 v{vOw}, v{vT2}, 56, v{vB0}")
        A(f"v_lshrrev_b32 v{vT2}, 5, v0")
        A(f"v_lshl_add_u32 v{vOw}, v{vT2}, 3, v{vOw}")
        A(f"v_add_u32 v{vOw}, s{t0}, v{vOw}")
        A(f"v_lshl_add_u32 v{vB0}, v{vT1}, 4, v{vB0}")
        A(f"v_add_u32 v{vB0}, {L_SC}, v{vB0}")
        A(f"v_mul_u32_u24 v{vT2}, {12288-224}, v{vT2}")
        A(f"v_add_u32 v{vB1}, v{vB0}, v{vT2}")
        for n in range(12):
            A.wait(tr_[n])
            rq = n % 4
            for k in range(2):
                A(f"v_pk_add_f32 {v(vOwn+4*rq+2*k,2)}, {v(vOwn+4*rq+2*k,2)}, {v(vO+4*n+2*k,2)}")
        A(f"v_mov_b32 v{vT2}, v{vOwn+12}")
        A(f"v_mov_b32 v{vT3}, v{vOwn+12}")
        self.wo_load(89)
        self.wo_load(90)
        A(f"v_permlane32_swap_b32 v{vT2}, v{vT3}")
        A(f"s_mov_b32 s{t1}, {f32(2.0**-40)}")
        A(f"v_rcp_f32 v{vT2}, v{vT3}")
        A(f"v_cmp_nle_f32 vcc, s{t1}, v{vT3}")
        A(f"s_mov_b32 s{t1}, {f32(2.0**40)}")
        A(f"v_cmp_nge_f32 s[{sEX}:{sEX+1}], s{t1}, v{vT3}")
        for k in range(8):
            A(f"v_pk_mul_f32 {v(vOwn+2*k,2)}, {v(vOwn+2*k,2)}, {v(vT2,2)} op_sel_hi:[1,0]")
        A(f"s_or_b64 vcc, vcc, s[{sEX}:{sEX+1}]")
        A(f"s_cselect_b32 s{t1}, 1, 0")
        A(f"s_add_u32 s{t2}, s{t0}, 4096")
        for k in range(8):
            A(f"v_cvt_pk_bf16_f32 v{vOwn+k}, v{vOwn+2*k}, v{vOwn+2*k+1}")
        A(f"v_mov_b32 v{vT2}, s{t2}")
        A(f"v_mov_b32 v{vT3}, s{t1}")
        for i in range(3):
            A(f"ds_write_b64 v{vOw}, {v(vOwn+2*i,2)} offset:{16*i}")
        A("s_mov_b32 exec_hi, 0")
        A(f"ds_write_b64 v{vOw}, {v(vOwn+6,2)} offset:48")
        A(f"ds_write_b32 v{vT2}, v{vT3}")
        A("s_mov_b32 exec_hi, -1")
        for f in range(91, 95):
            self.wo_load(f)
        A(f"v_and_b32 v{vT2}, 3, v0")
        A(f"v_mul_u32_u24 v{vT2}, 12288, v{vT2}")
        A(f"v_add_u32 v{vT2}, {L_SC + 4096}, v{vT2}")
        A.wait_all(vm=False)
        A("s_barrier")
        tfl = A(f"ds_read_b32 v104, v{vT2}")
        tb = []
        for k in range(14):
            g = 4 * k
            reg, rem = divmod(g, 14)
            tb.append(A(f"ds_read_b128 {v(vB+4*k,4)}, v{vB1 if k in (3, 10) else vB0} offset:{reg*12288+rem*16}"))
        for f in range(95, 98):
            self.wo_load(f)
        A.wait(tx)
        A(f"s_mov_b32 s{t1}, 0xffff0000")
        for d in range(14):
            A(f"v_and_b32 v{vAcc+2*d+1}, s{t1}, v{vXr+d}") if vAcc + 2*d + 1 != vXr + d else None
            A(f"v_lshlrev_b32 v{vAcc+2*d}, 16, v{vXr+d}")
        A.wait(tfl)
        A(f"v_cmp_ne_u32 vcc, 0, v104")
        A(f"s_cmp_lg_u32 s{sMODE}, 0")
        A(f"s_cselect_b64 vcc, 0, vcc")
        A("s_cbranch_vccnz L_redo")
        self.stamp("o ready")
        wu = list(range(self.N_WU_ATT, 28))
        for k in range(14):
            for tt in range(7):
                f = 7 * k + tt
                A.wait(tb[k], tok["wo", f])
                A(f"v_mfma_f32_16x16x32_bf16 {v(vAcc+4*tt,4)}, {r(self.wo_reg(f),4)}, {v(vB+4*k,4)}, {v(vAcc+4*tt,4)}")
                if tt == 2 and wu:
                    for x in self.wu_prep(wu[0]):
                        A(x)
                if tt == 4 and wu:
                    self.wu_load(wu.pop(0))
        assert not wu
        self.stamp("wo done")
        vSt, vSo, vSo2 = 8, 9, 10
        A(f"v_lshrrev_b32 v{vT2}, 5, v0")
        A(f"v_lshlrev_b32 v{vSt}, 4, v{vT0}")
        A(f"v_lshl_add_u32 v{vT3}, v{vT2}, 7, v{vSt}")
        A(f"s_lshl_b32 s{t1}, s{sW}, 2")
        A(f"s_add_u32 s{t1}, s{t1}, {L_ST}")
        A(f"v_add_u32 v{vT3}, s{t1}, v{vT3}")
        A(f"v_add_u32 v11, {L_ST}, v{vSt}")
        A(f"s_and_b32 s{t1}, s{sL}, 3")
        A(f"v_pk_add_f32 v[48:49], {v(vAcc,2)}, {v(vAcc+2,2)}")
        A(f"v_pk_mul_f32 v[50:51], {v(vAcc,2)}, {v(vAcc,2)}")
        A(f"v_pk_fma_f32 v[50:51], {v(vAcc+2,2)}, {v(vAcc+2,2)}, v[50:51]")
        for k in range(2, 14):
            A(f"v_pk_add_f32 v[48:49], v[48:49], {v(vAcc+2*k,2)}")
            A(f"v_pk_fma_f32 v[50:51], {v(vAcc+2*k,2)}, {v(vAcc+2*k,2)}, v[50:51]")
        A("v_add_f32 v48, v48, v49")
        A("v_add_f32 v50, v50, v51")
        A(f"s_lshl_b32 s{t1}, s{t1}, 7")
        A(f"s_mul_i32 s{sHS}, s{sRT}, {SLOT}")
        A("v_permlane32_swap_b32 v48, v50")
        A("v_add_f32 v48, v48, v50")
        A("v_mov_b32 v49, v48")
        A(f"s_add_u32 s{sHS}, s{sHS}, s{t1}")
        A(f"s_add_u32 s{sHS}, s{sHS}, s{self.sWUL}")
        A("v_permlane16_swap_b32 v48, v49")
        A("v_add_f32 v48, v48, v49")
        A(f"ds_write_b32 v{vT3}, v48")
        A(f"v_and_b32 v{vT2}, 8, v0")
        A(f"v_cmp_ne_u32 vcc, 0, v{vT2}")
        A(f"v_mov_b32 v{vT2}, {WS_HN}")
        A(f"v_mov_b32 v{vT3}, {WS_H}")
        A(f"v_cndmask_b32 v{vT2}, v{vT2}, v{vT3}, vcc")
        A(f"v_add_u32 v{vT2}, v{vT2}, v{vSt}")
        A(f"v_lshl_add_u32 v{vSo}, v{vT1}, 9, v{vT2}")
        A(f"v_lshrrev_b32 v{vT3}, 1, v{vT1}")
        A(f"v_lshl_add_u32 v{vSo2}, v{vT3}, 9, v{vT2}")
        A(f"v_and_b32 v{vT3}, 1, v{vT1}")
        A(f"v_lshl_add_u32 v{vSo2}, v{vT3}, 3, v{vSo2}")
        A.wait_all(vm=False)
        A("s_barrier")
        A("ds_read_b128 v[48:51], v11")
        A("ds_read_b128 v[52:55], v11 offset:128")
        A(f"s_add_u32 s{t1}, s{sHS}, 4096")
        A.wait_all(vm=False)
        A("v_pk_add_f32 v[48:49], v[48:49], v[50:51]")
        A("v_pk_add_f32 v[52:53], v[52:53], v[54:55]")
        A("v_add_f32 v48, v48, v49")
        A("v_add_f32 v52, v52, v53")
        A(f"v_mul_f32 v48, {f32(1.0/448)}, v48")
        A("v_mul_f32 v49, v48, v48")
        A(f"v_mov_b32 v53, {f32(1.0/448)}")
        A("v_fma_f32 v52, v52, v53, -v49")
        A("v_max_f32 v52, 0, v52")
        A(f"v_add_f32 v52, {f32(1e-5)}, v52")
        A("v_rsq_f32 v52, v52")
        A.nop(1)
        A("v_mul_f32 v48, -v48, v52")
        A("v_cndmask_b32 v52, v52, 1.0, vcc")
        A("v_cndmask_b32 v48, v48, 0, vcc")
        for i in range(4):
            nreg = 4 if i < 3 else 2
            for k in range(nreg):
                a0 = vAcc + 8 * i + 2 * k
                A(f"v_pk_fma_f32 {v(a0,2)}, {v(a0,2)}, v[52:53], v[48:49] op_sel_hi:[1,0,0]")
            for k in range(nreg):
                a0 = vAcc + 8 * i + 2 * k
                A(f"v_cvt_pk_bf16_f32 v{56+4*i+k}, v{a0}, v{a0+1}")
            if i < 2:
                ts = A(f"buffer_store_dwordx4 {v(56+4*i,4)}, v{vSo}, {s(rWS,4)}, s{sHS} offen offset:{2048*i} sc1")
            elif i == 2:
                ts = A(f"buffer_store_dwordx4 {v(56+4*i,4)}, v{vSo}, {s(rWS,4)}, s{t1} offen sc1")
            else:
                ts = A(f"buffer_store_dwordx2 {v(56+4*i,2)}, v{vSo2}, {s(rWS,4)}, s{t1} offen offset:2048 sc1")
        self.stamp("hn stored")
        for k in range(28, 35):
            for x in self.wu_prep(k):
                A(x)
            self.wu_load(k)
        A(f"s_lshl_b32 s{t0}, s{sL}, 2")
        A(f"s_add_u32 s{t0}, s{t0}, s{sW}")
        A(f"s_lshl_b32 s{t0}, s{t0}, 7")
        A(f"s_add_u32 s{t0}, s{t0}, {WS_F2}")
        A.wait(ts)
        A(f"buffer_store_dword v4, v{vONE}, {s(rWS,4)}, s{t0} offen sc1")
        self.stamp("f2 sent")

    def wd_load(self, n):
        A = self.A
        k, e = divmod(n, 2)
        win = k // 2
        if win != self.wd_win:
            A(f"s_add_u32 s{self.sWD}, s{self.sWD}, {(win - self.wd_win) * 4096}")
            self.wd_win = win
        self.tok["wd", n] = A(f"buffer_load_dwordx4 {a(4*n,4)}, v{self.vWD+e}, {s(rWS,4)}, s{self.sWD} offen offset:{(k % 2) * 2048} sc1")

    def gelu_ops(self, acc, out):
        vT = 192
        seq = []
        for i in range(0, 8, 2):
            ops = []
            for k in (0, 1):
                g, u, t = acc + i + k, acc + 8 + i + k, vT + k
                ops.append([f"v_mul_f32 v{t}, v{g}, v{g}", f"v_fma_f32 v{t}, v{t}, s{self.sC1}, v{self.vC0}",
                            f"v_mul_f32 v{t}, v{t}, v{g}", f"v_exp_f32 v{t}, v{t}", f"v_mul_f32 v{u}, v{g}, v{u}",
                            f"v_add_f32 v{t}, 1.0, v{t}", f"v_rcp_f32 v{t}, v{t}", f"v_mul_f32 v{t}, v{t}, v{u}"])
            x, y = ops
            seq += [x[0], y[0], x[1], y[1], x[2], y[2], x[3], y[3], x[4], x[5], y[5], x[6], y[6], y[4], x[7], y[7]]
            seq.append(f"v_cvt_pk_bf16_f32 v{out + i // 2}, v{vT}, v{vT+1}")
        return seq

    def p4(self):
        A = self.A
        tok = self.tok
        t0, t1, sHN, sAS, self.sWD, self.sC1, sAS2 = sT[5:12]
        vHN, vAc, vWf, vOut = 16, 128, 176, 196
        self.vC0, self.vWD = 194, 8
        vPA, vW1, vW2 = 6, 10, 11
        c0 = -2.0 * math.log2(math.e) * math.sqrt(2.0 / math.pi)
        A(f"s_lshl_b32 s{t0}, s{sG}, 2")
        A(f"s_add_u32 s{t0}, s{t0}, s{sW}")
        A(f"s_lshl_b32 s{t1}, s{t0}, 11")
        A(f"s_add_u32 s{t1}, s{t1}, {WS_F2}")
        A(f"v_and_b32 v{vPA}, 15, v0")
        A(f"v_lshl_add_u32 v{vPA}, v{vPA}, 7, s{t1}")
        A(f"s_mul_i32 s{sHN}, s{t0}, {SLOT}")
        A(f"s_add_u32 s{sHN}, s{sHN}, {WS_HN}")
        A(f"s_mul_i32 s{sAS}, s{t0}, 112")
        A(f"s_mul_i32 s{t1}, s{sJ}, 7")
        A(f"s_add_u32 s{sAS}, s{sAS}, s{t1}")
        A(f"s_lshl_b32 s{sAS}, s{sAS}, 10")
        A(f"s_add_u32 s{sAS}, s{sAS}, {WS_A}")
        A(f"s_add_u32 s{sAS2}, s{sAS}, 4096")
        A(f"s_mul_i32 s{self.sWD}, s{sCT}, 112")
        A(f"s_mul_i32 s{t1}, s{sW}, 28")
        A(f"s_add_u32 s{self.sWD}, s{self.sWD}, s{t1}")
        A(f"s_lshl_b32 s{self.sWD}, s{self.sWD}, 11")
        A(f"s_add_u32 s{self.sWD}, s{self.sWD}, {WS_WD}")
        self.wd_win = 0
        A(f"s_and_b32 s{t1}, s{sW}, 1")
        A(f"s_lshl_b32 s{t1}, s{t1}, 10")
        A(f"v_add_u32 v{self.vWD}, s{t1}, v1")
        A(f"v_xor_b32 v{self.vWD+1}, 1024, v{self.vWD}")
        A(f"v_add_u32 v{vW1}, {2*SLOT}, v1")
        A(f"v_add_u32 v{vW2}, {4*SLOT}, v1")
        A(f"v_mov_b32 v{self.vC0}, {f32(c0)}")
        A(f"s_mov_b32 s{self.sC1}, {f32(c0 * 0.044715)}")
        self.poll(vPA, 12, "x2")
        A("s_barrier")
        self.stamp("x2 seen")
        def hn_load(k):
            if k and k % 4 == 0:
                A(f"s_add_u32 s{sHN}, s{sHN}, 4096")
            tok["hn", k] = A(f"buffer_load_dwordx4 {v(vHN+4*k,4)}, v1, {s(rWS,4)}, s{sHN} offen offset:{(k%4)*1024} sc1")
        NPRE = 10
        for k in range(NPRE):
            hn_load(k)
        order = [(i, k) for k in range(28) for i in (0, 1)] + [(i, k) for i in range(2, 7) for k in range(28)]
        NB = 4
        def wread(n):
            i, k = order[n]
            slot = i if i < 5 else i - 5
            base, off = {0: (1, 0), 1: (1, SLOT), 2: (vW1, 0), 3: (vW1, SLOT), 4: (vW2, 0)}[slot]
            tok["wf", n] = A(f"ds_read_b128 {v(vWf+4*(n%NB),4)}, v{base} offset:{off + k*1024}")
        for n in range(NB - 1):
            wread(n)
        gq = []
        vm_side = []
        wd_next = [0]
        def a_store(i):
            sb, off = (sAS, i * 1024) if i < 4 else (sAS2, (i - 4) * 1024)
            tok["as", i] = A(f"buffer_store_dwordx4 {v(vOut+4*(i&1),4)}, v1, {s(rWS,4)}, s{sb} offen offset:{off} sc1")
        cost = lambda o: 8 if o.startswith(("v_exp", "v_rcp")) else 4
        A.wait(tok["wf", 0], tok["hn", 0])
        wu_left = list(range(35, 49))
        for n, (i, k) in enumerate(order):
            acc = vAc + 16 * (i % 3)
            A(f"v_mfma_f32_32x32x16_bf16 {v(acc,16)}, {v(vWf+4*(n%NB),4)}, {v(vHN+4*k,4)}, {v(acc,16) if k else '0'}")
            budget = 20
            if n + 1 < len(order):
                pre = [tok["wf", n + 1]]
                if n < 56:
                    pre.append(tok["hn", order[n + 1][1]])
                A.wait(*pre)
            nr = n + NB - 1
            if nr < len(order):
                if order[nr] == (5, 0):
                    A.wait(tok["wu", 48])
                    A("s_barrier")
                wread(nr)
            if n == 56:
                A("s_barrier")
            if n < 56:
                if n % 2 == 0 and n // 2 + NPRE < 28:
                    hn_load(n // 2 + NPRE)
                elif n >= 38 and n % 2 == 0:
                    self.wd_load(wd_next[0]); wd_next[0] += 1
            elif wu_left and n % 2 == 1:
                kk = wu_left.pop(0)
                for x in self.wu_prep(kk):
                    A(x)
                    budget -= 4
                self.wu_load(kk)
                budget -= 4
            elif not wu_left and n % 2 == 1 and wd_next[0] < 56:
                self.wd_load(wd_next[0]); wd_next[0] += 1
                budget -= 6
            if k == 27:
                for o in self.gelu_ops(acc, vOut + 4 * (i & 1)):
                    gq.append((n + 4, o))
                gq.append((n + 4, lambda i=i: a_store(i)))
            while gq and gq[0][0] <= n:
                o = gq[0][1]
                c = cost(o) if isinstance(o, str) else 8
                if c > budget:
                    break
                budget -= c
                gq.pop(0)
                A(o) if isinstance(o, str) else o()
            if k == 27 and i >= 2:
                nxt = vAc + 16 * ((i + 1) % 3)
                assert not any(isinstance(o, str) and f"v{nxt+7}," in o + "," for _, o in gq), "accumulator reused before its activation is done"
        assert wd_next[0] == 56, wd_next
        self.stamp("up mfma")
        A.nop(12)
        for _, o in gq:
            A(o) if isinstance(o, str) else o()
        A(f"s_lshl_b32 s{t0}, s{sL}, 2")
        A(f"s_add_u32 s{t0}, s{t0}, s{sW}")
        A(f"s_lshl_b32 s{t0}, s{t0}, 8")
        A(f"s_add_u32 s{t0}, s{t0}, {WS_F3}")
        A.wait(tok["as", 6])
        A(f"buffer_store_dword v4, v{vONE}, {s(rWS,4)}, s{t0} offen sc1")
        self.stamp("f3 sent")

    def p5(self):
        A = self.A
        tok = self.tok
        t0, t1, t2, sA0 = sT[5:9]
        vAcc, vRing, NRING = 16, 80, 24
        vPA, vA0, vA1, vRd, vHo, vOo = 6, 8, 9, 10, 11, 12
        vWr = 13
        vH = 176
        A(f"s_cmp_ge_u32 s{sJ}, 14")
        A("s_cbranch_scc1 L_idle")
        A(f"s_lshl_b32 s{t0}, s{sG}, 4")
        A(f"s_lshl_b32 s{t1}, s{sW}, 2")
        A(f"s_add_u32 s{t0}, s{t0}, s{t1}")
        A(f"s_lshl_b32 s{t0}, s{t0}, 1")
        A(f"s_add_u32 s{t0}, s{t0}, s{sRH}")
        A(f"s_lshl_b32 s{t0}, s{t0}, 9")
        A(f"s_add_u32 s{t0}, s{t0}, {WS_F3}")
        A(f"v_bfe_u32 v{vPA}, v0, 1, 2")
        A(f"v_lshl_add_u32 v{vPA}, v{vPA}, 10, s{t0}")
        A(f"v_and_b32 v{vA0}, 1, v0")
        A(f"v_lshl_add_u32 v{vPA}, v{vA0}, 8, v{vPA}")
        A(f"s_lshl_b32 s{t0}, s{sG}, 1")
        A(f"s_add_u32 s{t0}, s{t0}, s{sRH}")
        A(f"s_lshl_b32 s{t0}, s{t0}, 1")
        A(f"s_mul_i32 s{sA0}, s{t0}, 112")
        A(f"s_mul_i32 s{t1}, s{sW}, 28")
        A(f"s_add_u32 s{sA0}, s{sA0}, s{t1}")
        A(f"s_lshl_b32 s{sA0}, s{sA0}, 10")
        A(f"s_add_u32 s{sA0}, s{sA0}, {WS_A}")
        A(f"s_lshr_b32 s{t1}, s{sW}, 1")
        A(f"s_mul_i32 s{t2}, s{t1}, {112*1024}")
        A(f"v_add_u32 v{vA0}, s{t2}, v1")
        A(f"s_sub_u32 s{t2}, {112*1024}, s{t2}")
        A(f"v_add_u32 v{vA1}, s{t2}, v1")
        A(f"s_add_u32 s{t0}, s{t0}, s{t1}")
        A(f"s_and_b32 s{t1}, s{sW}, 1")
        A(f"s_lshl_b32 s{t2}, s{sCT}, 1")
        A(f"s_add_u32 s{t1}, s{t1}, s{t2}")
        A(f"v_and_b32 v{vOo}, 31, v0")
        A(f"v_lshrrev_b32 v{vRd}, 5, v0")
        A(f"v_lshlrev_b32 v{vHo}, 4, v{vOo}")
        A(f"v_lshl_add_u32 v{vHo}, v{vRd}, 10, v{vHo}")
        A(f"v_mul_u32_u24 v{vOo}, 896, v{vOo}")
        A(f"v_lshl_add_u32 v{vOo}, v{vRd}, 5, v{vOo}")
        A(f"s_mul_i32 s{t0}, s{t0}, {SLOT}")
        A(f"s_lshl_b32 s{t2}, s{t1}, 6")
        A(f"s_add_u32 s{t2}, s{t2}, s{t0}")
        A(f"v_add_u32 v{vOo}, s{t2}, v{vOo}")
        A(f"s_lshl_b32 s{t2}, s{t1}, 11")
        A(f"s_add_u32 s{t2}, s{t2}, s{t0}")
        A(f"s_add_u32 s{t2}, s{t2}, {WS_H}")
        A(f"v_add_u32 v{vHo}, s{t2}, v{vHo}")
        for n in range(1, 4):
            A(f"s_xor_b32 s{t0}, s{sW}, {n}")
            A(f"s_mul_i32 s{t0}, s{t0}, 12288")
            A(f"s_add_u32 s{t0}, s{t0}, {L_SC + (n-1)*4096}")
            A(f"v_add_u32 v{vWr+n-1}, s{t0}, v1")
        A(f"s_mul_i32 s{t0}, s{sW}, 12288")
        A(f"s_add_u32 s{t0}, s{t0}, {L_SC}")
        A(f"v_add_u32 v{vRd}, s{t0}, v1")
        self.poll(vPA, 14 + 162, "x3")
        self.stamp("x3 seen")
        win = [0]
        def a_load(n):
            k, rho = divmod(n, 2)
            if k // 4 != win[0]:
                A(f"s_add_u32 s{sA0}, s{sA0}, {(k // 4 - win[0]) * 4096}")
                win[0] = k // 4
            tok["a", n] = A(f"buffer_load_dwordx4 {v(vRing+4*(n%NRING),4)}, v{vA1 if rho else vA0}, {s(rWS,4)}, s{sA0} offen offset:{(k%4)*1024} sc1")
        NPRE = 12
        for n in range(NPRE):
            a_load(n)
        nl = NPRE
        def mf(k, e, rho):
            d = vAcc + 16 * (2 * rho + e)
            A(f"v_mfma_f32_32x32x16_bf16 {v(d,16)}, {a(8*k+4*e,4)}, {v(vRing+4*((2*k+rho)%NRING),4)}, {v(d,16) if k else '0'}")
        KT = 4
        for k in range(28 - KT):
            A.wait(tok["a", 2 * k + 1])
            for j, (rho, e) in enumerate(((0, 0), (0, 1), (1, 0), (1, 1))):
                mf(k, e, rho)
                if j in (0, 2) and nl < 56:
                    a_load(nl); nl += 1
                if j == 1 and k == 22:
                    A(f"buffer_load_dwordx4 {v(vH,4)}, v{vHo}, {s(rWS,4)}, 0 offen sc1")
                    th = A(f"buffer_load_dwordx4 {v(vH+4,4)}, v{vHo}, {s(rWS,4)}, 0 offen offset:512 sc1")
        assert nl == 56
        A.wait(tok["a", 55])
        def pw(n, rq):
            A(f"ds_write_b128 v{vWr+n-1}, {v(vAcc+16*n+4*rq,4)} offset:{rq*1024}")
        for n in (3, 2, 1, 0):
            for x, k in enumerate(range(28 - KT, 28)):
                mf(k, n & 1, n >> 1)
                if n <= 1:
                    if x == 0:
                        A.nop(7 if n == 1 else 3)
                    pw(n + 2, x)
        A.nop(4)
        for rq in range(4):
            pw(1, rq)
        self.stamp("down mfma")
        A.wait(th)
        A(f"s_mov_b32 s{t0}, 0xffff0000")
        for d in range(8):
            A(f"v_lshlrev_b32 v{vH+8+2*d}, 16, v{vH+d}")
            A(f"v_and_b32 v{vH+8+2*d+1}, s{t0}, v{vH+d}")
        for k in range(8):
            A(f"v_pk_add_f32 {v(vAcc+2*k,2)}, {v(vAcc+2*k,2)}, {v(vH+8+2*k,2)}")
        A.wait_all(vm=False)
        A("s_barrier")
        tr_ = []
        for half in range(2):
            for n in range(3):
                for rq in (2 * half, 2 * half + 1):
                    tr_.append((rq, vRing + 16 * n + 4 * rq, A(f"ds_read_b128 {v(vRing+16*n+4*rq,4)}, v{vRd} offset:{n*4096+rq*1024}")))
        for half in range(2):
            for rq, reg, tk in tr_[6 * half: 6 * half + 6]:
                A.wait(tk)
                for k in range(2):
                    A(f"v_pk_add_f32 {v(vAcc+4*rq+2*k,2)}, {v(vAcc+4*rq+2*k,2)}, {v(reg+2*k,2)}")
            for k in range(4):
                A(f"v_cvt_pk_bf16_f32 v{vH+4*half+k}, v{vAcc+8*half+2*k}, v{vAcc+8*half+2*k+1}")
            A(f"buffer_store_dwordx4 {v(vH+4*half,4)}, v{vOo}, {s(rOUT,4)}, 0 offen offset:{16*half}")
        self.stamp("out stored")

    def tail(self):
        A = self.A
        if self.stop in ("setup", "p1"):
            return
        A.label("L_f1b_spin")
        self.poll(7, 11, "f1b")
        A("s_branch L_f1b_ok")
        A.label("L_maxpass")
        self.maxpass()
        A("s_branch L_attn_main")
        if self.stop == "p2":
            return
        A.label("L_redo")
        A(f"s_mov_b32 s{sMODE}, 1")
        A.wait_all()
        A("s_barrier")
        A("s_branch L_attn")
        if self.stop in ("p3", "p4"):
            return
        A.label("L_idle")
        t0 = sT[5]
        A(f"s_cmp_lg_u32 s{sL}, 15")
        A("s_cbranch_scc1 L_idle_end")
        A(f"s_lshl_b32 s{t0}, s{sW}, 13")
        A(f"s_add_u32 s{t0}, s{t0}, {WS_F1}")
        A(f"v_lshl_add_u32 v6, v0, 7, s{t0}")
        self.poll(6, 8, "all")
        A("s_barrier")
        A(f"s_cmp_lg_u32 s{sW}, 0")
        A("s_cbranch_scc1 L_idle_end")
        A(f"buffer_store_dword v4, v{vONE}, {s(rWS,4)}, 0 offen sc1")
        A.label("L_idle_end")
        self.end()

    def maxpass(self):
        A = self.A
        vQ, vS = self.vQ, self.vS
        t0, t1 = sT[5:7]
        vM, vK = 48, 56
        A.wait_all()
        A("s_barrier")
        for n in range(4):
            A(f"v_mov_b32 v{vM+n}, 0xff800000")
        A(f"s_lshl_b32 s{t0}, s{sW}, 16")
        A(f"s_add_u32 s{t0}, s{t0}, {WS_KV}")
        A(f"s_mov_b32 s{t1}, 0")
        A.label("L_mp_loop")
        A(f"buffer_load_dwordx4 {v(vK,4)}, v1, {s(rWS,4)}, s{t0} offen sc1")
        A(f"buffer_load_dwordx4 {v(vK+4,4)}, v1, {s(rWS,4)}, s{t0} offen offset:1024 sc1")
        A.wait_all(lg=False)
        for n in range(4):
            A(f"v_mfma_f32_32x32x16_bf16 {v(vS,16)}, {v(vK,4)}, {v(vQ+8*n,4)}, 0")
            A(f"v_mfma_f32_32x32x16_bf16 {v(vS,16)}, {v(vK+4,4)}, {v(vQ+8*n+4,4)}, {v(vS,16)}")
            A.nop(12)
            for k in range(8):
                A(f"v_max3_f32 v{vM+n}, v{vM+n}, v{vS+2*k}, v{vS+2*k+1}")
        A(f"s_add_u32 s{t0}, s{t0}, 4096")
        A(f"s_add_u32 s{t1}, s{t1}, 1")
        A(f"s_cmp_lt_u32 s{t1}, 16")
        A("s_cbranch_scc1 L_mp_loop")
        A("v_lshlrev_b32 v64, 2, v0")
        for n in range(4):
            A(f"s_add_u32 s{t0}, s{sW}, {n+1}")
            A(f"s_and_b32 s{t0}, s{t0}, 3")
            A(f"s_lshl_b32 s{t0}, s{t0}, 10")
            A(f"s_add_u32 s{t0}, s{t0}, {L_SC}")
            A(f"v_and_b32 v65, 31, v0")
            A(f"v_lshl_add_u32 v{68+n}, v65, 2, s{t0}")
            A(f"s_lshl_b32 s{t1}, s{sW}, 8")
            A(f"s_add_u32 s{t0}, s{t0}, s{t1}")
            A(f"v_add_u32 v65, s{t0}, v64")
            A(f"ds_write_b32 v65, v{vM+n}")
        A.wait_all(vm=False)
        A("s_barrier")
        for n in range(4):
            for k in range(8):
                A(f"ds_read_b32 v{72+k}, v{68+n} offset:{128*k}")
            A.wait_all(vm=False)
            A("v_max3_f32 v72, v72, v73, v74")
            A("v_max3_f32 v72, v72, v75, v76")
            A("v_max3_f32 v72, v72, v77, v78")
            A("v_max_f32 v72, v72, v79")
            A("v_sub_f32 v72, 0, v72")
            A("v_and_b32 v73, 0xffff0000, v72")
            A("v_sub_f32 v72, v72, v73")
            A("v_and_b32 v74, 0xffff0000, v72")
            A("v_sub_f32 v72, v72, v74")
            A("v_lshrrev_b32 v73, 16, v73")
            A("v_or_b32 v73, v73, v74")
            A("v_lshrrev_b32 v72, 16, v72")
            A("s_mov_b32 exec_lo, 0")
            A(f"v_mov_b32 v{vQ+8*n+6}, v73")
            A(f"v_mov_b32 v{vQ+8*n+7}, v72")
            A("s_mov_b32 exec_lo, -1")
        A("s_barrier")

    def build(self):
        A = self.A
        head = open("sequential_preLN__grouped_kv_mqa__geglu_ffn__prompt.s.ref").read().splitlines()
        for line in head:
            if line.startswith("; Override"):
                break
            A.raw(line)
        A.raw(f"; @launch grid=(256,1,1) block=(256,1,1) lds={LDS_BYTES}")
        A.raw('.amdgcn_target "amdgcn-amd-amdhsa--gfx950"')
        A.raw(".text")
        A.raw(f".globl {KNAME}")
        A.raw(".p2align 8")
        A.raw(f".type {KNAME},@function")
        A.label(KNAME)
        phases = [("setup", self.setup), ("p1", self.p1)]
        for nm in ("p2", "p3", "p4", "p5"):
            if hasattr(self, nm):
                phases.append((nm, getattr(self, nm)))
        for nm, fn in phases:
            A.comment(f"================ {nm} ================")
            fn()
            if self.stop == nm:
                break
        self.end()
        if hasattr(self, "tail"):
            self.tail()
        A.label("L_exit")
        A("s_endpgm")
        A.raw('.section .rodata,"a"')
        A.raw(".p2align 6")
        A.raw(f".amdhsa_kernel {KNAME}")
        for d in ("next_free_vgpr 512", "next_free_sgpr 102", "accum_offset 256", "group_segment_fixed_size 0",
                  "kernarg_size 96", "user_sgpr_count 2", "user_sgpr_kernarg_segment_ptr 1", "system_sgpr_workgroup_id_x 1"):
            A.raw("  .amdhsa_" + d)
        A.raw(".end_amdhsa_kernel")
        return A.text()


if __name__ == "__main__":
    import argparse
    ap = argparse.ArgumentParser()
    ap.add_argument("-o", default="k.s")
    ap.add_argument("--stop")
    ap.add_argument("--stamps", action="store_true")
    ap.add_argument("--dbg", type=int)
    ap.add_argument("--amp")
    args = ap.parse_args()
    txt = Gen(args.stop, args.stamps, args.dbg, tuple(map(int, args.amp.split(','))) if args.amp else None).build()
    open(args.o, "w").write(txt)
    lint(txt)
```

```python
import sys, math, struct
from asmlib import *

KNAME = "sequential_preLN__grouped_kv_mqa__geglu_ffn__prompt_kernel"

WS_REF = 0
WS_F1 = 0x1000
WS_F1B = 0x9000
WS_F2 = 0x20000
WS_KV = 0x80000
WS_WO = 0xC0000
WS_STAMP = 0x140000
WS_Q = 0x200000
WS_HN = WS_Q
WS_H = 0x400000
WS_WD = 0x600000
WS_A = 0x800000
WS_END = 0xF00000

SLOT = 28672
L_SC = 4 * SLOT
L_XN = L_SC
L_JOB = L_SC + SLOT
L_Q = L_SC
L_ST = 160768
LDS_BYTES = 163840
OB_STRIDE = 288

def f32(x):
    return "0x%08x" % struct.unpack("<I", struct.pack("<f", x))[0]

sB = 2
sPX, sPWQ, sPWK, sPWV, sPWO, sPWS, sPWG, sPWU, sPWD, sPOUT = 4, 6, 8, 10, 12, 14, 16, 18, 20, 22
rWS, rX, rW, rJA, rWU, rSP, rOUT, rSA, rSB = 24, 28, 32, 36, 40, 44, 48, 52, 56
sL, sW, sRT, sC, sG, sJ, sTAG, sXCC, sREF, sMODE = 60, 61, 62, 63, 64, 65, 66, 67, 68, 69
sCT, sRH = 70, 71
sLOC = 3
sT = list(range(72, 88)) + list(range(94, 102))
sSTAMP = 88
sSPIN = 91
sEX = 92
vONE = 2
SPIN_MAX = 400000


def srd(A, r, ptr, size):
    A(f"s_mov_b32 s{r}, s{ptr}")
    A(f"s_mov_b32 s{r+1}, s{ptr+1}")
    A(f"s_mov_b32 s{r+2}, {size}")
    A(f"s_mov_b32 s{r+3}, 0x00020000")


DEFAULTS = dict(itstamp=0, x1_sleep=4, x1_backoff=2, loc=1, it_raw=1, it_tr=4, it_fb=12, it_touch=13, n_wu_x1=6, cap=7,
                wu_nt=1, wo_pace=4, x2_pre=6, n_fa=176, n_pa=190, n_ta=198, k_fb=3, k_pb=10, k_tb=16, k_fc=22, k_pc=28, k_tc=33,
                help_touch=1, a_far=0)


class Gen:
    def __init__(self, stop=None, stamps=False, dbg=None, amp=None, params=None):
        self.P = dict(DEFAULTS)
        self.P.update(params or {})
        self.dbg = dbg
        self.amp = amp
        self.A = Asm()
        self.stop = stop
        self.stamps = stamps
        self.nstamp = 0
        self.uid = 0
        self.far = []
        self.spins = []

    def lab(self, base):
        self.uid += 1
        return f"L_{base}_{self.uid}"

    def stamp(self, name):
        if not self.stamps:
            return
        A = self.A
        A.raw(f"    s_memrealtime s[{sSTAMP}:{sSTAMP+1}]")
        A.raw(f"    s_memtime s[{sEX}:{sEX+1}]")
        A.raw("    s_waitcnt lgkmcnt(0)")
        A.lg_done = A.lg
        A(f"v_writelane_b32 v255, s{sSTAMP}, {self.nstamp}")
        A(f"v_writelane_b32 v255, s{sEX}, {self.nstamp + 32}")
        self.nstamp += 1

    def stamp_flush(self):
        if not self.stamps:
            return
        A = self.A
        A(f"s_lshl_b32 s{sT[0]}, s{sL}, 2")
        A(f"s_add_u32 s{sT[0]}, s{sT[0]}, s{sW}")
        A(f"s_lshl_b32 s{sT[0]}, s{sT[0]}, 8")
        A(f"s_add_u32 s{sT[0]}, s{sT[0]}, {WS_STAMP}")
        A("v_mbcnt_lo_u32_b32 v254, -1, 0")
        A("v_mbcnt_hi_u32_b32 v254, -1, v254")
        A("v_lshlrev_b32 v254, 2, v254")
        A(f"buffer_store_dword v255, v254, {s(rWS,4)}, s{sT[0]} offen")
        if self.dbg is not None:
            l = self.lab("nodbg")
            A(f"s_lshl_b32 s{sT[0]}, s{sL}, 2")
            A(f"s_add_u32 s{sT[0]}, s{sT[0]}, s{sW}")
            A(f"s_cmp_lg_u32 s{sT[0]}, {self.dbg}")
            A(f"s_cbranch_scc1 {l}")
            A(f"s_load_dwordx2 s[{rJA}:{rJA+1}], s[0:1], 80")
            A(f"s_mov_b32 s{rJA+2}, 64")
            A(f"s_mov_b32 s{rJA+3}, 0x00020000")
            A(f"v_readlane_b32 s{sT[0]}, v255, 0")
            A("v_lshrrev_b32 v254, 1, v254")
            A.wait_all()
            A(f"v_subrev_u32 v255, s{sT[0]}, v255")
            A(f"buffer_store_short v255, v254, {s(rJA,4)}, 0 offen")
            if self.amp:
                i, j = self.amp
                l2 = self.lab("amp")
                A(f"v_readlane_b32 s{sT[0]}, v255, {i}")
                A(f"v_readlane_b32 s{sT[1]}, v255, {j}")
                A.raw(f"    s_memrealtime s[{sSTAMP}:{sSTAMP+1}]")
                A(f"s_sub_u32 s{sT[0]}, s{sT[1]}, s{sT[0]}")
                A(f"s_min_u32 s{sT[0]}, s{sT[0]}, 20000")
                A(f"s_lshl_b32 s{sT[0]}, s{sT[0]}, 2")
                A.raw("    s_waitcnt lgkmcnt(0)")
                A(f"s_add_u32 s{sT[0]}, s{sT[0]}, s{sSTAMP}")
                A.label(l2)
                A.raw(f"    s_memrealtime s[{sSTAMP}:{sSTAMP+1}]")
                A.raw("    s_waitcnt lgkmcnt(0)")
                A(f"s_sub_u32 s{sT[1]}, s{sSTAMP}, s{sT[0]}")
                A(f"s_cmp_lt_i32 s{sT[1]}, 0")
                A(f"s_cbranch_scc1 {l2}")
            A.label(l)

    def xstore(self, *texts, cond="scc"):
        A = self.A
        ls, lb = self.lab("far"), self.lab("back")
        if cond == "scc":
            A(f"s_cmp_eq_u32 s{sLOC}, 0")
            A(f"s_cbranch_scc1 {ls}")
        else:
            A(f"s_cbranch_vccnz {ls}")
        for t in texts:
            tk = A(t)
        A.label(lb)
        self.far.append((ls, lb, texts))
        return tk

    def end(self):
        self.stamp_flush()
        self.A("s_endpgm")

    def poll(self, vaddr, vtmp, name, width=1, backoff=0, imm=0):
        A = self.A
        l0, l1 = self.lab(name), self.lab(name + "_ok")
        A(f"s_mov_b32 s{sSPIN}, 0")
        A.label(l0)
        if backoff:
            A(f"s_sleep {backoff}")
        if width == 1:
            A(f"buffer_load_dword v{vtmp}, v{vaddr}, {s(rWS,4)}, 0 offen offset:{imm} sc1")
        else:
            A(f"buffer_load_dwordx2 {v(vtmp,2)}, v{vaddr}, {s(rWS,4)}, 0 offen sc1")
        A.wait_all(lg=False)
        A(f"v_cmp_ne_u32 vcc, s{sTAG}, v{vtmp}")
        A(f"s_add_u32 s{sSPIN}, s{sSPIN}, 1")
        A(f"s_cbranch_vccz {l1}")
        A(f"s_cmp_lt_u32 s{sSPIN}, {SPIN_MAX}")
        A(f"s_cbranch_scc1 {l0}")
        A.label(l1)

    def setup(self):
        A = self.A
        A(f"s_cmp_ge_u32 s{sB}, 256")
        A("s_cbranch_scc1 L_exit")
        if self.stamps:
            A("v_mov_b32 v255, 0")
        self.stamp("entry")
        A("s_load_dwordx8 s[4:11], s[0:1], 0")
        A("s_load_dwordx2 s[12:13], s[0:1], 32")
        A("s_load_dwordx2 s[14:15], s[0:1], 88")
        A("s_load_dwordx8 s[16:23], s[0:1], 48")
        A("v_lshrrev_b32 v1, 6, v0")
        A("v_and_b32 v0, 63, v0")
        A(f"v_readfirstlane_b32 s{sW}, v1")
        A(f"s_and_b32 s{sL}, s{sB}, 7")
        A(f"s_lshl_b32 s{sL}, s{sL}, 5")
        A(f"s_lshr_b32 s{sT[0]}, s{sB}, 3")
        A(f"s_add_u32 s{sL}, s{sL}, s{sT[0]}")
        A(f"s_lshr_b32 s{sRT}, s{sL}, 2")
        A(f"s_and_b32 s{sC}, s{sL}, 3")
        A(f"s_lshr_b32 s{sG}, s{sL}, 5")
        A(f"s_and_b32 s{sJ}, s{sL}, 31")
        A(f"s_getreg_b32 s{sXCC}, hwreg(HW_REG_XCC_ID, 0, 4)")
        A(f"s_mul_i32 s{sRH}, s{sJ}, 37")
        A(f"s_lshr_b32 s{sRH}, s{sRH}, 8")
        A(f"s_mul_i32 s{sT[0]}, s{sRH}, 7")
        A(f"s_sub_u32 s{sCT}, s{sJ}, s{sT[0]}")
        A(f"s_mov_b32 s{sMODE}, 0")

    def p1(self):
        A = self.A
        (rot, xb, ct1, ci, jid, jaE, jaE2, wB, wN, wC, lB, lC, wcur, t0, t1, t2,
         jaS, jaS2, jaD, jobl) = sT[:20]
        vL, vL16 = 0, 1
        vXo, vWo, vJAo, vJBo = 2, 3, 4, 5
        vX = 8
        vJAt, vWt, vRR, vCC, vH, vMH, vK8, vT0, vXw, vL32, vT1, vT2 = range(52, 64)
        vF = 64
        vTmp = 120
        vXr = 124
        vJA1, vJA2, vJA3, vJR = 200, 201, 202, 204
        A(f"v_lshlrev_b32 v{vL16}, 4, v{vL}")
        A(f"v_lshrrev_b32 v6, 3, v{vL}")
        A(f"v_and_b32 v7, 7, v{vL}")
        A(f"v_mul_u32_u24 v{vXo}, 896, v6")
        A(f"v_lshl_add_u32 v{vXo}, v7, 4, v{vXo}")
        A(f"s_and_b32 s{rot}, s{sRT}, 7")
        A(f"s_cmp_eq_u32 s{rot}, 7")
        A(f"s_cselect_b32 s{rot}, 0, s{rot}")
        A(f"s_lshl_b32 s{xb}, s{sRT}, 2")
        A(f"s_add_u32 s{xb}, s{xb}, s{sW}")
        A(f"s_mul_i32 s{xb}, s{xb}, {8*896}")
        A(f"s_lshl_b32 s{ct1}, s{sC}, 2")
        A(f"s_add_u32 s{ct1}, s{ct1}, s{sW}")
        A(f"v_bfe_u32 v{vRR}, v{vL}, 2, 2")
        A(f"v_and_b32 v{vCC}, 3, v{vL}")
        A(f"v_lshrrev_b32 v{vH}, 5, v{vL}")
        A(f"v_bfe_u32 v{vMH}, v{vL}, 4, 1")
        A(f"v_lshl_add_u32 v{vK8}, v{vH}, 3, v{vRR}")
        lkv, lj2 = self.lab("w_kv"), self.lab("w_join")
        A(f"s_and_b32 s{t0}, s{sW}, 1")
        A(f"s_cmp_ge_u32 s{ct1}, 14")
        A(f"s_cbranch_scc1 {lkv}")
        A(f"s_lshr_b32 s{wB}, s{ct1}, 1")
        A(f"s_lshl_b32 s{wB}, s{wB}, 7")
        A(f"s_mul_i32 s{wN}, s{t0}, {32*896}")
        A(f"s_add_u32 s{wB}, s{wB}, s{wN}")
        A(f"s_mov_b32 s{wN}, {8*896-1024}")
        A(f"s_mov_b32 s{wC}, {64*896}")
        A(f"s_lshr_b32 s{lB}, s{sW}, 1")
        A(f"s_mul_i32 s{lB}, s{lB}, {2*SLOT}")
        A(f"v_lshlrev_b32 v{vWt}, 7, v{vK8}")
        A(f"v_lshrrev_b32 v{vT0}, 1, v{vRR}")
        A(f"v_xor_b32 v{vT0}, s{t0}, v{vT0}")
        A(f"v_lshl_add_u32 v{vWt}, v{vT0}, 6, v{vWt}")
        A(f"v_add_u32 v{vWt}, s{lB}, v{vWt}")
        A(f"s_lshl_b32 s{lC}, s{t0}, 12")
        A(f"s_add_u32 s{lB}, s{lB}, s{lC}")
        A(f"s_mov_b32 s{lC}, 8192")
        A(f"v_lshlrev_b32 v{vT0}, 6, v{vMH}")
        A(f"v_xor_b32 v{vWo}, v{vXo}, v{vT0}")
        A(f"s_branch {lj2}")
        A.label(lkv)
        A(f"s_mov_b32 s{wB}, 0")
        A(f"s_mov_b32 s{wN}, 0")
        A(f"s_mov_b32 s{wC}, {64*56}")
        A(f"s_mul_i32 s{lB}, s{sW}, {SLOT}")
        A(f"s_mov_b32 s{lC}, 4096")
        A(f"v_mul_u32_u24 v{vWt}, 56, v{vK8}")
        A(f"v_add_u32 v{vWt}, s{lB}, v{vWt}")
        A(f"v_mov_b32 v{vWo}, v{vL16}")
        A.label(lj2)
        A(f"v_lshl_add_u32 v{vWt}, v{vMH}, 5, v{vWt}")
        A(f"v_lshl_add_u32 v{vWt}, v{vCC}, 3, v{vWt}")
        A(f"s_mov_b32 s{rX+2}, {2048*896}")
        A(f"s_mov_b32 s{rX+3}, 0x00020000")
        A(f"s_mov_b32 s{rW+3}, 0x00020000")
        A(f"s_mov_b32 s{ci}, s{rot}")
        A.wait_all(vm=False)
        self.stamp("kernarg")
        A(f"s_mov_b32 s{rX}, s{sPX}")
        A(f"s_mov_b32 s{rX+1}, s{sPX+1}")
        tx = []
        for i in range(7):
            A(f"s_lshl_b32 s{t0}, s{ci}, 7")
            A(f"s_add_u32 s{t0}, s{t0}, s{xb}")
            tx.append(A(f"buffer_load_dwordx4 {v(vX+4*i,4)}, v{vXo}, {s(rX,4)}, s{t0} offen"))
            if i < 6:
                A(f"s_add_u32 s{ci}, s{ci}, 1")
                A(f"s_cmp_eq_u32 s{ci}, 7")
                A(f"s_cselect_b32 s{ci}, 0, s{ci}")
        A(f"s_cmp_eq_u32 s{ct1}, 14")
        A(f"s_cselect_b32 s{rW}, s{sPWK}, s{sPWV}")
        A(f"s_cselect_b32 s{rW+1}, s{sPWK+1}, s{sPWV+1}")
        A(f"s_cmp_lt_u32 s{ct1}, 14")
        A(f"s_cselect_b32 s{rW}, s{sPWQ}, s{rW}")
        A(f"s_cselect_b32 s{rW+1}, s{sPWQ+1}, s{rW+1}")
        A(f"s_mov_b32 s{t0}, {448*56}")
        A(f"s_cselect_b32 s{rW+2}, {448*896}, s{t0}")
        A(f"s_mov_b32 s{ci}, s{rot}")
        tok = {}
        side = []
        def wload(i, n):
            def f():
                if n == 0:
                    if i > 0:
                        A(f"s_add_u32 s{lB}, s{lB}, s{lC}")
                        A(f"s_add_u32 s{ci}, s{ci}, 1")
                        A(f"s_cmp_eq_u32 s{ci}, 7")
                        A(f"s_cselect_b32 s{ci}, 0, s{ci}")
                    A(f"s_mul_i32 s{wcur}, s{ci}, s{wC}")
                    A(f"s_mov_b32 m0, s{lB}")
                    A(f"s_add_u32 s{wcur}, s{wcur}, s{wB}")
                else:
                    A(f"s_add_u32 s{wcur}, s{wcur}, s{wN}")
                tok["w", i] = A(f"buffer_load_dwordx4 v{vWo}, {s(rW,4)}, s{wcur} offen offset:{n*1024} lds")
            return f
        for i in range(7):
            for n in range(4):
                side.append(wload(i, n))
        def ja_load():
            A(f"s_mov_b32 m0, s{jobl}")
            A.nop(1)
            A(f"buffer_load_dwordx4 v{vJAo}, {s(rJA,4)}, s{jaS} offen lds")
            tok["ja"] = A(f"buffer_load_dwordx4 v{vJAo}, {s(rJA,4)}, s{jaS2} offen offset:1024 lds")
        def ja_read():
            A.wait(tok["ja"])
            A(f"ds_read_b64_tr_b16 {v(vJR,2)}, v{vJAt}")
            A(f"ds_read_b64_tr_b16 {v(vJR+2,2)}, v{vJA1}")
            A(f"ds_read_b64_tr_b16 {v(vJR+4,2)}, v{vJA2}")
            A(f"ds_read_b64_tr_b16 {v(vJR+6,2)}, v{vJA3}")
        def ja_store():
            A(f"buffer_store_dwordx4 {v(vJR,4)}, v{vL16}, {s(rSA,4)}, s{jaD} offen sc1")
            A(f"buffer_store_dwordx4 {v(vJR+4,4)}, v{vL16}, {s(rSA,4)}, s{jaD} offen offset:1024 sc1")
        def pop(n=1):
            for _ in range(n):
                if side:
                    side.pop(0)()
        pop(4)
        A(f"s_load_dword s{sREF}, s[{sPWS}:{sPWS+1}], {WS_REF}")
        A(f"s_lshl_b32 s{t0}, s{sL}, 7")
        A(f"s_add_u32 s{t0}, s{t0}, {WS_F1}")
        A(f"s_add_u32 s{t1}, s{t0}, {WS_F1B - WS_F1}")
        A(f"s_load_dword s{rSP}, s[{sPWS}:{sPWS+1}], s{t0}")
        A(f"s_load_dword s{rSP+1}, s[{sPWS}:{sPWS+1}], s{t1}")
        A(f"s_add_u32 s{t1}, s{t0}, {WS_F2 - WS_F1}")
        A(f"s_load_dword s{rSP+2}, s[{sPWS}:{sPWS+1}], s{t1}")
        srd(A, rWS, sPWS, WS_END)
        pop(4)
        A(f"s_lshl_b32 s{jid}, s{sL}, 2")
        A(f"s_add_u32 s{jid}, s{jid}, s{sW}")
        lwo, ljoin = self.lab("ja_wo"), self.lab("ja_join")
        A(f"s_mov_b32 s{rJA+3}, 0x00020000")
        A(f"s_cmp_ge_u32 s{jid}, 784")
        A(f"s_cbranch_scc1 {lwo}")
        A(f"s_mov_b32 s{rJA}, s{sPWD}")
        A(f"s_mov_b32 s{rJA+1}, s{sPWD+1}")
        A(f"s_mov_b32 s{rJA+2}, 0")
        A(f"s_mul_i32 s{t0}, s{sL}, 2341")
        A(f"s_lshr_b32 s{t0}, s{t0}, 16")
        A(f"s_mul_i32 s{t1}, s{t0}, 112")
        A(f"s_sub_u32 s{t1}, s{jid}, s{t1}")
        A(f"s_mul_i32 s{jaS}, s{t1}, {16*896}")
        A(f"s_lshl_b32 s{t0}, s{t0}, 7")
        A(f"s_add_u32 s{jaS}, s{jaS}, s{t0}")
        A(f"s_add_u32 s{jaS2}, s{jaS}, {8*896-1024}")
        A(f"s_mov_b32 s{jaE}, 512")
        A(f"s_mov_b32 s{jaE2}, 64")
        A(f"s_lshl_b32 s{jaD}, s{jid}, 11")
        A(f"s_add_u32 s{jaD}, s{jaD}, {WS_WD}")
        A(f"v_mov_b32 v{vJAo}, v{vXo}")
        A(f"v_lshlrev_b32 v{vJAt}, 7, v{vK8}")
        A(f"v_and_b32 v{vT0}, 1, v{vCC}")
        A(f"v_lshl_add_u32 v{vJAt}, v{vT0}, 4, v{vJAt}")
        A(f"v_lshl_add_u32 v{vJAt}, v{vMH}, 5, v{vJAt}")
        A(f"v_lshrrev_b32 v{vT0}, 1, v{vCC}")
        A(f"v_lshl_add_u32 v{vJAt}, v{vT0}, 3, v{vJAt}")
        A(f"s_branch {ljoin}")
        A.label(lwo)
        A(f"s_mov_b32 s{rJA}, s{sPWO}")
        A(f"s_mov_b32 s{rJA+1}, s{sPWO+1}")
        A(f"s_cmp_lt_u32 s{jid}, 1008")
        A(f"s_cselect_b32 s{rJA+2}, {448*896}, 0")
        A(f"s_sub_u32 s{t0}, s{jid}, 784")
        A(f"s_lshl_b32 s{jaD}, s{t0}, 11")
        A(f"s_add_u32 s{jaD}, s{jaD}, {WS_WO}")
        A(f"s_mul_i32 s{t1}, s{t0}, 1171")
        A(f"s_lshr_b32 s{t1}, s{t1}, 16")
        A(f"s_mul_i32 s{t2}, s{t1}, 56")
        A(f"s_sub_u32 s{t2}, s{t0}, s{t2}")
        A(f"s_lshr_b32 s{t2}, s{t2}, 2")
        A(f"s_and_b32 s{t0}, s{t0}, 3")
        A(f"s_mul_i32 s{jaS}, s{t2}, {32*896}")
        A(f"s_mul_i32 s{t1}, s{t1}, 224")
        A(f"s_add_u32 s{jaS}, s{jaS}, s{t1}")
        A(f"s_lshl_b32 s{t1}, s{t0}, 6")
        A(f"s_add_u32 s{jaS}, s{jaS}, s{t1}")
        A(f"s_add_u32 s{jaS2}, s{jaS}, {16*896-1024}")
        A(f"s_mov_b32 s{jaE}, 256")
        A(f"s_mov_b32 s{jaE2}, 8")
        A(f"s_cmp_eq_u32 s{t0}, 3")
        A(f"s_cselect_b32 s{t0}, 3, 4")
        A(f"v_lshrrev_b32 v{vT0}, 2, v{vL}")
        A(f"v_mul_u32_u24 v{vJAo}, 896, v{vT0}")
        A(f"v_lshl_add_u32 v{vJAo}, v{vCC}, 4, v{vJAo}")
        A(f"v_lshrrev_b32 v{vT0}, 4, v{vL}")
        A(f"v_lshl_add_u32 v{vT0}, v{vT0}, 3, v{vRR}")
        A(f"v_lshlrev_b32 v{vJAt}, 6, v{vT0}")
        A(f"v_lshlrev_b32 v{vT0}, s{t0}, v{vCC}")
        A(f"v_add_u32 v{vJAt}, v{vJAt}, v{vT0}")
        A.label(ljoin)
        A(f"s_mul_i32 s{jobl}, s{sW}, 5120")
        A(f"s_add_u32 s{jobl}, s{jobl}, {L_JOB}")
        A(f"v_add_u32 v{vJAt}, s{jobl}, v{vJAt}")
        ja_load()
        A(f"v_add_u32 v{vJA1}, s{jaE}, v{vJAt}")
        A(f"v_add_u32 v{vJA2}, s{jaE2}, v{vJAt}")
        A(f"v_add_u32 v{vJA3}, s{jaE2}, v{vJA1}")
        A(f"s_cmp_lt_u32 s{sW}, 2")
        A(f"s_cselect_b32 s{rWU}, s{sPWG}, s{sPWU}")
        A(f"s_cselect_b32 s{rWU+1}, s{sPWG+1}, s{sPWU+1}")
        A(f"s_cmp_lt_u32 s{sJ}, 28")
        A(f"s_cselect_b32 s{rWU+2}, {448*3584}, 0")
        A(f"s_mov_b32 s{rWU+3}, 0x00020000")
        A(f"s_and_b32 s{t0}, s{sW}, 2")
        A(f"v_or_b32 v{vT0}, s{t0}, v{vMH}")
        A(f"v_lshlrev_b32 v{vT0}, 1, v{vT0}")
        A(f"v_xor_b32 v{vT0}, v7, v{vT0}")
        A(f"v_mul_u32_u24 v{vJBo}, 3584, v6")
        A(f"v_lshl_add_u32 v{vJBo}, v{vT0}, 4, v{vJBo}")
        pop()
        A(f"s_cmp_lt_u32 s{jid}, 784")
        A(f"s_cselect_b32 s{t1}, {WS_END}, 0")
        srd(A, rSB, sPWS, f"s{t1}")
        pop()
        A(f"s_cmp_lg_u32 s{rJA+2}, 0")
        A(f"s_cselect_b32 s{t1}, {WS_END}, 0")
        srd(A, rSA, sPWS, f"s{t1}")
        srd(A, rOUT, sPOUT, 2048 * 896)
        A(f"s_lshl_b32 s{t0}, s{sW}, 3")
        A(f"v_xor_b32 v{vXw}, v6, v7")
        A(f"v_add_u32 v{vXw}, s{t0}, v{vXw}")
        A(f"v_lshlrev_b32 v{vXw}, 4, v{vXw}")
        A(f"v_lshl_add_u32 v{vXw}, v7, 9, v{vXw}")
        A(f"v_add_u32 v{vXw}, {L_XN}, v{vXw}")
        A(f"v_and_b32 v{vL32}, 31, v{vL}")
        pop()
        for q in range(4):
            A(f"v_add_u32 v{vT0}, {2*q}, v{vH}")
            A(f"v_xor_b32 v{vT1}, v{vL32}, v{vT0}")
            A(f"v_lshlrev_b32 v{vT1}, 4, v{vT1}")
            A(f"v_lshl_add_u32 v{vT1}, v{vT0}, 9, v{vT1}")
            A(f"v_add_u32 v{vXr+q}, {L_XN}, v{vT1}")
        pop()
        A(f"s_mov_b32 s{t0}, 0xffff0000")
        for i in range(7):
            A.wait(tx[i])
            if i in (1, 3, 5, 6):
                pop()
            for k in range(4):
                A(f"v_lshlrev_b32 v{vF+8*i+2*k}, 16, v{vX+4*i+k}")
                A(f"v_and_b32 v{vF+8*i+2*k+1}, s{t0}, v{vX+4*i+k}")
            if i == 0:
                A(f"v_pk_add_f32 {v(vTmp,2)}, {v(vF,2)}, {v(vF+2,2)}")
                A(f"v_pk_add_f32 {v(vTmp+2,2)}, {v(vF+4,2)}, {v(vF+6,2)}")
            else:
                for k in range(4):
                    d = vTmp + 2 * (k & 1)
                    A(f"v_pk_add_f32 {v(d,2)}, {v(d,2)}, {v(vF+8*i+2*k,2)}")
        self.stamp("x arrived")
        def red8():
            A(f"v_pk_add_f32 {v(vTmp,2)}, {v(vTmp,2)}, {v(vTmp+2,2)}")
            A(f"v_add_f32 v{vTmp}, v{vTmp}, v{vTmp+1}")
            for n, m in enumerate(("quad_perm:[1,0,3,2]", "quad_perm:[2,3,0,1]", "row_half_mirror")):
                if n == 1:
                    pop()
                else:
                    A.nop(2)
                A(f"v_add_f32_dpp v{vTmp}, v{vTmp}, v{vTmp} {m} row_mask:0xf bank_mask:0xf")
        red8()
        A(f"v_mul_f32 v{vTmp}, {f32(-1.0/448)}, v{vTmp}")
        for k in range(28):
            A(f"v_pk_add_f32 {v(vF+2*k,2)}, {v(vF+2*k,2)}, {v(vTmp,2)} op_sel_hi:[1,0]")
            if k == 14:
                pop()
        A(f"v_pk_mul_f32 {v(vTmp,2)}, {v(vF,2)}, {v(vF,2)}")
        A(f"v_pk_mul_f32 {v(vTmp+2,2)}, {v(vF+2,2)}, {v(vF+2,2)}")
        for k in range(2, 28):
            d = vTmp + 2 * (k & 1)
            A(f"v_pk_fma_f32 {v(d,2)}, {v(vF+2*k,2)}, {v(vF+2*k,2)}, {v(d,2)}")
            if k == 10:
                pop()
        red8()
        A(f"v_mov_b32 v{vTmp+1}, {f32(1e-5)}")
        A(f"v_fmamk_f32 v{vTmp}, v{vTmp}, {f32(1.0/448)}, v{vTmp+1}")
        A(f"v_rsq_f32 v{vTmp}, v{vTmp}")
        ja_read()
        for i in range(7):
            for k in range(4):
                A(f"v_pk_mul_f32 {v(vF+8*i+2*k,2)}, {v(vF+8*i+2*k,2)}, {v(vTmp,2)} op_sel_hi:[1,0]")
            for k in range(4):
                A(f"v_cvt_pk_bf16_f32 v{vX+4*i+k}, v{vF+8*i+2*k}, v{vF+8*i+2*k+1}")
            A(f"ds_write_b128 v{vXw}, {v(vX+4*i,4)} offset:{i*4096}")
            if i in (0, 2, 4, 6):
                pop()
        A.wait_all(vm=False)
        ja_store()
        self.stamp("ln1 done")
        A(f"s_mul_i32 s{sTAG}, s{sREF}, 0x9E3779B1")
        A(f"s_add_u32 s{sTAG}, s{sTAG}, 0x7F4A7C15")
        vAcc, vWf, vXf, NB = 128, 144, 176, 5
        lK, lV, lE = self.lab("g_k"), self.lab("g_v"), self.lab("g_end")
        A(f"s_cmp_eq_u32 s{ct1}, 14")
        A(f"s_cbranch_scc1 {lK}")
        A(f"s_cmp_eq_u32 s{ct1}, 15")
        A(f"s_cbranch_scc1 {lV}")
        state = (A.vm, A.lg, A.vm_done, A.lg_done)
        side_left = list(side)
        bar_at = {0: 2, 12: 4, 20: 5, 24: 6}
        def gemm(kind):
            A.vm, A.lg, A.vm_done, A.lg_done = state
            side[:] = side_left
            cs, ks, es = (8192, 2048, 512) if kind == "q" else (4096, 896, 224)
            rt = {}
            def reads(n):
                if n in bar_at:
                    A.wait(tok["w", bar_at[n]])
                    A("s_barrier")
                pos, q, b = n // 4, n % 4, 4 * (n % NB)
                A(f"ds_read_b128 {v(vXf+b,4)}, v{vXr+q} offset:{pos*4096}")
                A(f"ds_read_b64_tr_b16 {v(vWf+b,2)}, v{vWt} offset:{pos*cs+q*ks}")
                rt[n] = A(f"ds_read_b64_tr_b16 {v(vWf+b+2,2)}, v{vWt} offset:{pos*cs+q*ks+es}")
            for n in range(NB - 1):
                reads(n)
            for n in range(28):
                A.wait(rt[n])
                b = 4 * (n % NB)
                wa, xa = v(vWf + b, 4), v(vXf + b, 4)
                if kind == "v":
                    wa, xa = xa, wa
                A(f"v_mfma_f32_32x32x16_bf16 {v(vAcc,16)}, {wa}, {xa}, {'0' if n == 0 else v(vAcc,16)}")
                if n + NB - 1 < 28:
                    reads(n + NB - 1)
                pop()
            assert not side
        gemm("q")
        A(f"v_bfe_u32 v{vT0}, v{vL}, 3, 2")
        A(f"v_mul_u32_u24 v{vT0}, 7168, v{vT0}")
        A(f"v_lshl_add_u32 v{vT0}, v{vH}, 6, v{vT0}")
        A(f"v_lshl_add_u32 v{vT0}, v7, 3, v{vT0}")
        A(f"s_mul_i32 s{t0}, s{sRT}, {4*7168}")
        A(f"s_lshl_b32 s{t1}, s{ct1}, 9")
        A(f"s_add_u32 s{t0}, s{t0}, s{t1}")
        A(f"s_add_u32 s{t0}, s{t0}, {WS_Q}")
        A.nop(4)
        for i in range(4):
            A(f"v_cvt_pk_bf16_f32 v{vF+2*i}, v{vAcc+4*i}, v{vAcc+4*i+1}")
            A(f"v_cvt_pk_bf16_f32 v{vF+2*i+1}, v{vAcc+4*i+2}, v{vAcc+4*i+3}")
            A(f"buffer_store_dwordx2 {v(vF+2*i,2)}, v{vT0}, {s(rWS,4)}, s{t0} offen offset:{i*128} sc1")
        A(f"s_branch {lE}")
        A.label(lK)
        gemm("k")
        A(f"s_lshl_b32 s{t0}, s{sRT}, 12")
        A(f"s_add_u32 s{t0}, s{t0}, {WS_KV}")
        A(f"s_mov_b32 s{t1}, {f32(28 ** -0.5 * math.log2(math.e))}")
        A(f"v_cmp_lt_u32 vcc, 31, v{vL}")
        A(f"v_mov_b32 v{vT1}, 0x3f803f80")
        A(f"v_mov_b32 v{vT2}, 0x00003f80")
        A.nop(6)
        for i in range(16):
            A(f"v_mul_f32 v{vAcc+i}, s{t1}, v{vAcc+i}")
        for i in range(8):
            A(f"v_cvt_pk_bf16_f32 v{vF+i}, v{vAcc+2*i}, v{vAcc+2*i+1}")
        A(f"v_cndmask_b32 v{vF+6}, v{vF+6}, v{vT1}, vcc")
        A(f"v_cndmask_b32 v{vF+7}, v{vF+7}, v{vT2}, vcc")
        A(f"buffer_store_dwordx4 {v(vF,4)}, v{vL16}, {s(rWS,4)}, s{t0} offen sc1")
        A(f"buffer_store_dwordx4 {v(vF+4,4)}, v{vL16}, {s(rWS,4)}, s{t0} offen offset:1024 sc1")
        A(f"s_branch {lE}")
        A.label(lV)
        gemm("v")
        A(f"s_lshl_b32 s{t0}, s{sRT}, 12")
        A(f"s_add_u32 s{t0}, s{t0}, {WS_KV}")
        A(f"v_cmp_eq_u32 vcc, 28, v{vL32}")
        A(f"v_mov_b32 v{vT1}, 0x3f803f80")
        A.nop(1)
        A(f"v_cndmask_b32 v{vT1}, 0, v{vT1}, vcc")
        A(f"v_cmp_lt_u32 vcc, 27, v{vL32}")
        A.nop(5)
        for i in range(8):
            A(f"v_cvt_pk_bf16_f32 v{vF+i}, v{vAcc+2*i}, v{vAcc+2*i+1}")
        for i in range(8):
            A(f"v_cndmask_b32 v{vF+i}, v{vF+i}, v{vT1}, vcc")
        A(f"buffer_store_dwordx4 {v(vF,4)}, v{vL16}, {s(rWS,4)}, s{t0} offen offset:2048 sc1")
        A(f"buffer_store_dwordx4 {v(vF+4,4)}, v{vL16}, {s(rWS,4)}, s{t0} offen offset:3072 sc1")
        A.label(lE)
        self.stamp("qkv stored")
        self.job = dict(jaS=jaS, jaS2=jaS2, jaD=jaD, jobl=jobl)
        A(f"s_cmp_lt_u32 s{jid}, 784")
        A(f"s_cselect_b32 s{rJA+2}, {1792*896}, 0")
        A(f"v_mov_b32 v14, v{vJAt}")
        A(f"v_mov_b32 v12, v{vJAo}")
        A(f"v_mov_b32 v253, v{vJBo}")
        A(f"v_cmp_eq_u32 vcc, 0, v{vL}")
        A(f"v_mov_b32 v3, 0x7ff00000")
        A(f"v_mov_b32 v4, s{sTAG}")
        A(f"v_cndmask_b32 v{vONE}, v3, 0, vcc")
        A(f"v_mov_b32 v5, s{sXCC}")
        A(f"s_lshl_b32 s{t0}, s{sL}, 7")
        A(f"s_add_u32 s{t0}, s{t0}, {WS_F1}")
        A(f"s_cmp_eq_u32 s{sW}, 0")
        A.wait_all()
        A(f"s_cselect_b32 s{rSA+2}, {WS_END}, 0")
        A("s_barrier")
        A(f"buffer_store_dwordx2 v[4:5], v{vONE}, {s(rSA,4)}, s{t0} offen sc1")
        self.stamp("f1 sent")

    vQ, vO, vS, vP, vKV, vSP = 16, 48, 112, 144, 160, 208
    vL4K = 3

    def wo_reg(self, f):
        if f < 64:
            return 256 + 4 * f
        if f < 75:
            return self.vSP + 4 * (f - 64)
        if f < 77:
            return self.vP + 8 + 4 * (f - 75)
        if f < 81:
            return self.vKV + 16 + 4 * (f - 77)
        if f < 85:
            return self.vKV + 32 + 4 * (f - 81)
        if f < 89:
            return self.vKV + 4 * (f - 85)
        if f < 97:
            return self.vS + 4 * (f - 89)
        return self.vP

    def wo_prep(self, f):
        k = f // 7
        if k != self.wo_win:
            d, self.wo_win = k - self.wo_win, k
            return [f"s_add_u32 s{self.sWO}, s{self.sWO}, {d * 8192}"]
        return []

    def wo_load(self, f, prep=True):
        A = self.A
        if prep:
            for x in self.wo_prep(f):
                A(x)
        t = f % 7
        self.tok["wo", f] = A(f"buffer_load_dwordx4 {r(self.wo_reg(f),4)}, v{1 if t < 4 else self.vL4K}, {s(rWS,4)}, s{self.sWO} offen offset:{(t % 4) * 1024} sc1")

    def wu_prep(self, k):
        ops = []
        if k % 4 == 0 or self.m0_dirty:
            ops.append(f"s_add_u32 m0, s{self.sWUL}, {(k // 4) * 4096}")
            self.m0_dirty = False
        ops.append(f"s_add_u32 s{self.sWUC}, s{self.sWU}, {k * 28672 - (k % 4) * 1024}")
        return ops

    def wu_load(self, k, prep=True):
        if prep:
            for x in self.wu_prep(k):
                self.A(x)
        nt = " nt" if self.P["wu_nt"] else ""
        self.tok["wu", k] = self.A(f"buffer_load_dwordx4 v253, {s(rWU,4)}, s{self.sWUC} offen offset:{(k % 4) * 1024}{nt} lds")

    def async_test(self, token, vtmp, vaddr, name, imm=0):
        A = self.A
        ls, lb = self.lab(name + "_spin"), self.lab(name + "_ok")
        A.wait(token)
        A(f"v_cmp_ne_u32 s[{sEX}:{sEX+1}], s{sTAG}, v{vtmp}")
        A(f"s_cmp_lg_u64 s[{sEX}:{sEX+1}], 0")
        A(f"s_cbranch_scc1 {ls}")
        A.label(lb)
        self.spins.append((ls, lb, vaddr, vtmp, name, imm))

    def p2(self):
        A = self.A
        P = self.P
        self.tok = tok = {}
        self.sKV, self.sWO, self.sWU, self.sWUL, self.sWUC, t0, t1, t2, self.sHS, self.sAS, self.sXR, sFB = sT[:12]
        sKV = self.sKV
        job = self.job
        vQ, vO, vS, vP, vKV, vSP = self.vQ, self.vO, self.vS, self.vP, self.vKV, self.vSP
        vPA, vPB, vQa, vT0, vT1, vT2 = 6, 7, 8, 48, 49, 50
        vTA = 252
        A(f"v_add_u32 v{self.vL4K}, 4096, v1")
        A(f"s_and_b32 s{t0}, s{sW}, 1")
        A(f"s_mul_i32 s{self.sWU}, s{t0}, {224*3584}")
        A(f"s_lshl_b32 s{t0}, s{sJ}, 7")
        A(f"s_add_u32 s{self.sWU}, s{self.sWU}, s{t0}")
        A(f"s_mul_i32 s{self.sWUL}, s{sW}, {SLOT}")
        self.m0_dirty = True
        for k in range(P["n_wu_x1"]):
            self.wu_load(k)
        A(f"v_and_b32 v{vT0}, 15, v0")
        A(f"s_lshl_b32 s{t0}, s{sW}, 6")
        A(f"s_add_u32 s{t0}, s{t0}, 3")
        A(f"v_lshl_add_u32 v{vPA}, v{vT0}, 2, s{t0}")
        A(f"s_lshl_b32 s{t0}, s{sG}, 5")
        A(f"s_sub_u32 s{t0}, s{t0}, 16")
        A(f"v_add_u32 v{vT1}, s{t0}, v0")
        A(f"v_cmp_lt_u32 vcc, 15, v0")
        A(f"s_mul_i32 s{t0}, s{sW}, 14")
        A(f"s_add_u32 s{t0}, s{t0}, 196")
        A(f"v_cndmask_b32 v{vPA}, v{vPA}, v{vT1}, vcc")
        A(f"v_min_u32 v{vT2}, 13, v{vT0}")
        A(f"v_cmp_lt_u32 vcc, 47, v0")
        A(f"v_add_u32 v{vT1}, s{t0}, v{vT2}")
        A.nop(1)
        A(f"v_cndmask_b32 v{vPA}, v{vPA}, v{vT1}, vcc")
        A(f"v_lshlrev_b32 v{vPA}, 7, v{vPA}")
        A(f"v_add_u32 v{vPA}, {WS_F1}, v{vPA}")
        A(f"s_mul_i32 s{t0}, s{sCT}, 28")
        A(f"s_mul_i32 s{t1}, s{sW}, 7")
        A(f"s_add_u32 s{t0}, s{t0}, s{t1}")
        A(f"v_min_u32 v{vPB}, 6, v0")
        A(f"v_add_u32 v{vPB}, s{t0}, v{vPB}")
        A(f"v_lshlrev_b32 v{vPB}, 7, v{vPB}")
        A(f"v_add_u32 v{vPB}, {WS_F1B}, v{vPB}")
        A(f"s_lshl_b32 s{sFB}, s{sL}, 7")
        A(f"s_add_u32 s{sFB}, s{sFB}, {WS_F1B}")
        A(f"s_mul_i32 s{self.sXR}, s{sL}, 7168")
        A(f"s_mul_i32 s{t1}, s{sW}, 1792")
        A(f"s_add_u32 s{self.sHS}, s{self.sXR}, s{t1}")
        A(f"s_add_u32 s{self.sHS}, s{self.sHS}, {WS_HN}")
        A(f"s_mul_i32 s{t1}, s{sW}, 224")
        A(f"s_add_u32 s{self.sXR}, s{self.sXR}, s{t1}")
        A(f"v_lshl_add_u32 v{vT1}, v{vT2}, 7, s{self.sHS}")
        A(f"s_lshl_b32 s{t1}, s{sG}, 12")
        A(f"s_add_u32 s{t1}, s{t1}, {WS_F2}")
        A(f"v_cmp_lt_u32 vcc, 31, v0")
        A(f"v_and_b32 v{vT2}, 31, v0")
        A(f"v_min_u32 v{vT2}, 19, v{vT2}")
        A(f"v_lshl_add_u32 v{vT2}, v{vT2}, 7, s{t1}")
        A(f"v_cndmask_b32 v{vTA}, v{vT1}, v{vT2}, vcc")
        if P["x1_sleep"]:
            A(f"s_sleep {P['x1_sleep']}")
        self.poll(vPA, 10, "x1", width=2, backoff=P["x1_backoff"])
        A(f"v_cmp_ne_u32 vcc, s{sXCC}, v11")
        A(f"s_lshr_b64 vcc, vcc, 16")
        A(f"s_cmp_eq_u32 vcc_lo, 0")
        A(f"s_cselect_b32 s{sLOC}, {P['loc']}, 0")
        self.stamp("x1 seen")
        A.label("L_attn")
        A(f"s_mul_i32 s{t0}, s{sL}, 7168")
        A(f"s_lshl_b32 s{t1}, s{sW}, 11")
        A(f"s_add_u32 s{t0}, s{t0}, s{t1}")
        A(f"s_add_u32 m0, s{t1}, {L_Q}")
        A(f"s_add_u32 s{t0}, s{t0}, {WS_Q}")
        A(f"s_lshl_b32 s{sKV}, s{sW}, 16")
        A(f"buffer_load_dwordx4 v1, {s(rWS,4)}, s{t0} offen sc1 lds")
        tq = A(f"buffer_load_dwordx4 v1, {s(rWS,4)}, s{t0} offen offset:1024 sc1 lds")
        A(f"s_add_u32 s{sKV}, s{sKV}, {WS_KV}")
        def kvload(it, fr):
            b = vKV + 16 * (it % 3) + 4 * fr
            tok["kv", it, fr] = A(f"buffer_load_dwordx4 {v(b,4)}, v1, {s(rWS,4)}, s{sKV} offen offset:{fr*1024} sc1")
        for it in range(2):
            for fr in range(4):
                kvload(it, fr)
            A(f"s_add_u32 s{sKV}, s{sKV}, 4096")
        A(f"s_mul_i32 s{self.sWO}, s{sW}, {14*8192}")
        A(f"s_add_u32 s{self.sWO}, s{self.sWO}, {WS_WO}")
        self.wo_win = 0
        A(f"v_bfe_u32 v{vT0}, v0, 3, 2")
        A(f"v_mul_u32_u24 v{vT0}, 448, v{vT0}")
        A(f"v_lshrrev_b32 v{vT1}, 5, v0")
        A(f"v_lshl_add_u32 v{vT0}, v{vT1}, 6, v{vT0}")
        A(f"v_and_b32 v{vT1}, 7, v0")
        A(f"v_lshl_add_u32 v{vT0}, v{vT1}, 3, v{vT0}")
        for n in range(4):
            A(f"s_add_u32 s{t0}, s{sW}, {n+1}")
            A(f"s_and_b32 s{t0}, s{t0}, 3")
            A(f"s_mul_i32 s{t1}, s{t0}, 1792")
            A(f"s_add_u32 s{t1}, s{t1}, {L_Q}")
            A(f"v_add_u32 v{52+n}, s{t1}, v{vT0}")
            A(f"v_mov_b64 {v(vQ+8*n+6,2)}, 0")
            if n < 3:
                A(f"s_mul_i32 s{t0}, s{t0}, 12288")
                A(f"s_add_u32 s{t0}, s{t0}, {L_SC + n*4096}")
                A(f"v_add_u32 v{vQa+n}, s{t0}, v1")
        A.wait(tq)
        A("s_barrier")
        A("s_mov_b32 exec_hi, 0")
        for n in range(4):
            A(f"ds_read_b64 {v(vQ+8*n+6,2)}, v{52+n} offset:384")
        A("s_mov_b32 exec_hi, -1")
        for n in range(4):
            for i in range(3):
                A(f"ds_read_b64 {v(vQ+8*n+2*i,2)}, v{52+n} offset:{i*128}")
        A(f"s_cmp_lg_u32 s{sMODE}, 0")
        A.wait_all(vm=False)
        A("s_cbranch_scc1 L_maxpass")
        A.label("L_attn_main")
        self.stamp("q ready")

        def smf(n, half):
            it, q = divmod(n, 4)
            d = vS + 16 * (n & 1)
            k = vKV + 16 * (it % 3) + 4 * half
            A(f"v_mfma_f32_32x32x16_bf16 {v(d,16)}, {v(k,4)}, {v(vQ+8*q+4*half,4)}, {v(d,16) if half else '0'}")
        def pmf(n, half):
            it, q = divmod(n, 4)
            d = vO + 16 * q
            vv = vKV + 16 * (it % 3) + 8 + 4 * half
            c = "0" if (it == 0 and half == 0) else v(d, 16)
            A(f"v_mfma_f32_32x32x16_bf16 {v(d,16)}, {v(vv,4)}, {v(vP+4*half,4)}, {c}")
        def owrite(slot, rq):
            A(f"ds_write_b128 v{vQa+slot}, {v(vO+16*slot+4*rq,4)} offset:{rq*1024}")

        sidew = {}
        def put(it, sl, fn):
            it, sl = divmod(16 * it + sl, 16)
            sidew.setdefault((it, sl), []).append(fn if callable(fn) else (lambda fn=fn: A(fn)))
        for it in range(14):
            for fr in range(4):
                put(it, 2 * fr, lambda it=it, fr=fr: kvload(it + 2, fr))
            put(it, 7, f"s_add_u32 s{sKV}, s{sKV}, 4096")
        for it in range(15):
            put(it, 11, lambda it=it: A.wait(tok["kv", it + 1, 3]))
        put(0, 1, lambda: A.wait(tok["kv", 0, 3]))
        IT_RAW, IT_TR, IT_FB = P["it_raw"], P["it_tr"], P["it_fb"]
        def raw():
            A(f"buffer_load_dwordx4 v12, {s(rJA,4)}, s{job['jaS']} offen lds")
            tok["raw"] = A(f"buffer_load_dwordx4 v12, {s(rJA,4)}, s{job['jaS2']} offen offset:1024 lds")
        put(IT_RAW, 7, f"s_mov_b32 m0, s{job['jobl']}")
        put(IT_RAW, 8, raw)
        def trd(k):
            A.wait(tok["raw"])
            A(f"ds_read_b64_tr_b16 {v(vSP+4*k,2)}, v14 offset:{64*k}")
            tok["tr", k] = A(f"ds_read_b64_tr_b16 {v(vSP+4*k+2,2)}, v14 offset:{64*k+512}")
        def jst(k):
            A.wait(tok["tr", k])
            tok["jst", k] = A(f"buffer_store_dwordx4 {v(vSP+4*k,4)}, v1, {s(rSB,4)}, s{job['jaD']} offen offset:{k*1024} sc1")
        put(IT_TR, 13, lambda: trd(0))
        put(IT_TR, 15, lambda: trd(1))
        put(IT_TR + 1, 9, lambda: jst(0))
        put(IT_TR + 3, 9, lambda: jst(1))
        def fb_send():
            A.wait(tok["jst", 1])
            A("s_barrier")
            A(f"buffer_store_dword v4, v{vONE}, {s(rSA,4)}, s{sFB} offen sc1")
        put(IT_TR + 5, 13, fb_send)
        def fb_load():
            tok["f1b"] = A(f"buffer_load_dword v11, v{vPB}, {s(rWS,4)}, 0 offen sc1")
        put(IT_FB, 5, fb_load)
        put(IT_FB + 1, 13, lambda: self.async_test(tok["f1b"], 11, vPB, "f1b"))
        put(P["it_touch"], 15, f"buffer_load_dword v6, v{vTA}, {s(rWS,4)}, 0 offen sc1")
        taken = lambda it, sl: (it, sl) in sidew
        wo_q = list(range(85))
        wu_q = list(range(P["n_wu_x1"], 28))
        n_wu = len(wu_q)
        self.m0_dirty = True
        for it in range(16):
            cap = P["cap"] if it < 14 else 16
            cand = (8, 10, 12, 14, 1, 3, 5, 15, 9, 13) if it < 14 else range(16)
            used = 0
            for sl in sorted([x for x in cand if not taken(it, x)][:cap]):
                if it == 15 and sl > 9:
                    break
                if (it, sl) > (IT_RAW, 7) and not getattr(self, "_rawm0", False):
                    self.m0_dirty = True
                    self._rawm0 = True
                if wu_q and sl in (8, 10) and n_wu - len(wu_q) < n_wu * (it + 1) / 14 and (it, sl) != (IT_RAW, 8):
                    k = wu_q.pop(0)
                    for x in self.wu_prep(k):
                        put(it, sl - 1, x)
                    put(it, sl, lambda k=k: self.wu_load(k, False))
                elif wo_q:
                    f = wo_q[0]
                    if (64 <= f < 66 and it < IT_TR + 4) or (77 <= f < 81 and (it, sl) < (14, 2)) or (81 <= f < 85 and (it, sl) < (15, 2)):
                        continue
                    wo_q.pop(0)
                    for x in self.wo_prep(f):
                        put(it, sl - 1, x)
                    put(it, sl, lambda f=f: self.wo_load(f, False))
        assert not wu_q, wu_q
        self.wo_left = wo_q + list(range(85, 98))
        vXr = 34
        def xaddr():
            A(f"v_and_b32 v12, 7, v0")
            A(f"v_lshrrev_b32 v13, 4, v0")
            A(f"v_mul_u32_u24 v14, 896, v12")
            A(f"v_lshl_add_u32 v15, v13, 3, v14")
            A(f"v_lshl_add_u32 v14, v13, 4, v14")
        put(15, 0, xaddr)
        def xload(i):
            if i < 3:
                A(f"buffer_load_dwordx4 {v(vXr+4*i,4)}, v14, {s(rX,4)}, s{self.sXR} offen offset:{64*i}")
            else:
                tok["x"] = A(f"buffer_load_dwordx2 {v(vXr+12,2)}, v15, {s(rX,4)}, s{self.sXR} offen offset:192")
        for i in range(4):
            put(15, 11 + i, lambda i=i: xload(i))
        for q in range(3):
            for rq, sl in enumerate((7, 8, 9, 10)):
                if 4 * q + sl < 16:
                    put(15, 4 * q + sl, lambda q=q, rq=rq: owrite(q, rq))
        A.wait(tok["kv", 0, 1])
        smf(0, 0)
        smf(0, 1)
        A.nop(11)
        for n in range(64):
            it, q = divmod(n, 4)
            mf = [(lambda: smf(n + 1, 0)) if n < 63 else None, (lambda: pmf(n - 1, 1)) if n > 0 else None,
                  (lambda: smf(n + 1, 1)) if n < 63 else None, lambda: pmf(n, 0)]
            S = vS + 16 * (n & 1)
            if P["itstamp"] and q == 0 and it in (1, 2, 3, 4, 5, 6, 8, 9, 10, 12, 13, 14, 15):
                self.stamp(f"it {it}")
            for j in range(4):
                if mf[j]:
                    mf[j]()
                for fn in sidew.get((it, 4 * q + j), []):
                    fn()
                for e in range(4):
                    A(f"v_exp_f32 v{S+4*j+e}, v{S+4*j+e}")
                A(f"v_cvt_pk_bf16_f32 v{vP+2*j}, v{S+4*j}, v{S+4*j+1}")
                A(f"v_cvt_pk_bf16_f32 v{vP+2*j+1}, v{S+4*j+2}, v{S+4*j+3}")
        owrite(2, 1)
        owrite(2, 2)
        pmf(63, 1)
        owrite(2, 3)
        self.stamp("attn loop")

    def p3(self):
        A = self.A
        P = self.P
        tok = self.tok
        vQ, vO = self.vQ, self.vO
        t0, t1, t2 = sT[5:8]
        sHS = self.sHS
        vAcc, vXr = 16, 34
        vB = 48
        vR, vOw, vB0, vB1 = 8, 9, 10, 11
        vT0, vT1, vT2, vT3 = 12, 13, 14, 15
        vOwn = vO + 48
        wo_q = self.wo_left
        def wo_pop(n=1):
            for _ in range(n):
                if wo_q:
                    self.wo_load(wo_q.pop(0))
        A(f"s_mul_i32 s{t0}, s{sW}, 12288")
        A(f"s_add_u32 s{t0}, s{t0}, {L_SC}")
        A(f"v_add_u32 v{vR}, s{t0}, v1")
        wo_pop(2)
        A.wait_all(vm=False)
        A("s_barrier")
        tr_ = []
        for n in range(12):
            tr_.append(A(f"ds_read_b128 {v(vO+4*n,4)}, v{vR} offset:{n*1024}"))
        wo_pop(2)
        A(f"v_mul_u32_u24 v{vB0}, {OB_STRIDE}, v{vT0}")
        A(f"v_bfe_u32 v{vT2}, v0, 3, 2")
        A(f"v_mad_u32_u24 v{vOw}, v{vT2}, 56, v{vB0}")
        A(f"v_lshrrev_b32 v{vT2}, 5, v0")
        A(f"v_lshl_add_u32 v{vOw}, v{vT2}, 3, v{vOw}")
        A(f"v_add_u32 v{vOw}, s{t0}, v{vOw}")
        A(f"v_lshl_add_u32 v{vB0}, v{vT1}, 4, v{vB0}")
        A(f"v_add_u32 v{vB0}, {L_SC}, v{vB0}")
        A(f"v_mul_u32_u24 v{vT2}, {12288-224}, v{vT2}")
        A(f"v_add_u32 v{vB1}, v{vB0}, v{vT2}")
        for n in range(12):
            if n % 2 == 0:
                A.wait(tr_[n + 1])
            rq = n % 4
            for k in range(2):
                A(f"v_pk_add_f32 {v(vOwn+4*rq+2*k,2)}, {v(vOwn+4*rq+2*k,2)}, {v(vO+4*n+2*k,2)}")
        A(f"v_mov_b32 v{vT2}, v{vOwn+12}")
        A(f"v_mov_b32 v{vT3}, v{vOwn+12}")
        A(f"s_mov_b32 s{t1}, {f32(2.0**-40)}")
        A(f"s_add_u32 s{t2}, s{t0}, 4096")
        A(f"v_permlane32_swap_b32 v{vT2}, v{vT3}")
        A(f"v_rcp_f32 v{vT2}, v{vT3}")
        A(f"v_cmp_nle_f32 vcc, s{t1}, v{vT3}")
        A(f"s_mov_b32 s{t1}, {f32(2.0**40)}")
        A(f"v_cmp_nge_f32 s[{sEX}:{sEX+1}], s{t1}, v{vT3}")
        for i in range(4):
            for k in (2 * i, 2 * i + 1):
                A(f"v_pk_mul_f32 {v(vOwn+2*k,2)}, {v(vOwn+2*k,2)}, {v(vT2,2)} op_sel_hi:[1,0]")
            for k in (2 * i, 2 * i + 1):
                A(f"v_cvt_pk_bf16_f32 v{vO+k}, v{vOwn+2*k}, v{vOwn+2*k+1}")
            if i == 3:
                A("s_mov_b32 exec_hi, 0")
            A(f"ds_write_b64 v{vOw}, {v(vO+2*i,2)} offset:{16*i}")
        A(f"s_or_b64 vcc, vcc, s[{sEX}:{sEX+1}]")
        A(f"s_cselect_b32 s{t1}, 1, 0")
        A(f"v_mov_b32 v{vT2}, s{t2}")
        A(f"v_mov_b32 v{vT3}, s{t1}")
        A(f"ds_write_b32 v{vT2}, v{vT3}")
        A("s_mov_b32 exec_hi, -1")
        A(f"v_and_b32 v{vT2}, 3, v0")
        A(f"v_mul_u32_u24 v{vT2}, 12288, v{vT2}")
        A(f"v_add_u32 v{vT2}, {L_SC + 4096}, v{vT2}")
        wo_pop(2)
        A.wait_all(vm=False)
        A("s_barrier")
        tfl = A(f"ds_read_b32 v104, v{vT2}")
        tb = []
        for k in range(14):
            g = 4 * k
            reg, rem = divmod(g, 14)
            tb.append(A(f"ds_read_b128 {v(vB+4*k,4)}, v{vB1 if k in (3, 10) else vB0} offset:{reg*12288+rem*16}"))
        A.wait(tok["x"])
        A(f"s_mov_b32 s{t1}, 0xffff0000")
        for d in range(14):
            A(f"v_and_b32 v{vAcc+2*d+1}, s{t1}, v{vXr+d}")
            A(f"v_lshlrev_b32 v{vAcc+2*d}, 16, v{vXr+d}")
        A.wait(tfl)
        A(f"v_cmp_ne_u32 vcc, 0, v104")
        A(f"s_cmp_lg_u32 s{sMODE}, 0")
        A(f"s_cselect_b64 vcc, 0, vcc")
        A("s_cbranch_vccnz L_redo")
        self.stamp("o ready")
        self.wd_setup()
        vSt, vSo, vSo2 = 8, 9, 10
        fill = [f"v_lshrrev_b32 v{vT2}, 5, v0",
                f"v_lshlrev_b32 v{vSt}, 4, v{vT0}",
                f"v_lshl_add_u32 v105, v{vT2}, 7, v{vSt}",
                f"s_lshl_b32 s{t1}, s{sW}, 2",
                f"s_add_u32 s{t1}, s{t1}, {L_ST}",
                f"v_add_u32 v105, s{t1}, v105",
                f"v_add_u32 v106, {L_ST}, v{vSt}",
                f"v_and_b32 v{vT2}, 8, v0",
                f"v_cmp_ne_u32 vcc, 0, v{vT2}",
                f"v_lshl_add_u32 v{vT2}, v{vT2}, 18, v{vSt}",
                f"v_lshl_add_u32 v{vSo}, v{vT1}, 7, v{vT2}",
                f"v_lshrrev_b32 v{vT3}, 1, v{vT1}",
                f"v_lshl_add_u32 v{vSo2}, v{vT3}, 7, v{vT2}",
                f"v_and_b32 v{vT3}, 1, v{vT1}",
                f"v_lshl_add_u32 v{vSo2}, v{vT3}, 3, v{vSo2}",
                f"s_lshr_b32 s{t0}, s{sJ}, 2",
                f"s_lshl_b32 s{t0}, s{t0}, 7",
                f"s_lshl_b32 s{t2}, s{sC}, 4",
                f"s_add_u32 s{t0}, s{t0}, s{t2}",
                f"s_lshl_b32 s{t2}, s{sW}, 2",
                f"s_add_u32 s{t0}, s{t0}, s{t2}",
                f"s_lshl_b32 s{t2}, s{sG}, 12",
                f"s_add_u32 s{t0}, s{t0}, s{t2}",
                f"s_add_u32 s{t0}, s{t0}, {WS_F2}"]
        for k in range(14):
            for tt in range(7):
                f = 7 * k + tt
                A.wait(tb[k], tok["wo", f])
                A(f"v_mfma_f32_16x16x32_bf16 {v(vAcc+4*tt,4)}, {r(self.wo_reg(f),4)}, {v(vB+4*k,4)}, {v(vAcc+4*tt,4)}")
                if f % P["wo_pace"] == 0:
                    if wo_q:
                        wo_pop()
                    elif self.wd_next < f - 2:
                        self.wd_load()
                elif k >= 4 and fill:
                    A(fill.pop(0))
        assert not wo_q and not fill
        self.stamp("wo done")
        A.nop(2)
        A(f"v_pk_add_f32 v[48:49], {v(vAcc,2)}, {v(vAcc+2,2)}")
        A(f"v_pk_mul_f32 v[50:51], {v(vAcc,2)}, {v(vAcc,2)}")
        A(f"v_pk_fma_f32 v[50:51], {v(vAcc+2,2)}, {v(vAcc+2,2)}, v[50:51]")
        for k in range(2, 14):
            A(f"v_pk_add_f32 v[48:49], v[48:49], {v(vAcc+2*k,2)}")
            A(f"v_pk_fma_f32 v[50:51], {v(vAcc+2*k,2)}, {v(vAcc+2*k,2)}, v[50:51]")
        A("v_add_f32 v48, v48, v49")
        A("v_add_f32 v50, v50, v51")
        A.nop(2)
        A("v_permlane32_swap_b32 v48, v50")
        A("v_add_f32 v48, v48, v50")
        A("v_mov_b32 v49, v48")
        A.nop(2)
        A("v_permlane16_swap_b32 v48, v49")
        A("v_add_f32 v48, v48, v49")
        A("ds_write_b32 v105, v48")
        A(f"v_mov_b32 v56, {f32(1.0/448)}")
        A.wait_all(vm=False)
        A("s_barrier")
        A("ds_read_b128 v[48:51], v106")
        A("ds_read_b128 v[52:55], v106 offset:128")
        A.wait_all(vm=False)
        A("v_pk_add_f32 v[48:49], v[48:49], v[50:51]")
        A("v_pk_add_f32 v[52:53], v[52:53], v[54:55]")
        A("v_add_f32 v48, v48, v49")
        A("v_add_f32 v52, v52, v53")
        A("v_mul_f32 v48, v56, v48")
        A("v_mul_f32 v49, v48, v48")
        A("v_fma_f32 v52, v52, v56, -v49")
        A("v_max_f32 v52, 0, v52")
        A(f"v_add_f32 v52, {f32(1e-5)}, v52")
        A("v_rsq_f32 v52, v52")
        A.nop(1)
        A("v_mul_f32 v48, -v48, v52")
        A("v_cndmask_b32 v52, v52, 1.0, vcc")
        A("v_cndmask_b32 v48, v48, 0, vcc")
        for k in range(14):
            a0 = vAcc + 2 * k
            A(f"v_pk_fma_f32 {v(a0,2)}, {v(a0,2)}, v[52:53], v[48:49] op_sel_hi:[1,0,0]")
            if k > 0:
                A(f"v_cvt_pk_bf16_f32 v{56+k-1}, v{a0-2}, v{a0-1}")
        A(f"v_cvt_pk_bf16_f32 v69, v{vAcc+26}, v{vAcc+27}")
        ts = self.xstore(f"buffer_store_dwordx4 v[56:59], v{vSo}, {s(rWS,4)}, s{sHS} offen",
                         f"buffer_store_dwordx4 v[60:63], v{vSo}, {s(rWS,4)}, s{sHS} offen offset:512",
                         f"buffer_store_dwordx4 v[64:67], v{vSo}, {s(rWS,4)}, s{sHS} offen offset:1024",
                         f"buffer_store_dwordx2 v[68:69], v{vSo2}, {s(rWS,4)}, s{sHS} offen offset:1536")
        self.stamp("hn stored")
        for _ in range(P["x2_pre"]):
            self.wd_load()
        A.wait(ts)
        self.xstore(f"buffer_store_dword v4, v{vONE}, {s(rWS,4)}, s{t0} offen")
        self.stamp("f2 sent")

    def wd_setup(self):
        A = self.A
        self.sWD, t1 = sT[12], sT[7]
        self.vWD = 6
        A(f"s_mul_i32 s{self.sWD}, s{sCT}, 112")
        A(f"s_mul_i32 s{t1}, s{sW}, 28")
        A(f"s_add_u32 s{self.sWD}, s{self.sWD}, s{t1}")
        A(f"s_lshl_b32 s{self.sWD}, s{self.sWD}, 11")
        A(f"s_add_u32 s{self.sWD}, s{self.sWD}, {WS_WD}")
        A(f"s_mul_i32 s{t1}, s{sW}, 1152")
        A(f"s_and_b32 s{t1}, s{t1}, 1280")
        A(f"v_xor_b32 v{self.vWD}, s{t1}, v1")
        A(f"v_xor_b32 v{self.vWD+1}, 1024, v{self.vWD}")
        A(f"s_cmp_lt_u32 s{sJ}, 28")
        A(f"s_cselect_b32 s{rSB+2}, {WS_END}, 0")
        self.wd_win = 0
        self.wd_next = 0

    def wd_load(self):
        A = self.A
        n = self.wd_next
        self.wd_next += 1
        k, e = divmod(n, 2)
        win = k // 2
        if win != self.wd_win:
            A(f"s_add_u32 s{self.sWD}, s{self.sWD}, {(win - self.wd_win) * 4096}")
            self.wd_win = win
        self.tok["wd", n] = A(f"buffer_load_dwordx4 {a(4*n,4)}, v{self.vWD+e}, {s(rSB,4)}, s{self.sWD} offen offset:{(k % 2) * 2048} sc1")

    def gelu_ops(self, acc, out):
        vT = 208
        seq = []
        for i in range(0, 8, 2):
            ops = []
            for k in (0, 1):
                g, u, t = acc + i + k, acc + 8 + i + k, vT + k
                ops.append([f"v_mul_f32 v{t}, v{g}, v{g}", f"v_fma_f32 v{t}, v{t}, s{self.sC1}, v{self.vC0}",
                            f"v_mul_f32 v{t}, v{t}, v{g}", f"v_exp_f32 v{t}, v{t}", f"v_mul_f32 v{u}, v{g}, v{u}",
                            f"v_add_f32 v{t}, 1.0, v{t}", f"v_rcp_f32 v{t}, v{t}", f"v_mul_f32 v{t}, v{t}, v{u}"])
            x, y = ops
            seq += [x[0], y[0], x[1], y[1], x[2], y[2], x[3], y[3], x[4], x[5], y[5], x[6], y[6], y[4], x[7], y[7]]
            seq.append(f"v_cvt_pk_bf16_f32 v{out + i // 2}, v{vT}, v{vT+1}")
        return seq

    RING = [220 + 4 * i for i in range(8)] + [480 + 4 * i for i in range(8)] + [80 + 4 * i for i in range(12)]
    DORDER = [(0, k) for k in range(28)] + [(1, k) for k in range(28) if k % 4 < 2] + [(1, k) for k in range(28) if k % 4 >= 2]

    def a_load(self):
        A = self.A
        n = self.a_next
        self.a_next += 1
        rho, k = self.DORDER[n]
        win = rho * 112 + k // 4
        if win != self.a_win:
            A(f"s_add_u32 s{self.sA}, s{self.sA}, {((win - self.a_win) * 4096) & 0xffffffff}")
            self.a_win = win
        self.tok["a", n] = A(f"buffer_load_dwordx4 {r(self.RING[n % 28],4)}, v1, {s(rWS,4)}, s{self.sA} offen offset:{(k % 4) * 1024} sc1")

    def f3_send(self, stage):
        self.A.wait(self.tok["as", (3, 5, 7)[stage]])
        self.xstore(f"buffer_store_dword v4, v{vONE}, {s(rWS,4)}, s{self.sF3} offen offset:{512 * stage}", cond="vcc")

    def f3_load(self, stage):
        self.tok["p3", stage] = self.A(f"buffer_load_dword v14, v{self.vP3}, {s(rWS,4)}, 0 offen offset:{512 * stage} sc1")

    def f3_test(self, stage):
        self.async_test(self.tok["p3", stage], 14, self.vP3, f"x3_{stage}", imm=512 * stage)

    def p4(self):
        A = self.A
        P = self.P
        tok = self.tok
        t0, t1, t2 = sT[5:8]
        sHN, self.sC1, sAS, sAS2, self.sF3, self.sA = sT[13:19]
        vHN, vAc, vWf, vOut = 16, 128, 192, 212
        self.vC0, self.vP3 = 210, 12
        vPA, vWa, vHo = 13, 8, 15
        self.vHo = vHo
        c0 = -2.0 * math.log2(math.e) * math.sqrt(2.0 / math.pi)
        A(f"s_cmp_ge_u32 s{sJ}, 28")
        A("s_cbranch_scc1 L_help")
        A(f"s_lshl_b32 s{t1}, s{sG}, 12")
        A(f"s_lshl_b32 s{t2}, s{sW}, 7")
        A(f"s_add_u32 s{t2}, s{t2}, s{t1}")
        A(f"s_add_u32 s{t2}, s{t2}, {WS_F2}")
        A(f"v_and_b32 v{vPA}, 15, v0")
        A(f"v_lshl_add_u32 v{vPA}, v{vPA}, 2, s{t2}")
        A(f"v_and_b32 v14, 16, v0")
        A(f"v_lshl_add_u32 v{vPA}, v14, 5, v{vPA}")
        tp = A(f"buffer_load_dword v14, v{vPA}, {s(rWS,4)}, 0 offen sc1")
        A(f"s_lshl_b32 s{t0}, s{sJ}, 2")
        A(f"s_add_u32 s{self.sF3}, s{t2}, s{t0}")
        A(f"s_add_u32 s{self.sF3}, s{self.sF3}, 1024")
        A(f"s_lshl_b32 s{t2}, s{sRH}, 7")
        A(f"s_add_u32 s{t1}, s{t1}, s{t2}")
        A(f"s_mul_i32 s{t2}, s{sW}, 28")
        A(f"s_add_u32 s{t1}, s{t1}, s{t2}")
        A(f"s_add_u32 s{t1}, s{t1}, {WS_F2 + 1024}")
        A(f"v_min_u32 v{self.vP3}, 6, v0")
        A(f"v_lshl_add_u32 v{self.vP3}, v{self.vP3}, 2, s{t1}")
        A(f"s_lshl_b32 s{t1}, s{sG}, 3")
        A(f"s_add_u32 s{self.sA}, s{t1}, s{sRH}")
        A(f"s_mul_i32 s{self.sA}, s{self.sA}, 112")
        A(f"s_add_u32 s{self.sA}, s{self.sA}, s{t2}")
        A(f"s_lshl_b32 s{self.sA}, s{self.sA}, 10")
        A(f"s_add_u32 s{self.sA}, s{self.sA}, {WS_A}")
        A(f"s_add_u32 s{t1}, s{t1}, s{sW}")
        A(f"s_mul_i32 s{sHN}, s{t1}, {SLOT}")
        A(f"s_add_u32 s{sHN}, s{sHN}, {WS_HN}")
        A(f"s_mul_i32 s{sAS}, s{t1}, 112")
        A(f"s_add_u32 s{sAS}, s{sAS}, s{t0}")
        A(f"s_lshl_b32 s{sAS}, s{sAS}, 10")
        A(f"s_add_u32 s{sAS}, s{sAS}, {WS_A}")
        A(f"s_add_u32 s{sAS2}, s{sAS}, {4*112*1024}")
        self.a_next, self.a_win = 0, 0
        A(f"v_bfe_u32 v{vHo}, v0, 3, 2")
        A(f"v_mul_u32_u24 v{vHo}, 7168, v{vHo}")
        A(f"v_lshrrev_b32 v208, 5, v0")
        A(f"v_lshl_add_u32 v{vHo}, v208, 7, v{vHo}")
        A(f"v_and_b32 v209, 0x70, v1")
        A(f"v_add_u32 v{vHo}, v{vHo}, v209")
        A(f"v_bfe_u32 v209, v0, 2, 2")
        A(f"v_lshl_add_u32 v208, v208, 3, v209")
        A(f"v_lshlrev_b32 v{vWa}, 7, v208")
        A(f"v_bfe_u32 v208, v0, 3, 2")
        A(f"v_lshl_add_u32 v{vWa}, v208, 5, v{vWa}")
        A(f"v_lshrrev_b32 v208, 1, v208")
        A(f"v_mul_u32_u24 v208, {2*SLOT}, v208")
        A(f"v_add_u32 v{vWa}, v{vWa}, v208")
        A(f"v_and_b32 v208, 1, v0")
        A(f"v_lshl_add_u32 v{vWa}, v208, 4, v{vWa}")
        A(f"v_and_b32 v208, 2, v0")
        A(f"v_lshl_add_u32 v{vWa}, v208, 2, v{vWa}")
        for tt in range(1, 4):
            A(f"v_xor_b32 v{vWa+tt}, {32*tt}, v{vWa}")
        A(f"v_mov_b32 v{self.vC0}, {f32(c0)}")
        A(f"s_mov_b32 s{self.sC1}, {f32(c0 * 0.044715)}")
        A(f"s_cmp_eq_u32 s{sLOC}, 0")
        A(f"s_cselect_b64 vcc, -1, 0")
        order = [(qt, k, e) for qt in range(4) for k in range(28) for e in (0, 1)]
        NB = 4
        def wread(n):
            qt, k, e = order[n]
            tt = 2 * (qt & 1) + e
            b = vWf + 4 * (n % NB)
            A(f"ds_read_b64_tr_b16 {v(b,2)}, v{vWa+tt} offset:{k*2048}")
            tok["wf", n] = A(f"ds_read_b64_tr_b16 {v(b+2,2)}, v{vWa+tt} offset:{k*2048+512}")
        for n in range(NB - 1):
            wread(n)
        self.async_test(tp, 14, vPA, "x2")
        self.stamp("x2 seen")
        hwin = [0]
        def hn_load(rho, k):
            win = rho * 4 * SLOT + (k // 16) * 4096
            if win != hwin[0]:
                A(f"s_add_u32 s{sHN}, s{sHN}, {win - hwin[0]}")
                hwin[0] = win
            tok["hn", rho, k] = A(f"buffer_load_dwordx4 {v(vHN+4*k,4)}, v{vHo}, {s(rWS,4)}, s{sHN} offen offset:{(k%16)*256} sc1")
        NPRE = 10
        for k in range(NPRE):
            hn_load(0, k)
        self.gq = gq = []
        def a_store(i):
            text = f"buffer_store_dwordx4 {v(vOut+4*(i&1),4)}, v1, {s(rWS,4)}, s{sAS2 if i >= 4 else sAS} offen offset:{(i%4)*1024}"
            tok["as", i] = A(text + " sc1") if P["a_far"] else self.xstore(text, cond="vcc")
        A.wait(tok["wf", 0], tok["hn", 0, 0])
        for n, (qt, k, e) in enumerate(order):
            acc = vAc + 16 * (2 * (qt & 1) + e)
            A(f"v_mfma_f32_32x32x16_bf16 {v(acc,16)}, {v(vWf+4*(n%NB),4)}, {v(vHN+4*k,4)}, {v(acc,16) if k else '0'}")
            budget = 16
            if n + 1 < len(order):
                q1, k1, _ = order[n + 1]
                kw = k1 if q1 == 0 else min(27, k1 | 7)
                A.wait(tok["wf", n + 1], tok["hn", q1 >> 1, kw])
            if n + NB - 1 < len(order):
                wread(n + NB - 1)
            if qt == 0 and e == 0 and k + NPRE < 28:
                hn_load(0, k + NPRE)
            elif qt == 1:
                if e == 1:
                    hn_load(1, k)
                    budget -= 4
            elif e == 0 and self.wd_next < 56:
                self.wd_load()
                budget -= 6
            elif e == 0 and n > P["n_ta"] and self.a_next < 16:
                self.a_load()
                budget -= 6
            if n == P["n_fa"]:
                self.f3_send(0)
                budget -= 12
            if n == P["n_pa"]:
                self.f3_load(0)
                budget -= 4
            if n == P["n_ta"]:
                self.f3_test(0)
                budget -= 16
            if k == 27:
                i = 2 * qt + e
                for o in self.gelu_ops(acc, vOut + 4 * e):
                    gq.append((n + 4, o))
                gq.append((n + 4, lambda i=i: a_store(i)))
            if k == 27 and e == 1 and 1 <= qt < 3:
                while gq[0][0] < n:
                    self.drain(n, 64)
            else:
                self.drain(n, budget)
        assert self.wd_next == 56
        self.n_up = len(order)
        self.stamp("up mfma")

    def drain(self, n, budget):
        gq, A = self.gq, self.A
        while gq and gq[0][0] <= n:
            o = gq[0][1]
            c = (8 if o.startswith(("v_exp", "v_rcp")) else 4) if isinstance(o, str) else 12
            if c > budget:
                break
            budget -= c
            gq.pop(0)
            A(o) if isinstance(o, str) else o()

    def p5(self):
        A = self.A
        P = self.P
        tok = self.tok
        gq = self.gq
        t0, t1, t2 = sT[5:8]
        sH, sO = sT[19:21]
        vAcc = 16
        vRd, vOo, vWr, vHo = 8, 13, 9, self.vHo
        vH, vU, vR = 192, 128, 136
        fill = [f"s_lshl_b32 s{t0}, s{sG}, 3",
                f"s_add_u32 s{t0}, s{t0}, s{sRH}",
                f"s_mul_i32 s{t0}, s{t0}, {SLOT}",
                f"s_mul_i32 s{t1}, s{sW}, 5",
                f"s_and_b32 s{t1}, s{t1}, 6",
                f"s_lshl_b32 s{t2}, s{sCT}, 3",
                f"s_add_u32 s{t1}, s{t1}, s{t2}",
                f"s_lshl_b32 s{t2}, s{t1}, 4",
                f"s_add_u32 s{sO}, s{t0}, s{t2}",
                f"s_lshl_b32 s{t2}, s{t1}, 7",
                f"s_add_u32 s{sH}, s{t0}, s{t2}",
                f"s_add_u32 s{sH}, s{sH}, {WS_H}",
                f"v_and_b32 v{vOo}, 31, v0",
                f"v_mul_u32_u24 v{vOo}, 896, v{vOo}",
                f"v_lshrrev_b32 v{vRd}, 5, v0",
                f"v_lshl_add_u32 v{vOo}, v{vRd}, 4, v{vOo}"]
        for n in range(1, 4):
            fill += [f"s_xor_b32 s{t0}, s{sW}, {n}", f"s_mul_i32 s{t0}, s{t0}, 6144",
                     f"s_add_u32 s{t0}, s{t0}, {L_SC + (n-1)*2048}", f"v_add_u32 v{vWr+n-1}, s{t0}, v1"]
        fill += [f"s_mul_i32 s{t0}, s{sW}, 6144", f"s_add_u32 s{t0}, s{t0}, {L_SC}", f"v_add_u32 v{vRd}, s{t0}, v1",
                 f"s_mov_b32 s{t0}, 0xffff0000"]
        n = self.n_up
        for o in fill:
            gq.append((n, o))
        def hload():
            A(f"buffer_load_dwordx4 {v(vH,4)}, v{vHo}, {s(rWS,4)}, s{sH} offen sc1")
            A(f"s_add_u32 s{sH}, s{sH}, {4*SLOT}")
            tok["h"] = A(f"buffer_load_dwordx4 {v(vH+4,4)}, v{vHo}, {s(rWS,4)}, s{sH} offen sc1")
        gq.append((n, hload))
        while self.a_next < 12:
            self.a_load()
        def mf(pos, e):
            rho, k = self.DORDER[pos]
            d = vAcc + 32 * rho + 16 * e
            A(f"v_mfma_f32_32x32x16_bf16 {v(d,16)}, {a(8*k+4*e,4)}, {r(self.RING[pos % 28],4)}, {v(d,16) if pos % 28 else '0'}")
        def pw(rho, x):
            pc, rq = 1 + x // 2, x % 2
            A(f"ds_write_b128 v{vWr+pc-1}, {v(vAcc+32*rho+16*(pc&1)+8*(pc>>1)+4*rq,4)} offset:{rho*24576+rq*1024}")
        def pr(rho, x):
            tok["pr", x] = A(f"ds_read_b128 {v(vR+4*x,4)}, v{vRd} offset:{rho*24576+x*1024}")
        def unpack(rho):
            ops = []
            for d in range(4):
                ops += [f"v_lshlrev_b32 v{vU+2*d}, 16, v{vH+4*rho+d}", f"v_and_b32 v{vU+2*d+1}, s{t0}, v{vH+4*rho+d}"]
            return ops
        def ostore(rho):
            A(f"buffer_store_dwordx4 {v(vH+4*rho,4)}, v{vOo}, {s(rOUT,4)}, s{sO} offen")
            if rho == 0:
                A(f"s_add_u32 s{sO}, s{sO}, {4*SLOT}")
        def bar():
            A.wait_all(vm=False)
            A("s_barrier")
        avail = 28
        KT = 4
        A.wait(tok["a", 0], tok["wd", 55])
        for pos in range(56 - KT):
            for e in range(2):
                mf(pos, e)
                budget = 22
                if e == 1:
                    A.wait(tok["a", pos + 1])
                lim = min(avail, pos + 27)
                if e == 0:
                    for _ in range(2 if self.a_next < pos + 11 else 1):
                        if self.a_next < lim:
                            self.a_load()
                            budget -= 6
                for st, key in ((1, "b"), (2, "c")):
                    if e == 1 and pos == P["k_f" + key]:
                        self.f3_send(st)
                        budget -= 12
                    if e == 1 and pos == P["k_p" + key]:
                        self.f3_load(st)
                        budget -= 4
                    if e == 1 and pos == P["k_t" + key]:
                        self.f3_test(st)
                        avail = 28 + 14 * st
                        budget -= 16
                if pos == 27 and e == 1:
                    own = vAcc
                    for x in range(6):
                        gq.append((n + 7 + x, lambda x=x: pw(0, x)))
                    gq.append((n + 12, lambda: A.wait(tok["h"])))
                    for o in unpack(0):
                        gq.append((n + 12, o))
                    for d in range(8):
                        gq.append((n + 12, f"v_add_f32 v{own+d}, v{own+d}, v{vU+d}"))
                    gq.append((n + 16, bar))
                    for x in range(6):
                        gq.append((n + 16, lambda x=x: pr(0, x)))
                    gq.append((n + 24, lambda: A.wait(tok["pr", 5])))
                    for x in range(6):
                        for d in range(4):
                            gq.append((n + 24, f"v_add_f32 v{own+4*(x%2)+d}, v{own+4*(x%2)+d}, v{vR+4*x+d}"))
                    for d in range(4):
                        gq.append((n + 24, f"v_cvt_pk_bf16_f32 v{vH+d}, v{own+2*d}, v{own+2*d+1}"))
                    gq.append((n + 24, lambda: ostore(0)))
                    for o in unpack(1):
                        gq.append((n + 24, o))
                self.drain(n, budget)
                n += 1
        assert self.a_next == 56 and not gq, (self.a_next, len(gq))
        A.wait(tok["a", 55])
        for pos in range(56 - KT, 56):
            mf(pos, 1)
        for x, pos in enumerate(range(56 - KT, 56)):
            mf(pos, 0)
            if x == KT - 2:
                A.nop(12 - (KT - 1))
                pw(1, 0)
                pw(1, 1)
        pw(1, 4)
        pw(1, 5)
        A.nop(10)
        pw(1, 2)
        pw(1, 3)
        self.stamp("down mfma")
        own = vAcc + 32
        for k in range(4):
            A(f"v_pk_add_f32 {v(own+2*k,2)}, {v(own+2*k,2)}, {v(vU+2*k,2)}")
        bar()
        for x in range(6):
            pr(1, x)
        for x in range(6):
            if x % 2 == 0:
                A.wait(tok["pr", x + 1])
            for k in range(2):
                A(f"v_pk_add_f32 {v(own+4*(x%2)+2*k,2)}, {v(own+4*(x%2)+2*k,2)}, {v(vR+4*x+2*k,2)}")
        for d in range(4):
            A(f"v_cvt_pk_bf16_f32 v{vH+4+d}, v{own+2*d}, v{own+2*d+1}")
        ostore(1)
        self.stamp("out stored")

    def tail(self):
        A = self.A
        if self.stop in ("setup", "p1"):
            return
        if self.stop not in ("p2", "p3"):
            A.label("L_help")
            t0, t1 = sT[5:7]
            if self.P["help_touch"]:
                A(f"s_cmp_eq_u32 s{sLOC}, 0")
                A("s_cbranch_scc1 L_help_tag")
                A(f"s_sub_u32 s{t1}, s{sJ}, 28")
                A(f"s_lshl_b32 s{t1}, s{t1}, 2")
                A(f"s_add_u32 s{t1}, s{t1}, s{sW}")
                A(f"s_lshl_b32 s{t0}, s{sG}, 4")
                A(f"s_add_u32 s{t1}, s{t1}, s{t0}")
                A(f"v_lshlrev_b32 v6, 7, v0")
                if not self.P["a_far"]:
                    A(f"s_mul_i32 s{t0}, s{t1}, {448*128}")
                    A(f"s_add_u32 s{t0}, s{t0}, {WS_A}")
                    for k in range(7):
                        A(f"buffer_load_dword v{16+k}, v6, {s(rWS,4)}, s{t0} offen sc1")
                        A(f"s_add_u32 s{t0}, s{t0}, 8192")
                A(f"s_mul_i32 s{t0}, s{t1}, {112*128}")
                A(f"s_add_u32 s{t0}, s{t0}, {WS_H}")
                A(f"buffer_load_dword v24, v6, {s(rWS,4)}, s{t0} offen sc1")
                A(f"s_add_u32 s{t0}, s{t0}, {48*128}")
                A(f"buffer_load_dword v25, v6, {s(rWS,4)}, s{t0} offen sc1")
            A.label("L_help_tag")
            A(f"s_cmp_lg_u32 s{sL}, 31")
            A("s_cbranch_scc1 L_help_end")
            A(f"s_lshl_b32 s{t0}, s{sW}, 13")
            A(f"s_add_u32 s{t0}, s{t0}, {WS_F1}")
            A(f"v_lshl_add_u32 v7, v0, 7, s{t0}")
            self.poll(7, 8, "all")
            A("s_barrier")
            A(f"buffer_store_dword v4, v{vONE}, {s(rSA,4)}, 0 offen sc1")
            A.label("L_help_end")
            self.end()
        for ls, lb, vaddr, vtmp, name, imm in self.spins:
            A.label(ls)
            A(f"s_mov_b64 s[{sEX}:{sEX+1}], vcc")
            self.poll(vaddr, vtmp, name, imm=imm)
            A(f"s_mov_b64 vcc, s[{sEX}:{sEX+1}]")
            A(f"s_branch {lb}")
        for ls, lb, texts in self.far:
            A.label(ls)
            for t in texts:
                A(t + " sc1")
            A(f"s_branch {lb}")
        A.label("L_maxpass")
        self.maxpass()
        A("s_branch L_attn_main")
        if self.stop == "p2":
            return
        A.label("L_redo")
        A(f"s_mov_b32 s{sMODE}, 1")
        A(f"s_mov_b32 s{rJA+2}, 0")
        A(f"s_mov_b32 s{rSB+2}, 0")
        A(f"v_add_u32 v14, s{self.job['jobl']}, v1")
        A.wait_all()
        A("s_barrier")
        A("s_branch L_attn")

    def maxpass(self):
        A = self.A
        vQ, vS = self.vQ, self.vS
        t0, t1 = sT[5:7]
        vM, vK = 48, 56
        A.wait_all()
        A("s_barrier")
        for n in range(4):
            A(f"v_mov_b32 v{vM+n}, 0xff800000")
        A(f"s_lshl_b32 s{t0}, s{sW}, 16")
        A(f"s_add_u32 s{t0}, s{t0}, {WS_KV}")
        A(f"s_mov_b32 s{t1}, 0")
        A.label("L_mp_loop")
        A(f"buffer_load_dwordx4 {v(vK,4)}, v1, {s(rWS,4)}, s{t0} offen sc1")
        A(f"buffer_load_dwordx4 {v(vK+4,4)}, v1, {s(rWS,4)}, s{t0} offen offset:1024 sc1")
        A.wait_all(lg=False)
        for n in range(4):
            A(f"v_mfma_f32_32x32x16_bf16 {v(vS,16)}, {v(vK,4)}, {v(vQ+8*n,4)}, 0")
            A(f"v_mfma_f32_32x32x16_bf16 {v(vS,16)}, {v(vK+4,4)}, {v(vQ+8*n+4,4)}, {v(vS,16)}")
            A.nop(12)
            for k in range(8):
                A(f"v_max3_f32 v{vM+n}, v{vM+n}, v{vS+2*k}, v{vS+2*k+1}")
        A(f"s_add_u32 s{t0}, s{t0}, 4096")
        A(f"s_add_u32 s{t1}, s{t1}, 1")
        A(f"s_cmp_lt_u32 s{t1}, 16")
        A("s_cbranch_scc1 L_mp_loop")
        A("v_lshlrev_b32 v64, 2, v0")
        for n in range(4):
            A(f"s_add_u32 s{t0}, s{sW}, {n+1}")
            A(f"s_and_b32 s{t0}, s{t0}, 3")
            A(f"s_lshl_b32 s{t0}, s{t0}, 10")
            A(f"s_add_u32 s{t0}, s{t0}, {L_SC}")
            A(f"v_and_b32 v65, 31, v0")
            A(f"v_lshl_add_u32 v{68+n}, v65, 2, s{t0}")
            A(f"s_lshl_b32 s{t1}, s{sW}, 8")
            A(f"s_add_u32 s{t0}, s{t0}, s{t1}")
            A(f"v_add_u32 v65, s{t0}, v64")
            A(f"ds_write_b32 v65, v{vM+n}")
        A.wait_all(vm=False)
        A("s_barrier")
        for n in range(4):
            for k in range(8):
                A(f"ds_read_b32 v{72+k}, v{68+n} offset:{128*k}")
            A.wait_all(vm=False)
            A("v_max3_f32 v72, v72, v73, v74")
            A("v_max3_f32 v72, v72, v75, v76")
            A("v_max3_f32 v72, v72, v77, v78")
            A("v_max_f32 v72, v72, v79")
            A("v_sub_f32 v72, 0, v72")
            A("v_and_b32 v73, 0xffff0000, v72")
            A("v_sub_f32 v72, v72, v73")
            A("v_and_b32 v74, 0xffff0000, v72")
            A("v_sub_f32 v72, v72, v74")
            A("v_lshrrev_b32 v73, 16, v73")
            A("v_or_b32 v73, v73, v74")
            A("v_lshrrev_b32 v72, 16, v72")
            A("s_mov_b32 exec_lo, 0")
            A(f"v_mov_b32 v{vQ+8*n+6}, v73")
            A(f"v_mov_b32 v{vQ+8*n+7}, v72")
            A("s_mov_b32 exec_lo, -1")
        A("s_barrier")

    def build(self):
        A = self.A
        head = open("sequential_preLN__grouped_kv_mqa__geglu_ffn__prompt.s.ref").read().splitlines()
        for line in head:
            if line.startswith("; Override"):
                break
            A.raw(line)
        A.raw(f"; @launch grid=(256,1,1) block=(256,1,1) lds={LDS_BYTES}")
        A.raw('.amdgcn_target "amdgcn-amd-amdhsa--gfx950"')
        A.raw(".text")
        A.raw(f".globl {KNAME}")
        A.raw(".p2align 8")
        A.raw(f".type {KNAME},@function")
        A.label(KNAME)
        phases = [("setup", self.setup), ("p1", self.p1)]
        for nm in ("p2", "p3", "p4", "p5"):
            if hasattr(self, nm):
                phases.append((nm, getattr(self, nm)))
        for nm, fn in phases:
            A.comment(f"================ {nm} ================")
            fn()
            if self.stop == nm:
                break
        self.end()
        if hasattr(self, "tail"):
            self.tail()
        A.label("L_exit")
        A("s_endpgm")
        A.raw('.section .rodata,"a"')
        A.raw(".p2align 6")
        A.raw(f".amdhsa_kernel {KNAME}")
        for d in ("next_free_vgpr 512", "next_free_sgpr 102", "accum_offset 256", "group_segment_fixed_size 0",
                  "kernarg_size 96", "user_sgpr_count 2", "user_sgpr_kernarg_segment_ptr 1", "system_sgpr_workgroup_id_x 1"):
            A.raw("  .amdhsa_" + d)
        A.raw(".end_amdhsa_kernel")
        return A.text()


if __name__ == "__main__":
    import argparse
    ap = argparse.ArgumentParser()
    ap.add_argument("-o", default="k.s")
    ap.add_argument("--stop")
    ap.add_argument("--stamps", action="store_true")
    ap.add_argument("--dbg", type=int)
    ap.add_argument("--amp")
    ap.add_argument("-p", default="")
    args = ap.parse_args()
    txt = Gen(args.stop, args.stamps, args.dbg, tuple(map(int, args.amp.split(','))) if args.amp else None,
              {kv.split('=')[0]: int(kv.split('=')[1]) for kv in args.p.split(',') if kv}).build()
    open(args.o, "w").write(txt)
    lint(txt)
```

```python
import sys, math, struct
from asmlib import *

KNAME = "sequential_preLN__grouped_kv_mqa__geglu_ffn__prompt_kernel"

WS_REF = 0
WS_F1 = 0x1000
WS_F1B = 0x9000
WS_F2 = 0x20000
WS_KV = 0x80000
WS_WO = 0xC0000
WS_STAMP = 0x140000
WS_Q = 0x200000
WS_HN = WS_Q
WS_WD = 0x600000
WS_A = 0x800000
WS_END = 0xF00000

SLOT = 28672
L_SC = 4 * SLOT
L_XN = L_SC
L_JOB = L_SC + SLOT
L_Q = L_SC
L_ST = 160768
L_RS = 163584
LDS_BYTES = 163840
OB_STRIDE = 288

def f32(x):
    return "0x%08x" % struct.unpack("<I", struct.pack("<f", x))[0]

sB = 2
sPX, sPWQ, sPWK, sPWV, sPWO, sPWS, sPWG, sPWU, sPWD, sPOUT = 4, 6, 8, 10, 12, 14, 16, 18, 20, 22
rWS, rX, rW, rJA, rWU, rSP, rOUT, rSA, rSB = 24, 28, 32, 36, 40, 44, 48, 52, 56
sL, sW, sRT, sC, sG, sJ, sTAG, sXCC, sREF, sMODE = 60, 61, 62, 63, 64, 65, 66, 67, 68, 69
sCT, sRH = 70, 71
sLOC = 3
sT = list(range(72, 88)) + list(range(94, 102))
sSTAMP = 88
sSPIN = 91
sEX = 92
vONE = 2
SPIN_MAX = 400000


def srd(A, r, ptr, size):
    A(f"s_mov_b32 s{r}, s{ptr}")
    A(f"s_mov_b32 s{r+1}, s{ptr+1}")
    A(f"s_mov_b32 s{r+2}, {size}")
    A(f"s_mov_b32 s{r+3}, 0x00020000")


DEFAULTS = dict(gstamp=0, p1_a=0, p1_b=3, p1_d=4, p1_e=0, p1_f=2, p1_g=1, p1_h=1, p1_bar=0x3f, notest=0, fstamp=0, itstamp=0, x1_tries=12, sl_gl=2, sl_gt=14, it_raw=-1, pf_first=0, pf_step=3, loc=1, it_wu=3, it_tr=7, it_fb=14, it_touch=13, cap=7, cap_end=10,
                wu_nt=0, wo_pace=4, x2_pre=6, wd_p3=18, svc=70, depth=5, lat_far=900, lat_loc=400, lat_flag=400, lead=16, hn_pre=8, t_up=34, min_valu=8, tail_valu=28,
                help_pace=1, help_clean=0, a_loc=1, rot=1, out_far=0)


class Gen:
    def __init__(self, stop=None, stamps=False, dbg=None, amp=None, params=None):
        self.P = dict(DEFAULTS)
        self.P.update(params or {})
        self.dbg = dbg
        self.amp = amp
        self.A = Asm()
        self.stop = stop
        self.stamps = stamps
        self.nstamp = 0
        self.uid = 0
        self.far = []
        self.spins = []

    def lab(self, base):
        self.uid += 1
        return f"L_{base}_{self.uid}"

    def stamp(self, name):
        if not self.stamps:
            return
        A = self.A
        A.raw(f"    s_memrealtime s[{sSTAMP}:{sSTAMP+1}]")
        A.raw(f"    s_memtime s[{sEX}:{sEX+1}]")
        A.raw("    s_waitcnt lgkmcnt(0)")
        A.lg_done = A.lg
        A(f"v_writelane_b32 v255, s{sSTAMP}, {self.nstamp}")
        A(f"v_writelane_b32 v255, s{sEX}, {self.nstamp + 32}")
        self.nstamp += 1

    def stamp_flush(self):
        if not self.stamps:
            return
        A = self.A
        A(f"s_lshl_b32 s{sT[0]}, s{sL}, 2")
        A(f"s_add_u32 s{sT[0]}, s{sT[0]}, s{sW}")
        A(f"s_lshl_b32 s{sT[0]}, s{sT[0]}, 8")
        A(f"s_add_u32 s{sT[0]}, s{sT[0]}, {WS_STAMP}")
        A("v_mbcnt_lo_u32_b32 v254, -1, 0")
        A("v_mbcnt_hi_u32_b32 v254, -1, v254")
        A("v_lshlrev_b32 v254, 2, v254")
        A(f"buffer_store_dword v255, v254, {s(rWS,4)}, s{sT[0]} offen")
        if self.dbg is not None:
            l = self.lab("nodbg")
            A(f"s_lshl_b32 s{sT[0]}, s{sL}, 2")
            A(f"s_add_u32 s{sT[0]}, s{sT[0]}, s{sW}")
            A(f"s_cmp_lg_u32 s{sT[0]}, {self.dbg}")
            A(f"s_cbranch_scc1 {l}")
            A(f"s_load_dwordx2 s[{rJA}:{rJA+1}], s[0:1], 80")
            A(f"s_mov_b32 s{rJA+2}, 64")
            A(f"s_mov_b32 s{rJA+3}, 0x00020000")
            A(f"v_readlane_b32 s{sT[0]}, v255, 0")
            A("v_lshrrev_b32 v254, 1, v254")
            A.wait_all()
            A(f"v_subrev_u32 v255, s{sT[0]}, v255")
            A(f"buffer_store_short v255, v254, {s(rJA,4)}, 0 offen")
            if self.amp:
                i, j = self.amp
                l2 = self.lab("amp")
                A(f"v_readlane_b32 s{sT[0]}, v255, {i}")
                A(f"v_readlane_b32 s{sT[1]}, v255, {j}")
                A.raw(f"    s_memrealtime s[{sSTAMP}:{sSTAMP+1}]")
                A(f"s_sub_u32 s{sT[0]}, s{sT[1]}, s{sT[0]}")
                A(f"s_min_u32 s{sT[0]}, s{sT[0]}, 20000")
                A(f"s_lshl_b32 s{sT[0]}, s{sT[0]}, 2")
                A.raw("    s_waitcnt lgkmcnt(0)")
                A(f"s_add_u32 s{sT[0]}, s{sT[0]}, s{sSTAMP}")
                A.label(l2)
                A.raw(f"    s_memrealtime s[{sSTAMP}:{sSTAMP+1}]")
                A.raw("    s_waitcnt lgkmcnt(0)")
                A(f"s_sub_u32 s{sT[1]}, s{sSTAMP}, s{sT[0]}")
                A(f"s_cmp_lt_i32 s{sT[1]}, 0")
                A(f"s_cbranch_scc1 {l2}")
            A.label(l)

    def xstore(self, *texts, cond="scc"):
        A = self.A
        ls, lb = self.lab("far"), self.lab("back")
        if cond == "scc":
            A(f"s_cmp_eq_u32 s{sLOC}, 0")
            A(f"s_cbranch_scc1 {ls}")
        else:
            A(f"s_cbranch_vccnz {ls}")
        for t in texts:
            tk = A(t)
        A.label(lb)
        self.far.append((ls, lb, texts))
        return tk

    def end(self):
        self.stamp_flush()
        self.A("s_endpgm")

    def poll(self, vaddr, vtmp, name, width=1, backoff=0, imm=0):
        A = self.A
        l0, l1 = self.lab(name), self.lab(name + "_ok")
        A(f"s_mov_b32 s{sSPIN}, 0")
        A.label(l0)
        if backoff:
            A(f"s_sleep {backoff}")
        if width == 1:
            A(f"buffer_load_dword v{vtmp}, v{vaddr}, {s(rWS,4)}, 0 offen offset:{imm} sc1")
        else:
            A(f"buffer_load_dwordx2 {v(vtmp,2)}, v{vaddr}, {s(rWS,4)}, 0 offen sc1")
        A.wait_all(lg=False)
        A(f"v_cmp_ne_u32 vcc, s{sTAG}, v{vtmp}")
        A(f"s_add_u32 s{sSPIN}, s{sSPIN}, 1")
        A(f"s_cbranch_vccz {l1}")
        A(f"s_cmp_lt_u32 s{sSPIN}, {SPIN_MAX}")
        A(f"s_cbranch_scc1 {l0}")
        A.label(l1)

    def setup(self):
        A = self.A
        A(f"s_cmp_ge_u32 s{sB}, 256")
        A("s_cbranch_scc1 L_exit")
        if self.stamps:
            A("v_mov_b32 v255, 0")
        self.stamp("entry")
        A("s_load_dwordx8 s[4:11], s[0:1], 0")
        A("s_load_dwordx2 s[12:13], s[0:1], 32")
        A("s_load_dwordx2 s[14:15], s[0:1], 88")
        A("s_load_dwordx8 s[16:23], s[0:1], 48")
        A("v_lshrrev_b32 v1, 6, v0")
        A("v_and_b32 v0, 63, v0")
        A(f"v_readfirstlane_b32 s{sW}, v1")
        A(f"s_and_b32 s{sL}, s{sB}, 7")
        A(f"s_lshl_b32 s{sL}, s{sL}, 5")
        A(f"s_lshr_b32 s{sT[0]}, s{sB}, 3")
        A(f"s_add_u32 s{sL}, s{sL}, s{sT[0]}")
        A(f"s_lshr_b32 s{sRT}, s{sL}, 2")
        A(f"s_and_b32 s{sC}, s{sL}, 3")
        A(f"s_lshr_b32 s{sG}, s{sL}, 5")
        A(f"s_and_b32 s{sJ}, s{sL}, 31")
        A(f"s_getreg_b32 s{sXCC}, hwreg(HW_REG_XCC_ID, 0, 4)")
        A(f"s_mul_i32 s{sRH}, s{sJ}, 37")
        A(f"s_lshr_b32 s{sRH}, s{sRH}, 8")
        A(f"s_mul_i32 s{sT[0]}, s{sRH}, 7")
        A(f"s_sub_u32 s{sCT}, s{sJ}, s{sT[0]}")
        A(f"s_mov_b32 s{sMODE}, 0")

    def p1(self):
        A = self.A
        P = self.P
        (rot, xb, ct1, ci, jid, jaE, jaE2, wB, wN, wC, lB, lC, wcur, t0, t1, t2,
         jaS, jaS2, jaD, jobl) = sT[:20]
        vL, vL16 = 0, 1
        vXo, vWo, vJAo, vJBo = 2, 3, 4, 5
        vX = 8
        vJAt, vWt, vRR, vCC, vH, vMH, vK8, vT0, vXw, vL32, vT1, vT2 = range(52, 64)
        vF = 64
        vTmp = 120
        vXr = 124
        vJA1, vJA2, vJA3, vJR = 200, 201, 202, 204
        A(f"v_lshlrev_b32 v{vL16}, 4, v{vL}")
        A(f"v_lshrrev_b32 v6, 3, v{vL}")
        A(f"v_and_b32 v7, 7, v{vL}")
        A(f"v_mul_u32_u24 v{vXo}, 896, v6")
        A(f"v_lshl_add_u32 v{vXo}, v7, 4, v{vXo}")
        A(f"s_and_b32 s{rot}, s{sRT}, 7")
        A(f"s_cmp_eq_u32 s{rot}, 7")
        A(f"s_cselect_b32 s{rot}, 0, s{rot}")
        A(f"s_lshl_b32 s{xb}, s{sRT}, 2")
        A(f"s_add_u32 s{xb}, s{xb}, s{sW}")
        A(f"s_mul_i32 s{xb}, s{xb}, {8*896}")
        A(f"s_lshl_b32 s{ct1}, s{sC}, 2")
        A(f"s_add_u32 s{ct1}, s{ct1}, s{sW}")
        A(f"v_bfe_u32 v{vRR}, v{vL}, 2, 2")
        A(f"v_and_b32 v{vCC}, 3, v{vL}")
        A(f"v_lshrrev_b32 v{vH}, 5, v{vL}")
        A(f"v_bfe_u32 v{vMH}, v{vL}, 4, 1")
        A(f"v_lshl_add_u32 v{vK8}, v{vH}, 3, v{vRR}")
        lkv, lj2 = self.lab("w_kv"), self.lab("w_join")
        A(f"s_and_b32 s{t0}, s{sW}, 1")
        A(f"s_cmp_ge_u32 s{ct1}, 14")
        A(f"s_cbranch_scc1 {lkv}")
        A(f"s_lshr_b32 s{wB}, s{ct1}, 1")
        A(f"s_lshl_b32 s{wB}, s{wB}, 7")
        A(f"s_mul_i32 s{wN}, s{t0}, {32*896}")
        A(f"s_add_u32 s{wB}, s{wB}, s{wN}")
        A(f"s_mov_b32 s{wN}, {8*896-1024}")
        A(f"s_mov_b32 s{wC}, {64*896}")
        A(f"s_lshr_b32 s{lB}, s{sW}, 1")
        A(f"s_mul_i32 s{lB}, s{lB}, {2*SLOT}")
        A(f"v_lshlrev_b32 v{vWt}, 7, v{vK8}")
        A(f"v_lshrrev_b32 v{vT0}, 1, v{vRR}")
        A(f"v_xor_b32 v{vT0}, s{t0}, v{vT0}")
        A(f"v_lshl_add_u32 v{vWt}, v{vT0}, 6, v{vWt}")
        A(f"v_add_u32 v{vWt}, s{lB}, v{vWt}")
        A(f"s_lshl_b32 s{lC}, s{t0}, 12")
        A(f"s_add_u32 s{lB}, s{lB}, s{lC}")
        A(f"s_mov_b32 s{lC}, 8192")
        A(f"v_lshlrev_b32 v{vT0}, 6, v{vMH}")
        A(f"v_xor_b32 v{vWo}, v{vXo}, v{vT0}")
        A(f"s_branch {lj2}")
        A.label(lkv)
        A(f"s_mov_b32 s{wB}, 0")
        A(f"s_mov_b32 s{wN}, 0")
        A(f"s_mov_b32 s{wC}, {64*56}")
        A(f"s_mul_i32 s{lB}, s{sW}, {SLOT}")
        A(f"s_mov_b32 s{lC}, 4096")
        A(f"v_mul_u32_u24 v{vWt}, 56, v{vK8}")
        A(f"v_add_u32 v{vWt}, s{lB}, v{vWt}")
        A(f"v_mov_b32 v{vWo}, v{vL16}")
        A.label(lj2)
        A(f"v_lshl_add_u32 v{vWt}, v{vMH}, 5, v{vWt}")
        A(f"v_lshl_add_u32 v{vWt}, v{vCC}, 3, v{vWt}")
        A(f"s_lshl_b32 s{jid}, s{sL}, 2")
        A(f"s_add_u32 s{jid}, s{jid}, s{sW}")
        lwo, ljoin = self.lab("ja_wo"), self.lab("ja_join")
        A(f"s_mov_b32 s{rJA+3}, 0x00020000")
        A(f"s_cmp_ge_u32 s{jid}, 784")
        A(f"s_cbranch_scc1 {lwo}")
        A(f"s_mov_b32 s{rJA+2}, 0")
        A(f"s_mul_i32 s{t0}, s{sL}, 2341")
        A(f"s_lshr_b32 s{t0}, s{t0}, 16")
        A(f"s_mul_i32 s{t1}, s{t0}, 112")
        A(f"s_sub_u32 s{t1}, s{jid}, s{t1}")
        A(f"s_mul_i32 s{jaS}, s{t1}, {16*896}")
        A(f"s_lshl_b32 s{t0}, s{t0}, 7")
        A(f"s_add_u32 s{jaS}, s{jaS}, s{t0}")
        A(f"s_add_u32 s{jaS2}, s{jaS}, {8*896-1024}")
        A(f"s_mov_b32 s{jaE}, 512")
        A(f"s_mov_b32 s{jaE2}, 64")
        A(f"s_lshl_b32 s{jaD}, s{jid}, 11")
        A(f"s_add_u32 s{jaD}, s{jaD}, {WS_WD}")
        A(f"v_mov_b32 v{vJAo}, v{vXo}")
        A(f"v_lshlrev_b32 v{vJAt}, 7, v{vK8}")
        A(f"v_and_b32 v{vT0}, 1, v{vCC}")
        A(f"v_lshl_add_u32 v{vJAt}, v{vT0}, 4, v{vJAt}")
        A(f"v_lshl_add_u32 v{vJAt}, v{vMH}, 5, v{vJAt}")
        A(f"v_lshrrev_b32 v{vT0}, 1, v{vCC}")
        A(f"v_lshl_add_u32 v{vJAt}, v{vT0}, 3, v{vJAt}")
        A(f"s_branch {ljoin}")
        A.label(lwo)
        A(f"s_cmp_lt_u32 s{jid}, 1008")
        A(f"s_cselect_b32 s{rJA+2}, {448*896}, 0")
        A(f"s_sub_u32 s{t0}, s{jid}, 784")
        A(f"s_lshl_b32 s{jaD}, s{t0}, 11")
        A(f"s_add_u32 s{jaD}, s{jaD}, {WS_WO}")
        A(f"s_mul_i32 s{t1}, s{t0}, 1171")
        A(f"s_lshr_b32 s{t1}, s{t1}, 16")
        A(f"s_mul_i32 s{t2}, s{t1}, 56")
        A(f"s_sub_u32 s{t2}, s{t0}, s{t2}")
        A(f"s_lshr_b32 s{t2}, s{t2}, 2")
        A(f"s_and_b32 s{t0}, s{t0}, 3")
        A(f"s_mul_i32 s{jaS}, s{t2}, {32*896}")
        A(f"s_mul_i32 s{t1}, s{t1}, 224")
        A(f"s_add_u32 s{jaS}, s{jaS}, s{t1}")
        A(f"s_lshl_b32 s{t1}, s{t0}, 6")
        A(f"s_add_u32 s{jaS}, s{jaS}, s{t1}")
        A(f"s_add_u32 s{jaS2}, s{jaS}, {16*896-1024}")
        A(f"s_mov_b32 s{jaE}, 256")
        A(f"s_mov_b32 s{jaE2}, 8")
        A(f"s_cmp_eq_u32 s{t0}, 3")
        A(f"s_cselect_b32 s{t0}, 3, 4")
        A(f"v_lshrrev_b32 v{vT0}, 2, v{vL}")
        A(f"v_mul_u32_u24 v{vJAo}, 896, v{vT0}")
        A(f"v_lshl_add_u32 v{vJAo}, v{vCC}, 4, v{vJAo}")
        A(f"v_lshrrev_b32 v{vT0}, 4, v{vL}")
        A(f"v_lshl_add_u32 v{vT0}, v{vT0}, 3, v{vRR}")
        A(f"v_lshlrev_b32 v{vJAt}, 6, v{vT0}")
        A(f"v_lshlrev_b32 v{vT0}, s{t0}, v{vCC}")
        A(f"v_add_u32 v{vJAt}, v{vJAt}, v{vT0}")
        A.label(ljoin)
        A(f"s_mul_i32 s{jobl}, s{sW}, 5120")
        A(f"s_add_u32 s{jobl}, s{jobl}, {L_JOB}")
        A(f"v_add_u32 v{vJAt}, s{jobl}, v{vJAt}")
        A(f"v_add_u32 v{vJA1}, s{jaE}, v{vJAt}")
        A(f"v_add_u32 v{vJA2}, s{jaE2}, v{vJAt}")
        A(f"v_add_u32 v{vJA3}, s{jaE2}, v{vJA1}")
        A(f"s_mov_b32 m0, s{jobl}")
        A(f"s_mov_b32 s{rX+2}, {2048*896}")
        A(f"s_mov_b32 s{rX+3}, 0x00020000")
        A(f"s_mov_b32 s{rW+3}, 0x00020000")
        A(f"s_mov_b32 s{ci}, s{rot}")
        A.wait_all(vm=False)
        self.stamp("kernarg")
        A(f"s_mov_b32 s{rX}, s{sPX}")
        A(f"s_mov_b32 s{rX+1}, s{sPX+1}")
        A(f"s_cmp_lt_u32 s{jid}, 784")
        A(f"s_cselect_b32 s{rJA}, s{sPWD}, s{sPWO}")
        A(f"s_cselect_b32 s{rJA+1}, s{sPWD+1}, s{sPWO+1}")
        lnj = self.lab("nojob")
        A(f"s_cbranch_scc1 {lnj}")
        A.raw(f"    buffer_load_dwordx4 v{vJAo}, {s(rJA,4)}, s{jaS} offen lds")
        A.raw(f"    buffer_load_dwordx4 v{vJAo}, {s(rJA,4)}, s{jaS2} offen offset:1024 lds")
        A.label(lnj)
        tx = []
        for i in range(7):
            A(f"s_lshl_b32 s{t0}, s{ci}, 7")
            A(f"s_add_u32 s{t0}, s{t0}, s{xb}")
            tx.append(A(f"buffer_load_dwordx4 {v(vX+4*i,4)}, v{vXo}, {s(rX,4)}, s{t0} offen"))
            if i < 6:
                A(f"s_add_u32 s{ci}, s{ci}, 1")
                A(f"s_cmp_eq_u32 s{ci}, 7")
                A(f"s_cselect_b32 s{ci}, 0, s{ci}")
        A(f"s_cmp_eq_u32 s{ct1}, 14")
        A(f"s_cselect_b32 s{rW}, s{sPWK}, s{sPWV}")
        A(f"s_cselect_b32 s{rW+1}, s{sPWK+1}, s{sPWV+1}")
        A(f"s_cmp_lt_u32 s{ct1}, 14")
        A(f"s_cselect_b32 s{rW}, s{sPWQ}, s{rW}")
        A(f"s_cselect_b32 s{rW+1}, s{sPWQ+1}, s{rW+1}")
        A(f"s_mov_b32 s{t0}, {448*56}")
        A(f"s_cselect_b32 s{rW+2}, {448*896}, s{t0}")
        A(f"s_mov_b32 s{ci}, s{rot}")
        tok = {}
        side = []
        def wload(i, n):
            def f():
                if n == 0:
                    if i > 0:
                        A(f"s_add_u32 s{lB}, s{lB}, s{lC}")
                        A(f"s_add_u32 s{ci}, s{ci}, 1")
                        A(f"s_cmp_eq_u32 s{ci}, 7")
                        A(f"s_cselect_b32 s{ci}, 0, s{ci}")
                    A(f"s_mul_i32 s{wcur}, s{ci}, s{wC}")
                    A(f"s_mov_b32 m0, s{lB}")
                    A(f"s_add_u32 s{wcur}, s{wcur}, s{wB}")
                else:
                    A(f"s_add_u32 s{wcur}, s{wcur}, s{wN}")
                tok["w", i] = A(f"buffer_load_dwordx4 v{vWo}, {s(rW,4)}, s{wcur} offen offset:{n*1024} lds")
            return f
        for i in range(7):
            for n in range(4):
                side.append(wload(i, n))
        def ja_read():
            A(f"ds_read_b64_tr_b16 {v(vJR,2)}, v{vJAt}")
            A(f"ds_read_b64_tr_b16 {v(vJR+2,2)}, v{vJA1}")
            A(f"ds_read_b64_tr_b16 {v(vJR+4,2)}, v{vJA2}")
            A(f"ds_read_b64_tr_b16 {v(vJR+6,2)}, v{vJA3}")
        def ja_store():
            l = self.lab("nojst")
            A(f"s_cmp_lt_u32 s{jid}, 784")
            A(f"s_cbranch_scc1 {l}")
            A(f"buffer_store_dwordx4 {v(vJR,4)}, v{vL16}, {s(rSA,4)}, s{jaD} offen sc1")
            A(f"buffer_store_dwordx4 {v(vJR+4,4)}, v{vL16}, {s(rSA,4)}, s{jaD} offen offset:1024 sc1")
            A.label(l)
        def pop(n=1):
            for _ in range(n):
                if side:
                    side.pop(0)()
        pop(4)
        A(f"s_load_dword s{sREF}, s[{sPWS}:{sPWS+1}], {WS_REF}")
        A(f"s_lshl_b32 s{t0}, s{sL}, 7")
        A(f"s_add_u32 s{t0}, s{t0}, {WS_F1}")
        A(f"s_add_u32 s{t1}, s{t0}, {WS_F1B - WS_F1}")
        A(f"s_load_dword s{rSP}, s[{sPWS}:{sPWS+1}], s{t0}")
        A(f"s_load_dword s{rSP+1}, s[{sPWS}:{sPWS+1}], s{t1}")
        A(f"s_add_u32 s{t1}, s{t0}, {WS_F2 - WS_F1}")
        A(f"s_load_dword s{rSP+2}, s[{sPWS}:{sPWS+1}], s{t1}")
        srd(A, rWS, sPWS, WS_END)
        pop(P["p1_a"])
        A(f"s_cmp_lt_u32 s{sW}, 2")
        A(f"s_cselect_b32 s{rWU}, s{sPWG}, s{sPWU}")
        A(f"s_cselect_b32 s{rWU+1}, s{sPWG+1}, s{sPWU+1}")
        A(f"s_cmp_lt_u32 s{sJ}, 28")
        A(f"s_cselect_b32 s{rWU+2}, {448*3584}, 0")
        A(f"s_mov_b32 s{rWU+3}, 0x00020000")
        A(f"s_and_b32 s{t0}, s{sW}, 2")
        A(f"v_or_b32 v{vT0}, s{t0}, v{vMH}")
        A(f"v_lshlrev_b32 v{vT0}, 1, v{vT0}")
        A(f"v_xor_b32 v{vT0}, v7, v{vT0}")
        A(f"v_mul_u32_u24 v{vJBo}, 3584, v6")
        A(f"v_lshl_add_u32 v{vJBo}, v{vT0}, 4, v{vJBo}")
        A(f"s_cmp_lt_u32 s{jid}, 784")
        A(f"s_cselect_b32 s{t1}, {WS_END}, 0")
        srd(A, rSB, sPWS, f"s{t1}")
        A(f"s_cmp_lg_u32 s{rJA+2}, 0")
        A(f"s_cselect_b32 s{t1}, {WS_END}, 0")
        srd(A, rSA, sPWS, f"s{t1}")
        srd(A, rOUT, sPOUT, 2048 * 896)
        A(f"s_lshl_b32 s{t0}, s{sW}, 3")
        A(f"v_xor_b32 v{vXw}, v6, v7")
        A(f"v_add_u32 v{vXw}, s{t0}, v{vXw}")
        A(f"v_lshlrev_b32 v{vXw}, 4, v{vXw}")
        A(f"v_lshl_add_u32 v{vXw}, v7, 9, v{vXw}")
        A(f"v_add_u32 v{vXw}, {L_XN}, v{vXw}")
        A(f"v_and_b32 v{vL32}, 31, v{vL}")
        for q in range(4):
            A(f"v_add_u32 v{vT0}, {2*q}, v{vH}")
            A(f"v_xor_b32 v{vT1}, v{vL32}, v{vT0}")
            A(f"v_lshlrev_b32 v{vT1}, 4, v{vT1}")
            A(f"v_lshl_add_u32 v{vT1}, v{vT0}, 9, v{vT1}")
            A(f"v_add_u32 v{vXr+q}, {L_XN}, v{vT1}")
        vRw, vRr, vRS = 203, 212, 216
        A(f"s_lshl_b32 s{t0}, s{sW}, 5")
        A(f"s_add_u32 s{t0}, s{t0}, {L_RS}")
        A(f"v_lshl_add_u32 v{vRw}, v6, 2, s{t0}")
        A(f"s_mov_b32 s{t0}, 0xffff0000")
        for i in range(7):
            A.wait(tx[i])
            if i >= 7 - P["p1_b"]:
                pop()
            for k in range(4):
                A(f"v_lshlrev_b32 v{vF+8*i+2*k}, 16, v{vX+4*i+k}")
                A(f"v_and_b32 v{vF+8*i+2*k+1}, s{t0}, v{vX+4*i+k}")
            if i == 0:
                A(f"v_pk_add_f32 {v(vTmp,2)}, {v(vF,2)}, {v(vF+2,2)}")
                A(f"v_pk_add_f32 {v(vTmp+2,2)}, {v(vF+4,2)}, {v(vF+6,2)}")
            else:
                for k in range(4):
                    d = vTmp + 2 * (k & 1)
                    A(f"v_pk_add_f32 {v(d,2)}, {v(d,2)}, {v(vF+8*i+2*k,2)}")
        self.stamp("x arrived")
        def red8():
            A(f"v_pk_add_f32 {v(vTmp,2)}, {v(vTmp,2)}, {v(vTmp+2,2)}")
            A(f"v_add_f32 v{vTmp}, v{vTmp}, v{vTmp+1}")
            for m in ("quad_perm:[1,0,3,2]", "quad_perm:[2,3,0,1]", "row_half_mirror"):
                A.nop(2)
                A(f"v_add_f32_dpp v{vTmp}, v{vTmp}, v{vTmp} {m} row_mask:0xf bank_mask:0xf")
        red8()
        A(f"v_mul_f32 v{vTmp}, {f32(-1.0/448)}, v{vTmp}")
        for i in range(7):
            for k in range(4):
                A(f"v_pk_add_f32 {v(vF+8*i+2*k,2)}, {v(vF+8*i+2*k,2)}, {v(vTmp,2)} op_sel_hi:[1,0]")
            for k in range(4):
                A(f"v_cvt_pk_bf16_f32 v{vX+4*i+k}, v{vF+8*i+2*k}, v{vF+8*i+2*k+1}")
            A(f"ds_write_b128 v{vXw}, {v(vX+4*i,4)} offset:{i*4096}")
            if i >= 7 - P["p1_d"]:
                pop()
        A(f"v_pk_mul_f32 {v(vTmp,2)}, {v(vF,2)}, {v(vF,2)}")
        A(f"v_pk_mul_f32 {v(vTmp+2,2)}, {v(vF+2,2)}, {v(vF+2,2)}")
        for k in range(2, 14):
            d = vTmp + 2 * (k & 1)
            A(f"v_pk_fma_f32 {v(d,2)}, {v(vF+2*k,2)}, {v(vF+2*k,2)}, {v(d,2)}")
        pop(P["p1_e"])
        A.wait_all(vm=False)
        self.stamp("ln1 done")
        A(f"s_mul_i32 s{sTAG}, s{sREF}, 0x9E3779B1")
        A(f"s_add_u32 s{sTAG}, s{sTAG}, 0x7F4A7C15")
        vAcc, vWf, vXf, NB = 128, 144, 176, 5
        lK, lV, lE = self.lab("g_k"), self.lab("g_v"), self.lab("g_end")
        A(f"s_cmp_eq_u32 s{ct1}, 14")
        A(f"s_cbranch_scc1 {lK}")
        A(f"s_cmp_eq_u32 s{ct1}, 15")
        A(f"s_cbranch_scc1 {lV}")
        state = (A.vm, A.lg, A.vm_done, A.lg_done)
        side_left = list(side)
        ns0 = self.nstamp
        ends = [c for c in range(7) if P["p1_bar"] >> c & 1 or c == 6]
        bar_at = {4 * (ends[i - 1] + 1 if i else 0): c for i, c in enumerate(ends)}
        def gemm(kind):
            A.vm, A.lg, A.vm_done, A.lg_done = state
            side[:] = side_left
            self.nstamp = ns0
            cs, ks, es = (8192, 2048, 512) if kind == "q" else (4096, 896, 224)
            rt = {}
            def reads(n):
                if n in bar_at:
                    while len(side) > 4 * (6 - bar_at[n]):
                        pop()
                    A.wait(tok["w", bar_at[n]], rt.get("rs"))
                    if P["gstamp"]:
                        self.stamp(f"w{bar_at[n]}")
                    A("s_barrier")
                pos, q, b = n // 4, n % 4, 4 * (n % NB)
                A(f"ds_read_b128 {v(vXf+b,4)}, v{vXr+q} offset:{pos*4096}")
                A(f"ds_read_b64_tr_b16 {v(vWf+b,2)}, v{vWt} offset:{pos*cs+q*ks}")
                rt[n] = A(f"ds_read_b64_tr_b16 {v(vWf+b+2,2)}, v{vWt} offset:{pos*cs+q*ks+es}")
            for n in range(NB - 1):
                reads(n)
            pop(P["p1_f"])
            for k in range(14, 28):
                d = vTmp + 2 * (k & 1)
                A(f"v_pk_fma_f32 {v(d,2)}, {v(vF+2*k,2)}, {v(vF+2*k,2)}, {v(d,2)}")
            red8()
            A(f"v_mov_b32 v{vTmp+1}, {f32(1e-5)}")
            A(f"v_fmamk_f32 v{vTmp}, v{vTmp}, {f32(1.0/448)}, v{vTmp+1}")
            A(f"v_rsq_f32 v{vTmp}, v{vTmp}")
            if kind == "v":
                A(f"v_lshlrev_b32 v{vRr}, 4, v{vH}")
            else:
                A(f"v_lshlrev_b32 v{vRr}, 2, v{vL32}")
            rt["rs"] = A(f"ds_write_b32 v{vRw}, v{vTmp}")
            A(f"v_add_u32 v{vRr}, {L_RS}, v{vRr}")
            for n in range(28):
                A.wait(rt[n])
                b = 4 * (n % NB)
                wa, xa = v(vWf + b, 4), v(vXf + b, 4)
                if kind == "v":
                    wa, xa = xa, wa
                A(f"v_mfma_f32_32x32x16_bf16 {v(vAcc,16)}, {wa}, {xa}, {'0' if n == 0 else v(vAcc,16)}")
                if n % P["p1_h"] == 0:
                    pop(P["p1_g"])
                if n + NB - 1 < 28:
                    reads(n + NB - 1)
                if n == 24:
                    ja_read()
                if n == 25:
                    if kind == "v":
                        for a_ in range(4):
                            A(f"ds_read_b128 {v(vRS+4*a_,4)}, v{vRr} offset:{32*a_}")
                    else:
                        A(f"ds_read_b32 v{vRS}, v{vRr}")
            assert not side
            A.wait_all(vm=False)
            if P["gstamp"]:
                self.stamp("gemm")
        gemm("q")
        A(f"v_bfe_u32 v{vT0}, v{vL}, 3, 2")
        A(f"v_mul_u32_u24 v{vT0}, 7168, v{vT0}")
        A(f"v_lshl_add_u32 v{vT0}, v{vH}, 6, v{vT0}")
        A(f"v_lshl_add_u32 v{vT0}, v7, 3, v{vT0}")
        A(f"s_mul_i32 s{t0}, s{sRT}, {4*7168}")
        A(f"s_lshl_b32 s{t1}, s{ct1}, 9")
        A(f"s_add_u32 s{t0}, s{t0}, s{t1}")
        A(f"s_add_u32 s{t0}, s{t0}, {WS_Q}")
        A.nop(3)
        for i in range(4):
            for k in range(2):
                A(f"v_pk_mul_f32 {v(vAcc+4*i+2*k,2)}, {v(vAcc+4*i+2*k,2)}, {v(vRS,2)} op_sel_hi:[1,0]")
            A(f"v_cvt_pk_bf16_f32 v{vF+2*i}, v{vAcc+4*i}, v{vAcc+4*i+1}")
            A(f"v_cvt_pk_bf16_f32 v{vF+2*i+1}, v{vAcc+4*i+2}, v{vAcc+4*i+3}")
            A(f"buffer_store_dwordx2 {v(vF+2*i,2)}, v{vT0}, {s(rWS,4)}, s{t0} offen offset:{i*128} sc1")
        A(f"s_branch {lE}")
        A.label(lK)
        gemm("k")
        A(f"s_lshl_b32 s{t0}, s{sRT}, 12")
        A(f"s_add_u32 s{t0}, s{t0}, {WS_KV}")
        A(f"v_mul_f32 v{vRS}, {f32(28 ** -0.5 * math.log2(math.e))}, v{vRS}")
        A(f"v_cmp_lt_u32 vcc, 31, v{vL}")
        A(f"v_mov_b32 v{vT1}, 0x3f803f80")
        A(f"v_mov_b32 v{vT2}, 0x00003f80")
        A.nop(5)
        for i in range(8):
            A(f"v_pk_mul_f32 {v(vAcc+2*i,2)}, {v(vAcc+2*i,2)}, {v(vRS,2)} op_sel_hi:[1,0]")
        for i in range(8):
            A(f"v_cvt_pk_bf16_f32 v{vF+i}, v{vAcc+2*i}, v{vAcc+2*i+1}")
        A(f"v_cndmask_b32 v{vF+6}, v{vF+6}, v{vT1}, vcc")
        A(f"v_cndmask_b32 v{vF+7}, v{vF+7}, v{vT2}, vcc")
        A(f"buffer_store_dwordx4 {v(vF,4)}, v{vL16}, {s(rWS,4)}, s{t0} offen sc1")
        A(f"buffer_store_dwordx4 {v(vF+4,4)}, v{vL16}, {s(rWS,4)}, s{t0} offen offset:1024 sc1")
        A(f"s_branch {lE}")
        A.label(lV)
        gemm("v")
        A(f"s_lshl_b32 s{t0}, s{sRT}, 12")
        A(f"s_add_u32 s{t0}, s{t0}, {WS_KV}")
        A(f"v_cmp_eq_u32 vcc, 28, v{vL32}")
        A(f"v_mov_b32 v{vT1}, 0x3f803f80")
        A.nop(1)
        A(f"v_cndmask_b32 v{vT1}, 0, v{vT1}, vcc")
        A(f"v_cmp_lt_u32 vcc, 27, v{vL32}")
        A.nop(4)
        for i in range(8):
            A(f"v_pk_mul_f32 {v(vAcc+2*i,2)}, {v(vAcc+2*i,2)}, {v(vRS+2*i,2)}")
        for i in range(8):
            A(f"v_cvt_pk_bf16_f32 v{vF+i}, v{vAcc+2*i}, v{vAcc+2*i+1}")
        for i in range(8):
            A(f"v_cndmask_b32 v{vF+i}, v{vF+i}, v{vT1}, vcc")
        A(f"buffer_store_dwordx4 {v(vF,4)}, v{vL16}, {s(rWS,4)}, s{t0} offen offset:2048 sc1")
        A(f"buffer_store_dwordx4 {v(vF+4,4)}, v{vL16}, {s(rWS,4)}, s{t0} offen offset:3072 sc1")
        A.label(lE)
        ja_store()
        self.stamp("qkv stored")
        self.job = dict(jaS=jaS, jaS2=jaS2, jaD=jaD, jobl=jobl)
        A(f"v_mov_b32 v14, v{vJAt}")
        A(f"v_mov_b32 v12, v{vJAo}")
        A(f"s_cmp_lt_u32 s{jid}, 784")
        A(f"s_cselect_b32 s{rJA+2}, {1792*896}, 0")
        A(f"v_mov_b32 v253, v{vJBo}")
        A(f"v_cmp_eq_u32 vcc, 0, v{vL}")
        A(f"v_mov_b32 v3, 0x7ff00000")
        A(f"v_mov_b32 v4, s{sTAG}")
        A(f"v_cndmask_b32 v{vONE}, v3, 0, vcc")
        A(f"v_mov_b32 v5, s{sXCC}")

    vQ, vO, vS, vP, vKV, vSP = 16, 48, 112, 144, 160, 208
    vL4K = 3

    def wo_reg(self, f):
        if f < 64:
            return 256 + 4 * f
        if f < 75:
            return self.vSP + 4 * (f - 64)
        if f < 77:
            return self.vP + 8 + 4 * (f - 75)
        if f < 81:
            return self.vKV + 16 + 4 * (f - 77)
        if f < 85:
            return self.vKV + 32 + 4 * (f - 81)
        if f < 89:
            return self.vKV + 4 * (f - 85)
        if f < 97:
            return self.vS + 4 * (f - 89)
        return self.vP

    def wo_prep(self, f):
        k = f // 7
        if k != self.wo_win:
            d, self.wo_win = k - self.wo_win, k
            return [f"s_add_u32 s{self.sWO}, s{self.sWO}, {d * 8192}"]
        return []

    def wo_load(self, f, prep=True):
        A = self.A
        if prep:
            for x in self.wo_prep(f):
                A(x)
        t = f % 7
        self.tok["wo", f] = A(f"buffer_load_dwordx4 {r(self.wo_reg(f),4)}, v{1 if t < 4 else self.vL4K}, {s(rWS,4)}, s{self.sWO} offen offset:{(t % 4) * 1024} sc1")

    def wu_prep(self, k):
        n, g = divmod(k, 7)
        ops = [f"s_mov_b32 m0, s{4 + g}"]
        if g == 0 and n:
            ops.append(f"v_add_u32 v253, {28672 - 1024}, v253")
        return ops

    def wu_load(self, k):
        n, g = divmod(k, 7)
        self.tok["wu", k] = self.A(f"buffer_load_dwordx4 v253, {s(rWU,4)}, s{11 + g} offen offset:{n * 1024} lds")

    def async_test(self, token, vtmp, vaddr, name, imm=0, width=1, backoff=0):
        A = self.A
        ls, lb = self.lab(name + "_spin"), self.lab(name + "_ok")
        A.wait(token)
        A(f"v_cmp_ne_u32 s[{sEX}:{sEX+1}], s{sTAG}, v{vtmp}")
        A(f"s_cmp_lg_u64 s[{sEX}:{sEX+1}], 0")
        A(f"s_cbranch_scc1 {ls}")
        A.label(lb)
        self.spins.append((ls, lb, vaddr, vtmp, name, imm, width, backoff))

    def p2(self):
        A = self.A
        P = self.P
        self.tok = tok = {}
        self.sKV, self.sWO, self.sWU, self.sWUL, self.sWUC, t0, t1, t2, self.sHS, self.sAS, self.sXR, sFB = sT[:12]
        sKV = self.sKV
        job = self.job
        vQ, vO, vS, vP, vKV, vSP = self.vQ, self.vO, self.vS, self.vP, self.vKV, self.vSP
        vPA, vPB, vQa, vT0, vT1, vT2 = 6, 7, 8, 48, 49, 50
        vTA, vPL, vPG = 252, 51, 148
        sFL, sQS = sT[12:14]
        A(f"v_add_u32 v{self.vL4K}, 4096, v1")
        A(f"s_mov_b32 s{rW}, s{rWS}")
        A(f"s_mov_b32 s{rW+1}, s{rWS+1}")
        A(f"s_and_b32 s{t0}, s{sW}, 1")
        A(f"s_mul_i32 s{self.sWU}, s{t0}, {224*3584}")
        A(f"s_lshl_b32 s{t0}, s{sJ}, 7")
        A(f"s_add_u32 s{self.sWU}, s{self.sWU}, s{t0}")
        A(f"s_mul_i32 s{self.sWUL}, s{sW}, {SLOT}")
        A(f"s_cmp_eq_u32 s{sG}, 7")
        A(f"s_cselect_b32 s{t0}, 0, s{sG}")
        for g in range(7):
            A(f"s_lshl_b32 s{t1}, s{t0}, 12")
            A(f"s_add_u32 s{4+g}, s{t1}, s{self.sWUL}")
            A(f"s_mul_i32 s{t1}, s{t0}, {4*28672}")
            A(f"s_add_u32 s{11+g}, s{t1}, s{self.sWU}")
            if g < 6:
                A(f"s_add_u32 s{t0}, s{t0}, 1")
                A(f"s_cmp_eq_u32 s{t0}, 7")
                A(f"s_cselect_b32 s{t0}, 0, s{t0}")
        A(f"v_and_b32 v{vT0}, 15, v0")
        A(f"s_lshl_b32 s{t0}, s{sW}, 3")
        A(f"s_add_u32 s{t0}, s{t0}, 3")
        A(f"v_and_b32 v{vT1}, 1, v0")
        A(f"v_lshl_add_u32 v{vPL}, v{vT1}, 2, s{t0}")
        A(f"v_lshrrev_b32 v{vT1}, 1, v{vT0}")
        A(f"v_lshl_add_u32 v{vPA}, v{vT1}, 5, v{vPL}")
        A(f"s_lshl_b32 s{t0}, s{sG}, 5")
        A(f"s_sub_u32 s{t0}, s{t0}, 16")
        A(f"v_add_u32 v{vT1}, s{t0}, v0")
        A(f"v_cmp_lt_u32 vcc, 15, v0")
        A(f"s_mul_i32 s{t0}, s{sW}, 14")
        A(f"s_add_u32 s{t0}, s{t0}, 196")
        A(f"v_cndmask_b32 v{vPA}, v{vPA}, v{vT1}, vcc")
        A(f"v_min_u32 v{vT2}, 13, v{vT0}")
        A(f"v_cmp_lt_u32 vcc, 47, v0")
        A(f"v_add_u32 v{vT1}, s{t0}, v{vT2}")
        A.nop(1)
        A(f"v_cndmask_b32 v{vPA}, v{vPA}, v{vT1}, vcc")
        A(f"v_lshlrev_b32 v{vPA}, 7, v{vPA}")
        A(f"v_add_u32 v{vPA}, {WS_F1}, v{vPA}")
        A(f"s_mul_i32 s{t0}, s{sCT}, 28")
        A(f"s_mul_i32 s{t1}, s{sW}, 7")
        A(f"s_add_u32 s{t0}, s{t0}, s{t1}")
        A(f"v_min_u32 v{vPB}, 6, v0")
        A(f"v_add_u32 v{vPB}, s{t0}, v{vPB}")
        A(f"v_lshlrev_b32 v{vPB}, 7, v{vPB}")
        A(f"v_add_u32 v{vPB}, {WS_F1B}, v{vPB}")
        A(f"s_lshl_b32 s{sFB}, s{sL}, 7")
        A(f"s_add_u32 s{sFB}, s{sFB}, {WS_F1B}")
        A(f"s_mul_i32 s{self.sXR}, s{sL}, 7168")
        A(f"s_mul_i32 s{t1}, s{sW}, 1792")
        A(f"s_add_u32 s{self.sHS}, s{self.sXR}, s{t1}")
        A(f"s_add_u32 s{self.sHS}, s{self.sHS}, {WS_HN}")
        A(f"s_mul_i32 s{t1}, s{sW}, 224")
        A(f"s_add_u32 s{self.sXR}, s{self.sXR}, s{t1}")
        A(f"v_lshl_add_u32 v{vT1}, v{vT2}, 7, s{self.sHS}")
        A(f"s_lshl_b32 s{t1}, s{sG}, 12")
        A(f"s_add_u32 s{t1}, s{t1}, {WS_F2}")
        A(f"v_cmp_lt_u32 vcc, 31, v0")
        A(f"v_and_b32 v{vT2}, 31, v0")
        A(f"v_min_u32 v{vT2}, 23, v{vT2}")
        A(f"v_lshl_add_u32 v{vT2}, v{vT2}, 7, s{t1}")
        A(f"v_cndmask_b32 v{vTA}, v{vT1}, v{vT2}, vcc")
        A(f"s_add_u32 s{t1}, s{t1}, 3072")
        A(f"s_and_b32 s{t0}, s{sJ}, 28")
        A(f"s_add_u32 s{t0}, s{t0}, s{sW}")
        A(f"v_cmp_lt_u32 vcc, 1, v0")
        A(f"v_mov_b32 v{vT1}, s{t0}")
        A(f"s_lshl_b32 s{t0}, s{sJ}, 2")
        A(f"s_add_u32 s{sFL}, s{t1}, s{t0}")
        A(f"v_cndmask_b32 v{vPL}, v{vPL}, v{vT1}, vcc")
        A(f"v_lshl_add_u32 v{vPL}, v{vPL}, 2, s{t1}")
        A.label("L_attn")
        A(f"s_mul_i32 s{sQS}, s{sL}, 7168")
        A(f"s_lshl_b32 s{t1}, s{sW}, 11")
        A(f"s_add_u32 s{sQS}, s{sQS}, s{t1}")
        A(f"s_add_u32 m0, s{t1}, {L_Q}")
        A(f"s_add_u32 s{sQS}, s{sQS}, {WS_Q}")
        A(f"s_lshl_b32 s{sKV}, s{sG}, 2")
        A(f"s_add_u32 s{sKV}, s{sKV}, s{sW}")
        A(f"s_lshl_b32 s{sKV}, s{sKV}, 13")
        A(f"s_add_u32 s{sKV}, s{sKV}, {WS_KV}")
        A(f"s_mul_i32 s{self.sWO}, s{sW}, {14*8192}")
        A(f"s_add_u32 s{self.sWO}, s{self.sWO}, {WS_WO}")
        self.wo_win = 0
        A(f"v_bfe_u32 v{vT0}, v0, 3, 2")
        A(f"v_mul_u32_u24 v{vT0}, 448, v{vT0}")
        A(f"v_lshrrev_b32 v{vT1}, 5, v0")
        A(f"v_lshl_add_u32 v{vT0}, v{vT1}, 6, v{vT0}")
        A(f"v_and_b32 v{vT1}, 7, v0")
        A(f"v_lshl_add_u32 v{vT0}, v{vT1}, 3, v{vT0}")
        for n in range(4):
            A(f"s_add_u32 s{t0}, s{sW}, {n+1}")
            A(f"s_and_b32 s{t0}, s{t0}, 3")
            A(f"s_mul_i32 s{t1}, s{t0}, 1792")
            A(f"s_add_u32 s{t1}, s{t1}, {L_Q}")
            A(f"v_add_u32 v{52+n}, s{t1}, v{vT0}")
            A(f"v_mov_b64 {v(vQ+8*n+6,2)}, 0")
            if n < 3:
                A(f"s_mul_i32 s{t0}, s{t0}, 12288")
                A(f"s_add_u32 s{t0}, s{t0}, {L_SC + n*4096}")
                A(f"v_add_u32 v{vQa+n}, s{t0}, v1")
        A(f"s_cmp_lg_u32 s{sMODE}, 0")
        A("s_cbranch_scc1 L_x1_ok")
        A(f"s_sub_u32 s{t0}, s{sFB}, {WS_F1B - WS_F1}")
        A(f"s_cmp_eq_u32 s{sW}, 0")
        A.wait_all()
        A(f"s_cselect_b32 s{rSA+2}, {WS_END}, 0")
        A("s_barrier")
        A(f"s_cmp_eq_u32 s{sW}, 1")
        A(f"s_cselect_b32 s{rW+2}, {WS_END}, 0")
        A(f"buffer_store_dword v4, v{vONE}, {s(rW,4)}, s{sFL} offen")
        A(f"buffer_store_dwordx2 v[4:5], v{vONE}, {s(rSA,4)}, s{t0} offen sc1")
        self.stamp("f1 sent")
        lp = self.lab("x1loc")
        A(f"s_mov_b32 s{sSPIN}, 0")
        A.label(lp)
        A(f"buffer_load_dword v11, v{vPL}, {s(rWS,4)}, 0 offen sc1")
        A.wait_all(lg=False)
        A(f"v_cmp_ne_u32 vcc, s{sTAG}, v11")
        A(f"s_add_u32 s{sSPIN}, s{sSPIN}, 1")
        A("s_cbranch_vccz L_x1_ok")
        A(f"s_cmp_lt_u32 s{sSPIN}, {P['x1_tries']}")
        A(f"s_cbranch_scc1 {lp}")
        self.poll(vPA, vPG, "x1", width=2, backoff=2)
        A.label("L_x1_ok")
        self.stamp("x1 seen")
        A(f"buffer_load_dwordx4 v1, {s(rWS,4)}, s{sQS} offen sc1 lds")
        tq = A(f"buffer_load_dwordx4 v1, {s(rWS,4)}, s{sQS} offen offset:1024 sc1 lds")
        def kvload(it, fr):
            b = vKV + 16 * (it % 3) + 4 * fr
            tok["kv", it, fr] = A(f"buffer_load_dwordx4 {v(b,4)}, v{self.vL4K if it & 1 else 1}, {s(rWS,4)}, s{sKV} offen offset:{fr*1024} sc1")
        KVSTEP = (f"s_add_u32 s{sKV}, s{sKV}, 32768", f"s_and_b32 s{sKV}, s{sKV}, {WS_KV + 0x3ffff}")
        for it in range(2):
            for fr in range(4):
                kvload(it, fr)
        def raw():
            A(f"buffer_load_dwordx4 v12, {s(rJA,4)}, s{job['jaS']} offen lds")
            tok["raw"] = A(f"buffer_load_dwordx4 v12, {s(rJA,4)}, s{job['jaS2']} offen offset:1024 lds")
        A(f"s_mov_b32 m0, s{job['jobl']}")
        A(KVSTEP[0])
        A(KVSTEP[1])
        if P["it_raw"] < 0:
            raw()
        A.wait(tq)
        A("s_barrier")
        A("s_mov_b32 exec_hi, 0")
        for n in range(4):
            A(f"ds_read_b64 {v(vQ+8*n+6,2)}, v{52+n} offset:384")
        A("s_mov_b32 exec_hi, -1")
        for n in range(4):
            for i in range(3):
                A(f"ds_read_b64 {v(vQ+8*n+2*i,2)}, v{52+n} offset:{i*128}")
        A(f"s_cmp_lg_u32 s{sMODE}, 0")
        A.wait_all(vm=False)
        A("s_cbranch_scc1 L_maxpass")
        A.label("L_attn_main")
        self.stamp("q ready")

        def smf(n, half):
            it, q = divmod(n, 4)
            d = vS + 16 * (n & 1)
            k = vKV + 16 * (it % 3) + 4 * half
            A(f"v_mfma_f32_32x32x16_bf16 {v(d,16)}, {v(k,4)}, {v(vQ+8*q+4*half,4)}, {v(d,16) if half else '0'}")
        def pmf(n, half):
            it, q = divmod(n, 4)
            d = vO + 16 * q
            vv = vKV + 16 * (it % 3) + 8 + 4 * half
            c = "0" if (it == 0 and half == 0) else v(d, 16)
            A(f"v_mfma_f32_32x32x16_bf16 {v(d,16)}, {v(vv,4)}, {v(vP+4*half,4)}, {c}")
        def owrite(slot, rq):
            A(f"ds_write_b128 v{vQa+slot}, {v(vO+16*slot+4*rq,4)} offset:{rq*1024}")

        sidew = {}
        def put(it, sl, fn):
            it, sl = divmod(16 * it + sl, 16)
            sidew.setdefault((it, sl), []).append(fn if callable(fn) else (lambda fn=fn: A(fn)))
        for it in range(1, 14):
            for fr in range(4):
                put(it, 2 * fr + (2 if it == 1 else 0), lambda it=it, fr=fr: kvload(it + 2, fr))
            if it & 1:
                put(it, 9, KVSTEP[0])
                put(it, 13, KVSTEP[1])
        for it in range(15):
            put(it, 11, lambda it=it: A.wait(tok["kv", it + 1, 1 if it == 1 else 3]))
        put(2, 1, lambda: A.wait(tok["kv", 2, 3]))
        put(0, 1, lambda: A.wait(tok["kv", 0, 3]))
        def g_load():
            tok["x1g"] = A(f"buffer_load_dwordx2 {v(vPG+4,2)}, v{vPA}, {s(rWS,4)}, 0 offen sc1")
        def g_test():
            self.async_test(tok["x1g"], vPG + 4, vPA, "x1g", width=2, backoff=2)
            for fr in range(4):
                kvload(2, fr)
            A(f"v_cmp_ne_u32 vcc, s{sXCC}, v{vPG+5}")
            A(f"s_lshr_b64 vcc, vcc, 16")
            A(f"s_cmp_eq_u32 vcc_lo, 0")
            A(f"s_cselect_b32 s{sLOC}, {P['loc']}, 0")
        put(0, P["sl_gl"], g_load)
        put(0, P["sl_gt"], g_test)
        if P["it_raw"] >= 0:
            put(P["it_raw"], 10, raw)
        IT_TR, IT_FB = P["it_tr"], P["it_fb"]
        def trd(k):
            A.wait(tok["raw"])
            A(f"ds_read_b64_tr_b16 {v(vP+8+4*k,2)}, v14 offset:{64*k}")
            tok["tr", k] = A(f"ds_read_b64_tr_b16 {v(vP+8+4*k+2,2)}, v14 offset:{64*k+512}")
        def jst(k):
            if k == 0:
                A.wait_all(vm=False)
            tok["jst", k] = A(f"buffer_store_dwordx4 {v(vP+8+4*k,4)}, v1, {s(rSB,4)}, s{job['jaD']} offen offset:{k*1024} sc1")
        put(IT_TR, 13, lambda: trd(0))
        put(IT_TR, 15, lambda: trd(1))
        put(IT_TR + 1, 9, lambda: jst(0))
        put(IT_TR + 2, 9, lambda: jst(1))
        def fb_send():
            A.wait(tok["jst", 1])
            A("s_barrier")
            A(f"buffer_store_dword v4, v{vONE}, {s(rSA,4)}, s{sFB} offen sc1")
        put(IT_TR + 4, 12, fb_send)
        def fb_load():
            tok["f1b"] = A(f"buffer_load_dword v11, v{vPB}, {s(rWS,4)}, 0 offen sc1")
        put(IT_FB, 5, fb_load)
        put(IT_FB + 1, 5, lambda: self.async_test(tok["f1b"], 11, vPB, "f1b"))
        put(P["it_touch"], 5, f"buffer_load_dword v13, v{vTA}, {s(rWS,4)}, 0 offen sc1")
        taken = lambda it, sl: (it, sl) in sidew
        wo_q = list(range(85))
        wu_q = list(range(28))
        for it in range(1, 16):
            cap = P["cap"] if it < 14 else P["cap_end"]
            cand = (8, 10, 12, 14, 1, 3, 5, 15, 7, 9, 13) if it < 14 else (8, 10, 12, 2, 4, 6, 0, 14, 3, 1, 9, 13, 7, 15, 5)
            for sl in sorted([x for x in cand if not taken(it, x)][:cap]):
                if (it == 15 and sl > 9) or 16 * it + sl <= P["sl_gt"]:
                    continue
                if wu_q and sl in (8, 10, 12) and 28 - len(wu_q) < 28 * (it + 1 - P["it_wu"]) / (15 - P["it_wu"]):
                    k = wu_q.pop(0)
                    for x in self.wu_prep(k):
                        put(it, sl - 1, x)
                    put(it, sl, lambda k=k: self.wu_load(k))
                elif wo_q:
                    f = wo_q[0]
                    if (75 <= f < 77 and it < IT_TR + 3) or (77 <= f < 81 and (it, sl) < (14, 2)) or (81 <= f < 85 and (it, sl) < (15, 2)):
                        continue
                    wo_q.pop(0)
                    for x in self.wo_prep(f):
                        put(it, sl - 1, x)
                    put(it, sl, lambda f=f: self.wo_load(f, False))
        assert not wu_q, wu_q
        k = 0
        for pos in range(P["pf_first"], 16 * IT_TR, P["pf_step"]):
            if k < 32:
                fr_ = [x for x in range(pos, pos + P["pf_step"]) if not taken(*divmod(x, 16))]
                put(0, fr_[0] if fr_ else pos, f"s_buffer_load_dwordx2 s[{rSP}:{rSP+1}], {s(rWU,4)}, s11 offset:{k * 3584 + 60}")
                k += 1
        assert k == 32 or not P["pf_step"] < 99, k
        self.wo_left = wo_q + list(range(85, 98))
        vXr = 34
        def xaddr():
            A(f"v_and_b32 v12, 7, v0")
            A(f"v_lshrrev_b32 v13, 4, v0")
            A(f"v_mul_u32_u24 v14, 896, v12")
            A(f"v_lshl_add_u32 v15, v13, 3, v14")
            A(f"v_lshl_add_u32 v14, v13, 4, v14")
        put(15, 0, xaddr)
        def xload(i):
            if i < 3:
                A(f"buffer_load_dwordx4 {v(vXr+4*i,4)}, v14, {s(rX,4)}, s{self.sXR} offen offset:{64*i}")
            else:
                tok["x"] = A(f"buffer_load_dwordx2 {v(vXr+12,2)}, v15, {s(rX,4)}, s{self.sXR} offen offset:192")
        for i in range(4):
            put(15, 11 + i, lambda i=i: xload(i))
        for q in range(3):
            for rq, sl in enumerate((7, 8, 9, 10)):
                if 4 * q + sl < 16:
                    put(15, 4 * q + sl, lambda q=q, rq=rq: owrite(q, rq))
        A.wait(tok["kv", 0, 1])
        smf(0, 0)
        smf(0, 1)
        A.nop(11)
        for n in range(64):
            it, q = divmod(n, 4)
            mf = [(lambda: smf(n + 1, 0)) if n < 63 else None, (lambda: pmf(n - 1, 1)) if n > 0 else None,
                  (lambda: smf(n + 1, 1)) if n < 63 else None, lambda: pmf(n, 0)]
            S = vS + 16 * (n & 1)
            if P["itstamp"] and self.stamps and it in (1, 2, 3, 4, 5, 6, 7, 8, 9, 10, 11, 12, 13, 14, 15):
                if q == 0:
                    A.raw("    s_memtime s[22:23]")
                if q == 2:
                    A.comment(f"stamp {self.nstamp}: it {it}")
                    A.raw(f"    v_writelane_b32 v255, s22, {self.nstamp} ; diagnostic")
                    A.raw(f"    v_writelane_b32 v255, s22, {self.nstamp + 32} ; diagnostic")
                    self.nstamp += 1
            for j in range(4):
                if mf[j]:
                    mf[j]()
                for fn in sidew.get((it, 4 * q + j), []):
                    fn()
                for e in range(4):
                    A(f"v_exp_f32 v{S+4*j+e}, v{S+4*j+e}")
                A(f"v_cvt_pk_bf16_f32 v{vP+2*j}, v{S+4*j}, v{S+4*j+1}")
                A(f"v_cvt_pk_bf16_f32 v{vP+2*j+1}, v{S+4*j+2}, v{S+4*j+3}")
        owrite(2, 1)
        owrite(2, 2)
        pmf(63, 1)
        owrite(2, 3)
        self.stamp("attn loop")

    def p3(self):
        A = self.A
        P = self.P
        tok = self.tok
        vQ, vO = self.vQ, self.vO
        t0, t1, t2 = sT[5:8]
        sHS = self.sHS
        vAcc, vXr = 16, 34
        vB = 48
        vR, vOw, vB0, vB1 = 8, 9, 10, 11
        vT0, vT1, vT2, vT3 = 12, 13, 14, 15
        vOwn = vO + 48
        wo_q = self.wo_left
        def wo_pop(n=1):
            for _ in range(n):
                if wo_q:
                    self.wo_load(wo_q.pop(0))
        A(f"s_mul_i32 s{t0}, s{sW}, 12288")
        A(f"s_add_u32 s{t0}, s{t0}, {L_SC}")
        A(f"v_add_u32 v{vR}, s{t0}, v1")
        wo_pop(2)
        A.wait_all(vm=False)
        A("s_barrier")
        tr_ = []
        for n in range(12):
            tr_.append(A(f"ds_read_b128 {v(vO+4*n,4)}, v{vR} offset:{n*1024}"))
        wo_pop(2)
        A(f"v_mul_u32_u24 v{vB0}, {OB_STRIDE}, v{vT0}")
        A(f"v_bfe_u32 v{vT2}, v0, 3, 2")
        A(f"v_mad_u32_u24 v{vOw}, v{vT2}, 56, v{vB0}")
        A(f"v_lshrrev_b32 v{vT2}, 5, v0")
        A(f"v_lshl_add_u32 v{vOw}, v{vT2}, 3, v{vOw}")
        A(f"v_add_u32 v{vOw}, s{t0}, v{vOw}")
        A(f"v_lshl_add_u32 v{vB0}, v{vT1}, 4, v{vB0}")
        A(f"v_add_u32 v{vB0}, {L_SC}, v{vB0}")
        A(f"v_mul_u32_u24 v{vT2}, {12288-224}, v{vT2}")
        A(f"v_add_u32 v{vB1}, v{vB0}, v{vT2}")
        for n in range(12):
            if n % 2 == 0:
                A.wait(tr_[n + 1])
            rq = n % 4
            for k in range(2):
                A(f"v_pk_add_f32 {v(vOwn+4*rq+2*k,2)}, {v(vOwn+4*rq+2*k,2)}, {v(vO+4*n+2*k,2)}")
        A(f"v_mov_b32 v{vT2}, v{vOwn+12}")
        A(f"v_mov_b32 v{vT3}, v{vOwn+12}")
        A(f"s_mov_b32 s{t1}, {f32(2.0**-40)}")
        A(f"s_add_u32 s{t2}, s{t0}, 4096")
        A(f"v_permlane32_swap_b32 v{vT2}, v{vT3}")
        A(f"v_rcp_f32 v{vT2}, v{vT3}")
        A(f"v_cmp_nle_f32 vcc, s{t1}, v{vT3}")
        A(f"s_mov_b32 s{t1}, {f32(2.0**40)}")
        A(f"v_cmp_nge_f32 s[{sEX}:{sEX+1}], s{t1}, v{vT3}")
        for i in range(4):
            for k in (2 * i, 2 * i + 1):
                A(f"v_pk_mul_f32 {v(vOwn+2*k,2)}, {v(vOwn+2*k,2)}, {v(vT2,2)} op_sel_hi:[1,0]")
            for k in (2 * i, 2 * i + 1):
                A(f"v_cvt_pk_bf16_f32 v{vO+k}, v{vOwn+2*k}, v{vOwn+2*k+1}")
            if i == 3:
                A("s_mov_b32 exec_hi, 0")
            A(f"ds_write_b64 v{vOw}, {v(vO+2*i,2)} offset:{16*i}")
        A(f"s_or_b64 vcc, vcc, s[{sEX}:{sEX+1}]")
        A(f"s_cselect_b32 s{t1}, 1, 0")
        A(f"v_mov_b32 v{vT2}, s{t2}")
        A(f"v_mov_b32 v{vT3}, s{t1}")
        A(f"ds_write_b32 v{vT2}, v{vT3}")
        A("s_mov_b32 exec_hi, -1")
        A(f"v_and_b32 v{vT2}, 3, v0")
        A(f"v_mul_u32_u24 v{vT2}, 12288, v{vT2}")
        A(f"v_add_u32 v{vT2}, {L_SC + 4096}, v{vT2}")
        wo_pop(2)
        A.wait_all(vm=False)
        A("s_barrier")
        tfl = A(f"ds_read_b32 v104, v{vT2}")
        tb = []
        for k in range(14):
            g = 4 * k
            reg, rem = divmod(g, 14)
            tb.append(A(f"ds_read_b128 {v(vB+4*k,4)}, v{vB1 if k in (3, 10) else vB0} offset:{reg*12288+rem*16}"))
        A.wait(tok["x"])
        A(f"s_mov_b32 s{t1}, 0xffff0000")
        for d in range(14):
            A(f"v_and_b32 v{vAcc+2*d+1}, s{t1}, v{vXr+d}")
            A(f"v_lshlrev_b32 v{vAcc+2*d}, 16, v{vXr+d}")
        A.wait(tfl)
        A(f"v_cmp_ne_u32 vcc, 0, v104")
        A(f"s_cmp_lg_u32 s{sMODE}, 0")
        A(f"s_cselect_b64 vcc, 0, vcc")
        A("s_cbranch_vccnz L_redo")
        self.stamp("o ready")
        pre = self.wd_setup()
        vSt, vSo, vSo2 = 8, 9, 10
        sSS = sT[13]
        fill = [f"v_lshrrev_b32 v{vT2}, 5, v0",
                f"v_lshlrev_b32 v{vSt}, 4, v{vT0}",
                f"v_lshl_add_u32 v105, v{vT2}, 7, v{vSt}",
                f"s_lshl_b32 s{t1}, s{sW}, 2",
                f"s_add_u32 s{t1}, s{t1}, {L_ST}",
                f"v_add_u32 v105, s{t1}, v105",
                f"v_add_u32 v106, {L_ST}, v{vSt}",
                f"v_and_b32 v{vT2}, 8, v0",
                f"v_lshl_add_u32 v{vT2}, v{vT2}, 27, v{vSt}",
                f"v_and_b32 v107, 56, v0",
                f"v_lshlrev_b32 v107, 24, v107",
                f"v_lshl_add_u32 v107, v{vT0}, 3, v107",
                f"s_lshl_b32 s{sSS}, s{sL}, 7",
                f"s_add_u32 s{sSS}, s{sSS}, {WS_F1 + 64}",
                f"v_lshl_add_u32 v{vSo}, v{vT1}, 7, v{vT2}",
                f"v_lshrrev_b32 v{vT3}, 1, v{vT1}",
                f"v_lshl_add_u32 v{vSo2}, v{vT3}, 7, v{vT2}",
                f"v_and_b32 v{vT3}, 1, v{vT1}",
                f"v_lshl_add_u32 v{vSo2}, v{vT3}, 3, v{vSo2}",
                f"s_lshr_b32 s{t0}, s{sJ}, 2",
                f"s_lshl_b32 s{t0}, s{t0}, 7",
                f"s_lshl_b32 s{t2}, s{sC}, 4",
                f"s_add_u32 s{t0}, s{t0}, s{t2}",
                f"s_lshl_b32 s{t2}, s{sW}, 2",
                f"s_add_u32 s{t0}, s{t0}, s{t2}",
                f"s_lshl_b32 s{t2}, s{sG}, 12",
                f"s_add_u32 s{t0}, s{t0}, s{t2}",
                f"s_add_u32 s{t0}, s{t0}, {WS_F2}"]
        for k in range(14):
            for tt in range(7):
                f = 7 * k + tt
                A.wait(tb[k], tok["wo", f])
                A(f"v_mfma_f32_16x16x32_bf16 {v(vAcc+4*tt,4)}, {r(self.wo_reg(f),4)}, {v(vB+4*k,4)}, {v(vAcc+4*tt,4)}")
                if f % P["wo_pace"] == 0:
                    if wo_q:
                        wo_pop()
                    elif self.wd_next < f - 2 and len(pre) <= max(0, 36 - 6 * (self.wd_next // 4)) and self.wd_next < P['wd_p3']:
                        self.wd_load()
                elif pre:
                    for _ in range(2):
                        if pre:
                            o = pre.pop(0)
                            if isinstance(o, str) and o.startswith("s_cmp"):
                                o = (o, pre.pop(0))
                            for x in ([o] if isinstance(o, str) else o):
                                A(x)
                elif k >= 4 and fill:
                    A(fill.pop(0))
        assert not wo_q and not fill
        self.stamp("wo done")
        A.nop(2)
        A(f"v_pk_add_f32 v[48:49], {v(vAcc,2)}, {v(vAcc+2,2)}")
        A(f"v_pk_mul_f32 v[50:51], {v(vAcc,2)}, {v(vAcc,2)}")
        A(f"v_pk_fma_f32 v[50:51], {v(vAcc+2,2)}, {v(vAcc+2,2)}, v[50:51]")
        for k in range(2, 14):
            A(f"v_pk_add_f32 v[48:49], v[48:49], {v(vAcc+2*k,2)}")
            A(f"v_pk_fma_f32 v[50:51], {v(vAcc+2*k,2)}, {v(vAcc+2*k,2)}, v[50:51]")
        A("v_add_f32 v48, v48, v49")
        A("v_add_f32 v50, v50, v51")
        A.nop(2)
        A("v_permlane32_swap_b32 v48, v50")
        A("v_add_f32 v48, v48, v50")
        A("v_mov_b32 v49, v48")
        A.nop(2)
        A("v_permlane16_swap_b32 v48, v49")
        A("v_add_f32 v48, v48, v49")
        A("ds_write_b32 v105, v48")
        A(f"v_mov_b32 v56, {f32(1.0/448)}")
        A.wait_all(vm=False)
        A("s_barrier")
        A("ds_read_b128 v[48:51], v106")
        A("ds_read_b128 v[52:55], v106 offset:128")
        A.wait_all(vm=False)
        A("v_pk_add_f32 v[48:49], v[48:49], v[50:51]")
        A("v_pk_add_f32 v[52:53], v[52:53], v[54:55]")
        A("v_add_f32 v48, v48, v49")
        A("v_add_f32 v52, v52, v53")
        A("v_mul_f32 v48, v56, v48")
        A("v_mul_f32 v49, v48, v48")
        A("v_fma_f32 v52, v52, v56, -v49")
        A("v_max_f32 v52, 0, v52")
        A(f"v_add_f32 v51, {f32(1e-5)}, v52")
        A("v_rsq_f32 v52, v51")
        A("v_mov_b32 v50, v48")
        A("v_mul_f32 v48, -v48, v52")
        A("v_mul_f32 v51, v51, v52")
        for k in range(14):
            a0 = vAcc + 2 * k
            A(f"v_pk_fma_f32 {v(a0,2)}, {v(a0,2)}, v[52:53], v[48:49] op_sel_hi:[1,0,0]")
            if k > 0:
                A(f"v_cvt_pk_bf16_f32 v{56+k-1}, v{a0-2}, v{a0-1}")
        A(f"v_cvt_pk_bf16_f32 v69, v{vAcc+26}, v{vAcc+27}")
        ts = self.xstore(f"buffer_store_dwordx4 v[56:59], v{vSo}, {s(rWS,4)}, s{sHS} offen",
                         f"buffer_store_dwordx4 v[60:63], v{vSo}, {s(rWS,4)}, s{sHS} offen offset:512",
                         f"buffer_store_dwordx4 v[64:67], v{vSo}, {s(rWS,4)}, s{sHS} offen offset:1024",
                         f"buffer_store_dwordx2 v[68:69], v{vSo2}, {s(rWS,4)}, s{sHS} offen offset:1536",
                         f"buffer_store_dwordx2 v[50:51], v107, {s(rSA,4)}, s{sSS} offen")
        self.stamp("hn stored")
        for _ in range(P["x2_pre"]):
            self.wd_load()
        A.wait(ts)
        self.xstore(f"buffer_store_dword v4, v{vONE}, {s(rWS,4)}, s{t0} offen")
        self.stamp("f2 sent")

    def wd_setup(self):
        A = self.A
        t0, t1, t2 = sT[5:8]
        self.sWD = sT[12]
        self.vWD = 6
        ops = [f"s_mul_i32 s{t1}, s{sW}, 1152",
               f"s_and_b32 s{t1}, s{t1}, 1280",
               f"v_xor_b32 v{self.vWD}, s{t1}, v1",
               f"v_xor_b32 v{self.vWD+1}, 1024, v{self.vWD}",
               f"s_cmp_lt_u32 s{sJ}, 28",
               f"s_cselect_b32 s{rSB+2}, {WS_END}, 0",
               f"s_mul_i32 s{t1}, s{sW}, 28",
               f"s_mul_i32 s18, s{sCT}, 112",
               f"s_add_u32 s18, s18, s{t1}",
               f"s_lshl_b32 s18, s18, 11",
               f"s_add_u32 s18, s18, {WS_WD}",
               f"s_lshl_b32 s19, s{sG}, 3",
               f"s_add_u32 s19, s19, s{sRH}",
               f"s_mul_i32 s19, s19, 112",
               f"s_add_u32 s19, s19, s{t1}",
               f"s_lshl_b32 s19, s19, 10",
               f"s_add_u32 s19, s19, {WS_A}",
               f"s_mul_i32 s{t1}, s{sRH}, {self.P['rot'] & 2}",
               f"s_mul_i32 s{t2}, s{sCT}, {self.P['rot'] & 1}",
               f"s_add_u32 s{t1}, s{t1}, s{t2}",
               f"s_cmp_ge_u32 s{t1}, 7",
               f"s_cselect_b32 s{t2}, 7, 0",
               f"s_sub_u32 s20, s{t1}, s{t2}"]
        for p in range(7):
            ops += [f"s_lshl_b32 s21, s20, 13", f"s_add_u32 s{11+p}, s18, s21",
                    f"s_lshl_b32 s21, s20, 12", f"s_add_u32 s{4+p}, s19, s21"]
            if p < 6:
                ops += ["s_add_u32 s20, s20, 1", ("s_cmp_eq_u32 s20, 7", "s_cselect_b32 s20, 0, s20")]
        self.wd_next = 0
        return ops

    KORD = [k for k in range(28) if k % 4 < 2] + [k for k in range(28) if k % 4 >= 2]

    def wd_load(self):
        A = self.A
        n = self.wd_next
        self.wd_next += 1
        k, e = self.KORD[n // 2], n % 2
        if k % 4 == 2 and e == 0:
            A(f"s_add_u32 s{11 + k // 4}, s{11 + k // 4}, 4096")
        self.tok["wd", n] = A(f"buffer_load_dwordx4 {a(4*n,4)}, v{self.vWD+e}, {s(rSB,4)}, s{11 + k // 4} offen offset:{(k % 2) * 2048} sc1")

    def gelu_ops(self, acc, out):
        vT = 208
        seq = []
        for i in range(0, 8, 2):
            ops = []
            for k in (0, 1):
                g, u, t = acc + i + k, acc + 8 + i + k, vT + k
                ops.append([f"v_mul_f32 v{t}, v{g}, v{g}", f"v_fma_f32 v{t}, v{t}, s{self.sC1}, v{self.vC0}",
                            f"v_mul_f32 v{t}, v{t}, v{g}", f"v_exp_f32 v{t}, v{t}", f"v_mul_f32 v{u}, v{g}, v{u}",
                            f"v_add_f32 v{t}, 1.0, v{t}", f"v_rcp_f32 v{t}, v{t}", f"v_mul_f32 v{t}, v{t}, v{u}"])
            x, y = ops
            seq += [x[0], y[0], x[1], y[1], x[2], y[2], x[3], y[3], x[4], x[5], y[5], x[6], y[6], y[4], x[7], y[7]]
            seq.append(f"v_cvt_pk_bf16_f32 v{out + i // 2}, v{vT}, v{vT+1}")
        return seq

    def p4(self):
        A = self.A
        P = self.P
        tok = self.tok
        t0, t1, t2 = sT[5:8]
        sHN, self.sC1, sAS, sAS2, self.sF3 = sT[13:18]
        vHN, vAc, vWf, vOut = 16, 128, 192, 212
        self.vC0, self.vP3 = 210, 12
        vPA, vWa, vHo = 13, 8, 15
        self.vHo = vHo
        c0 = -2.0 * math.log2(math.e) * math.sqrt(2.0 / math.pi)
        A(f"s_cmp_ge_u32 s{sJ}, 28")
        A("s_cbranch_scc1 L_help")
        A(f"s_lshl_b32 s{t1}, s{sG}, 12")
        A(f"s_lshl_b32 s{t2}, s{sW}, 7")
        A(f"s_add_u32 s{t2}, s{t2}, s{t1}")
        A(f"s_add_u32 s{t2}, s{t2}, {WS_F2}")
        A(f"v_and_b32 v{vPA}, 15, v0")
        A(f"v_lshl_add_u32 v{vPA}, v{vPA}, 2, s{t2}")
        A(f"v_and_b32 v14, 16, v0")
        A(f"v_lshl_add_u32 v{vPA}, v14, 5, v{vPA}")
        tp = A(f"buffer_load_dword v14, v{vPA}, {s(rWS,4)}, 0 offen sc1")
        A(f"s_lshl_b32 s{t0}, s{sJ}, 2")
        A(f"s_add_u32 s{self.sF3}, s{t2}, s{t0}")
        A(f"s_add_u32 s{self.sF3}, s{self.sF3}, 1024")
        A(f"s_lshl_b32 s{t2}, s{sRH}, 7")
        A(f"s_add_u32 s{t1}, s{t1}, s{t2}")
        A(f"s_mul_i32 s{t2}, s{sW}, 28")
        A(f"s_add_u32 s{t1}, s{t1}, s{t2}")
        A(f"s_add_u32 s{t1}, s{t1}, {WS_F2 + 1024}")
        A(f"v_min_u32 v{self.vP3}, 6, v0")
        A(f"v_lshl_add_u32 v{self.vP3}, v{self.vP3}, 2, s{t1}")
        A(f"s_lshl_b32 s{t1}, s{sG}, 3")
        A(f"v_add_u32 v{self.vL4K}, {4*112*1024}, v1")
        A(f"s_add_u32 s{t1}, s{t1}, s{sW}")
        A(f"s_mul_i32 s{sHN}, s{t1}, {SLOT}")
        A(f"s_add_u32 s{sHN}, s{sHN}, {WS_HN}")
        A(f"s_mul_i32 s{sAS}, s{t1}, 112")
        A(f"s_add_u32 s{sAS}, s{sAS}, s{t0}")
        A(f"s_lshl_b32 s{sAS}, s{sAS}, 10")
        A(f"s_add_u32 s{sAS}, s{sAS}, {WS_A}")
        A(f"s_add_u32 s{sAS2}, s{sAS}, {4*112*1024}")
        self.a_next = 0
        A(f"v_bfe_u32 v{vHo}, v0, 3, 2")
        A(f"v_mul_u32_u24 v{vHo}, 7168, v{vHo}")
        A(f"v_lshrrev_b32 v208, 5, v0")
        A(f"v_lshl_add_u32 v{vHo}, v208, 7, v{vHo}")
        A(f"v_and_b32 v209, 0x70, v1")
        A(f"v_add_u32 v{vHo}, v{vHo}, v209")
        A(f"v_bfe_u32 v209, v0, 2, 2")
        A(f"v_lshl_add_u32 v208, v208, 3, v209")
        A(f"v_lshlrev_b32 v{vWa}, 7, v208")
        A(f"v_bfe_u32 v208, v0, 3, 2")
        A(f"v_lshl_add_u32 v{vWa}, v208, 5, v{vWa}")
        A(f"v_lshrrev_b32 v208, 1, v208")
        A(f"v_mul_u32_u24 v208, {2*SLOT}, v208")
        A(f"v_add_u32 v{vWa}, v{vWa}, v208")
        A(f"v_and_b32 v208, 1, v0")
        A(f"v_lshl_add_u32 v{vWa}, v208, 4, v{vWa}")
        A(f"v_and_b32 v208, 2, v0")
        A(f"v_lshl_add_u32 v{vWa}, v208, 2, v{vWa}")
        for tt in range(1, 4):
            A(f"v_xor_b32 v{vWa+tt}, {32*tt}, v{vWa}")
        A(f"v_mov_b32 v{self.vC0}, {f32(c0)}")
        A(f"s_mov_b32 s{self.sC1}, {f32(c0 * 0.044715)}")
        A(f"s_cmp_eq_u32 s{sLOC}, 0")
        A(f"s_cselect_b64 vcc, -1, 0")
        order = [(qt, k, e) for qt in range(4) for k in range(28) for e in (0, 1)]
        NB = 4
        def wread(n):
            qt, k, e = order[n]
            tt = 2 * (qt & 1) + e
            b = vWf + 4 * (n % NB)
            A(f"ds_read_b64_tr_b16 {v(b,2)}, v{vWa+tt} offset:{k*2048}")
            tok["wf", n] = A(f"ds_read_b64_tr_b16 {v(b+2,2)}, v{vWa+tt} offset:{k*2048+512}")
        for n in range(NB - 1):
            wread(n)
        self.async_test(tp, 14, vPA, "x2")
        self.stamp("x2 seen")
        hwin = [0]
        def hn_load(rho, k):
            win = rho * 4 * SLOT + (k // 16) * 4096
            if win != hwin[0]:
                A(f"s_add_u32 s{sHN}, s{sHN}, {win - hwin[0]}")
                hwin[0] = win
            tok["hn", rho, k] = A(f"buffer_load_dwordx4 {v(vHN+4*k,4)}, v{vHo}, {s(rWS,4)}, s{sHN} offen offset:{(k%16)*256} sc1")
        SVC, DEPTH = P["svc"], P["depth"]
        M = dict(t=0, q=0)
        done = {}
        def vm(key, lat):
            M["q"] = max(M["q"], M["t"]) + SVC
            done[key] = M["q"] + lat
        gq = []
        def drain(n, budget):
            while gq and gq[0][0] <= n:
                o = gq[0][1]
                c = (8 if o.startswith(("v_exp", "v_rcp")) else 4) if isinstance(o, str) else 12
                if c > budget:
                    break
                budget -= c
                gq.pop(0)
                A(o) if isinstance(o, str) else o()
        def a_store(i):
            far = i < 8 - 2 * P["a_loc"]
            text = f"buffer_store_dwordx4 {v(vOut+4*(i&1),4)}, v1, {s(rWS,4)}, s{sAS2 if i >= 4 else sAS} offen offset:{(i%4)*1024}"
            tok["as", i] = A(text + " sc1") if far else self.xstore(text, cond="vcc")
            vm(("as", i), P["lat_far"] if far else P["lat_loc"])
        st = dict(sent=0, polled=0, seen=0)
        def f3_send():
            q = st["sent"]
            if P["notest"] < 2:
                A.wait(tok["as", 2 * q + 1])
            self.xstore(f"buffer_store_dword v4, v{vONE}, {s(rWS,4)}, s{self.sF3} offen offset:{512 * q}", cond="vcc")
            done["sent", q] = max(M["q"], M["t"]) + P["lat_flag"]
            st["sent"] += 1
        def f3_load():
            q = st["polled"]
            tok["p3", q] = A(f"buffer_load_dword v14, v{self.vP3}, {s(rWS,4)}, 0 offen offset:{512 * q} sc1")
            done["poll", q] = max(M["q"], M["t"]) + P["lat_loc"]
            st["polled"] += 1
        def f3_test():
            q = st["seen"]
            if P["notest"] == 0:
                self.async_test(tok["p3", q], 14, self.vP3, f"x3_{q}", imm=512 * q)
            elif P["notest"] == 1:
                A.wait(tok["p3", q])
            st["seen"] += 1
        DORD = [(rho, k) for rho in (0, 1) for k in self.KORD]
        free = [(220 + 4 * i, -1, 99) for i in range(8)] + [(480 + 4 * i, -1, 99) for i in range(8)]
        free += [(vHN + 4 * k, 168 + 2 * k + 1, 28 if k < 16 else 99) for k in range(8, 28)]
        areg = {}
        def a_ready(n):
            p = self.a_next
            if p >= 14 * st["seen"]:
                return None
            ok = [x for x in free if x[1] <= n and p < x[2]]
            return min(ok, key=lambda x: x[2]) if ok else None
        def a_load(slot):
            p = self.a_next
            self.a_next += 1
            free.remove(slot)
            areg[p] = slot
            rho, k = DORD[p]
            tok["a", p] = A(f"buffer_load_dwordx4 {r(slot[0],4)}, v{self.vL4K if rho else 1}, {s(rWS,4)}, s{4 + k // 4} offen offset:{(k % 4) * 1024} sc1")
            vm(("a", p), P["lat_loc"])
        hn_next = [0]
        def hn_pop():
            rho, k = divmod(hn_next[0], 28)
            hn_next[0] += 1
            hn_load(rho, k)
            vm(("hn", rho, k), P["lat_loc"])
        def side(n):
            used = 0
            t = M["t"]
            need = 224 + 28 * st["seen"] - P["lead"]
            late = n >= need
            if st["seen"] < st["polled"]:
                if t >= done["poll", st["seen"]] or late:
                    f3_test(); used += 16
            elif st["polled"] < st["sent"]:
                if t >= done["sent", st["polled"]] or late:
                    f3_load(); used += 4
            if st["sent"] < 4 and ("as", 2 * st["sent"] + 1) in done and (t >= done["as", 2 * st["sent"] + 1] or (late and st["sent"] == st["seen"])):
                f3_send(); used += 12
            for _ in range(2):
                if M["q"] - t >= DEPTH * SVC:
                    break
                h = hn_next[0]
                slot = a_ready(n)
                if h < 28 or (h < 56 and n >= 56 + 2 * (h - 28) + 1):
                    hn_pop()
                elif slot and (self.wd_next >= 56 or self.a_next <= self.wd_next // 2):
                    a_load(slot)
                elif self.wd_next < 56:
                    self.wd_load()
                    vm(("wd", self.wd_next - 1), P["lat_loc"])
                elif slot:
                    a_load(slot)
                else:
                    break
                used += 5
            return used
        for k in range(P["hn_pre"]):
            hn_pop()
        M["t"] = done["hn", 0, 0]
        A.wait(tok["wf", 0], tok["hn", 0, 0])
        for n, (qt, k, e) in enumerate(order):
            acc = vAc + 16 * (2 * (qt & 1) + e)
            if P["fstamp"] and n and n % 28 == 0:
                self.stamp(f"up {n}")
            A(f"v_mfma_f32_32x32x16_bf16 {v(acc,16)}, {v(vWf+4*(n%NB),4)}, {v(vHN+4*k,4)}, {v(acc,16) if k else '0'}")
            if n + 1 < len(order):
                q1, k1, _ = order[n + 1]
                while ("hn", q1 >> 1, k1) not in tok:
                    hn_pop()
                A.wait(tok["wf", n + 1], tok["hn", q1 >> 1, k1])
                M["t"] = max(M["t"], done["hn", q1 >> 1, k1] - 32)
            if n + NB - 1 < len(order):
                wread(n + NB - 1)
            budget = 16 - side(n)
            if k == 27:
                i = 2 * qt + e
                for o in self.gelu_ops(acc, vOut + 4 * e):
                    gq.append((n + (4 if qt < 3 else 7), o))
                gq.append((n + 4, lambda i=i: a_store(i)))
            if k == 27 and e == 1 and 1 <= qt < 3:
                while gq[0][0] < n:
                    drain(n, 64)
            else:
                drain(n, max(budget, P["min_valu"]))
            M["t"] += P["t_up"]
        self.stamp("up mfma")
        sH, sO, sS = sT[19:22]
        vSo, vMS = 200, 204
        vAcc = 16
        vRd, vOo, vWr = 8, 13, 9
        vH, vU, vR = 192, 128, 136
        fill = [f"s_lshl_b32 s{t0}, s{sG}, 3",
                f"s_add_u32 s{t0}, s{t0}, s{sRH}",
                f"s_lshl_b32 s{sS}, s{t0}, 9",
                f"s_add_u32 s{sS}, s{sS}, {WS_F1 + 64}",
                f"s_mul_i32 s{t0}, s{t0}, {SLOT}",
                f"s_mul_i32 s{t1}, s{sW}, 5",
                f"s_and_b32 s{t1}, s{t1}, 6",
                f"s_lshl_b32 s{t2}, s{sCT}, 3",
                f"s_add_u32 s{t1}, s{t1}, s{t2}",
                f"s_lshl_b32 s{t2}, s{t1}, 4",
                f"s_add_u32 s{sO}, s{t0}, s{t2}",
                f"s_lshl_b32 s{t2}, s{t1}, 7",
                f"s_add_u32 s{sH}, s{t0}, s{t2}",
                f"s_add_u32 s{sH}, s{sH}, {WS_HN}",
                f"v_bfe_u32 v{vSo}, v0, 3, 2",
                f"v_lshlrev_b32 v{vSo}, 7, v{vSo}",
                f"v_and_b32 v{vRd}, 7, v0",
                f"v_lshl_add_u32 v{vSo}, v{vRd}, 3, v{vSo}"]
        fill2 = [f"v_and_b32 v{vOo}, 31, v0",
                 f"v_mul_u32_u24 v{vOo}, 896, v{vOo}",
                 f"v_lshrrev_b32 v{vRd}, 5, v0",
                 f"v_lshl_add_u32 v{vOo}, v{vRd}, 4, v{vOo}"]
        for x in range(1, 4):
            fill2 += [f"s_xor_b32 s{t0}, s{sW}, {x}", f"s_mul_i32 s{t0}, s{t0}, 6144",
                      f"s_add_u32 s{t0}, s{t0}, {L_SC + (x-1)*2048}", f"v_add_u32 v{vWr+x-1}, s{t0}, v1"]
        fill2 += [f"s_mul_i32 s{t0}, s{sW}, 6144", f"s_add_u32 s{t0}, s{t0}, {L_SC}", f"v_add_u32 v{vRd}, s{t0}, v1",
                  f"s_mov_b32 s{t0}, 0xffff0000"]
        n = len(order)
        def hload():
            A(f"buffer_load_dwordx4 {v(vH,4)}, v{vHo}, {s(rWS,4)}, s{sH} offen sc1")
            A(f"s_add_u32 s{sH}, s{sH}, {4*SLOT}")
            A(f"buffer_load_dwordx4 {v(vH+4,4)}, v{vHo}, {s(rWS,4)}, s{sH} offen sc1")
            A(f"buffer_load_dwordx2 {v(vMS,2)}, v{vSo}, {s(rWS,4)}, s{sS} offen sc1")
            tok["h"] = A(f"buffer_load_dwordx2 {v(vMS+2,2)}, v{vSo}, {s(rWS,4)}, s{sS} offen offset:2048 sc1")
            for x in range(3):
                vm("h", 0)
        for o in fill + fill2 + [hload]:
            gq.append((n, o))
        def mf(pos, e):
            rho = pos // 28
            d = vAcc + 32 * rho + 16 * e
            A(f"v_mfma_f32_32x32x16_bf16 {v(d,16)}, {a(8*(pos%28)+4*e,4)}, {r(areg[pos][0],4)}, {v(d,16) if pos % 28 else '0'}")
        def pw(rho, x):
            pc, rq = 1 + x // 2, x % 2
            A(f"ds_write_b128 v{vWr+pc-1}, {v(vAcc+32*rho+16*(pc&1)+8*(pc>>1)+4*rq,4)} offset:{rho*24576+rq*1024}")
        def pr(rho, x):
            tok["pr", x] = A(f"ds_read_b128 {v(vR+4*x,4)}, v{vRd} offset:{rho*24576+x*1024}")
        def unpack(rho):
            ops = []
            for d in range(4):
                ops += [f"v_lshlrev_b32 v{vU+2*d}, 16, v{vH+4*rho+d}", f"v_and_b32 v{vU+2*d+1}, s{t0}, v{vH+4*rho+d}"]
            for d in range(8):
                ops.append(f"v_fma_f32 v{vU+d}, v{vU+d}, v{vMS+2*rho+1}, v{vMS+2*rho}")
            return ops
        def ostore(rho):
            A(f"buffer_store_dwordx4 {v(vH+4*rho,4)}, v{vOo}, {s(rOUT,4)}, s{sO} offen" + (" sc1" if P["out_far"] >> rho & 1 else ""))
            if rho == 0:
                A(f"s_add_u32 s{sO}, s{sO}, {4*SLOT}")
                vm("o", 0)
        def bar():
            A.wait_all(vm=False)
            A("s_barrier")
        def need(pos, n):
            guard = 0
            while ("a", pos) not in tok or (pos < 28 and ("wd", 2 * pos + 1) not in tok):
                if ("as", 2 * st["sent"] + 1) not in done and st["sent"] == st["seen"] and self.a_next >= 14 * st["seen"]:
                    drain(n, 64)
                M["t"] += 64
                side(max(n, 224 + 28 * st["seen"]) if False else n)
                guard += 1
                assert guard < 400
            toks = [tok["a", pos]] + ([tok["wd", 2 * pos + 1]] if pos < 28 else [])
            A.wait(*toks)
            M["t"] = max(M["t"], done["a", pos] - 32)
        KT = 4
        need(0, n - 1)
        for pos in range(56 - KT):
            if P["fstamp"] and pos and pos % 7 == 0:
                self.stamp(f"down {pos}")
            for e in range(2):
                mf(pos, e)
                if e == 1:
                    free.append((areg[pos][0], n, areg[pos][2]))
                    need(pos + 1, n)
                budget = 22 - side(n)
                if pos == 27 and e == 1:
                    own = vAcc
                    for x in range(6):
                        gq.append((n + 12 + x, lambda x=x: pw(0, x)))
                    gq.append((n + 12, lambda: A.wait(tok["h"])))
                    for o in unpack(0):
                        gq.append((n + 12, o))
                    for d in range(8):
                        gq.append((n + 12, f"v_add_f32 v{own+d}, v{own+d}, v{vU+d}"))
                    gq.append((n + 22, bar))
                    for x in range(6):
                        gq.append((n + 22, lambda x=x: pr(0, x)))
                    for o in unpack(1):
                        gq.append((n + 22, o))
                    gq.append((n + 30, lambda: A.wait(tok["pr", 5])))
                    for x in range(6):
                        for d in range(4):
                            gq.append((n + 30, f"v_add_f32 v{own+4*(x%2)+d}, v{own+4*(x%2)+d}, v{vR+4*x+d}"))
                    for d in range(4):
                        gq.append((n + 30, f"v_cvt_pk_bf16_f32 v{vH+d}, v{own+2*d}, v{own+2*d+1}"))
                    gq.append((n + 30, lambda: ostore(0)))
                drain(n, max(budget, 12) if ('as', 7) in tok else P['tail_valu'])
                M["t"] += 32
                n += 1
        while gq:
            drain(n + 99, 64)
        need(55, n)
        print(f"model: end of schedule at {M['t']} cycles", file=sys.stderr)
        for pos in range(56 - KT, 56):
            mf(pos, 1)
        for x, pos in enumerate(range(56 - KT, 56)):
            mf(pos, 0)
            if x == KT - 2:
                A.nop(12 - (KT - 1))
                pw(1, 0)
                pw(1, 1)
        pw(1, 4)
        pw(1, 5)
        A.nop(10)
        pw(1, 2)
        pw(1, 3)
        self.stamp("down mfma")
        own = vAcc + 32
        for k in range(4):
            A(f"v_pk_add_f32 {v(own+2*k,2)}, {v(own+2*k,2)}, {v(vU+2*k,2)}")
        bar()
        for x in range(6):
            pr(1, x)
        for x in range(6):
            if x % 2 == 0:
                A.wait(tok["pr", x + 1])
            for k in range(2):
                A(f"v_pk_add_f32 {v(own+4*(x%2)+2*k,2)}, {v(own+4*(x%2)+2*k,2)}, {v(vR+4*x+2*k,2)}")
        for d in range(4):
            A(f"v_cvt_pk_bf16_f32 v{vH+4+d}, v{own+2*d}, v{own+2*d+1}")
        ostore(1)
        self.stamp("out stored")

    def tail(self):
        A = self.A
        if self.stop in ("setup", "p1"):
            return
        if self.stop not in ("p2", "p3"):
            A.label("L_help")
            t0, t1 = sT[5:7]
            P = self.P
            A(f"s_cmp_eq_u32 s{sLOC}, 0")
            A("s_cbranch_scc1 L_help_tag")
            A(f"s_sub_u32 s{t1}, s{sJ}, 28")
            A(f"s_lshl_b32 s{t1}, s{t1}, 2")
            A(f"s_add_u32 s{t1}, s{t1}, s{sW}")
            if P["a_loc"]:
                if P["help_pace"]:
                    A(f"s_lshl_b32 s{t0}, s{sG}, 12")
                    A(f"s_add_u32 s{t0}, s{t0}, {WS_F2}")
                    A(f"v_and_b32 v7, 15, v0")
                    A(f"v_lshl_add_u32 v7, v7, 2, s{t0}")
                    A(f"v_lshrrev_b32 v8, 4, v0")
                    A(f"v_lshl_add_u32 v7, v8, 7, v7")
                    self.poll(7, 8, "h0", backoff=4)
                    self.poll(7, 8, "h1", backoff=4, imm=512)
                A(f"v_and_b32 v6, 15, v0")
                A(f"v_lshlrev_b32 v6, 7, v6")
                A(f"v_lshrrev_b32 v7, 4, v0")
                A(f"v_lshl_add_u32 v6, v7, 12, v6")
                A(f"s_lshl_b32 s{t0}, s{sG}, 5")
                A(f"s_add_u32 s{t0}, s{t0}, s{t1}")
                A(f"s_mul_i32 s{t0}, s{t0}, {SLOT}")
                for qt in range(4 - P["a_loc"], 4):
                    for k in range(2):
                        A(f"s_add_u32 s{sT[7]}, s{t0}, {WS_A + (qt >> 1) * 16 * SLOT + (qt & 1) * 2048 + k * 12288}")
                        A(f"buffer_load_dword v{16 + 2*qt + k}, v6, {s(rWS,4)}, s{sT[7]} offen sc1")
                        if P["help_pace"] > 1:
                            A.wait_all(lg=False)
            if P["help_clean"]:
                A(f"s_lshl_b32 s{t0}, s{sG}, 12")
                A(f"s_add_u32 s{t0}, s{t0}, {WS_F2 + 1024 + 1024}")
                A(f"v_and_b32 v7, 31, v0")
                A(f"v_min_u32 v7, 27, v7")
                A(f"v_lshl_add_u32 v7, v7, 2, s{t0}")
                A(f"v_lshrrev_b32 v8, 5, v0")
                A(f"v_lshl_add_u32 v7, v8, 7, v7")
                self.poll(7, 8, "c0", backoff=16)
                self.poll(7, 8, "c1", backoff=4, imm=256)
                A(f"s_lshl_b32 s{t0}, s{sG}, 4")
                A(f"s_add_u32 s{t0}, s{t0}, s{t1}")
                A(f"s_mul_i32 s{t0}, s{t0}, {2*7168}")
                A(f"s_add_u32 s{t0}, s{t0}, {WS_HN}")
                for rnd in range(2):
                    for k in range(14):
                        if k % 4 == 0:
                            A(f"s_add_u32 s{sT[7]}, s{t0}, {k*1024}")
                        op = "load" if rnd == 0 else "store"
                        A(f"buffer_{op}_dwordx4 {v(32+4*k,4)}, v1, {s(rWS,4)}, s{sT[7]} offen offset:{(k%4)*1024} sc1")
                    if rnd == 0:
                        A.wait_all(lg=False)
            A.label("L_help_tag")
            A(f"s_cmp_lg_u32 s{sL}, 31")
            A("s_cbranch_scc1 L_help_end")
            A(f"s_lshl_b32 s{t0}, s{sW}, 13")
            A(f"s_add_u32 s{t0}, s{t0}, {WS_F1}")
            A(f"v_lshl_add_u32 v7, v0, 7, s{t0}")
            self.poll(7, 8, "all")
            A("s_barrier")
            A(f"buffer_store_dword v4, v{vONE}, {s(rSA,4)}, 0 offen sc1")
            A.label("L_help_end")
            self.end()
        for ls, lb, vaddr, vtmp, name, imm, width, backoff in self.spins:
            A.label(ls)
            A(f"s_mov_b64 s[{sEX}:{sEX+1}], vcc")
            self.poll(vaddr, vtmp, name, imm=imm, width=width, backoff=backoff)
            A(f"s_mov_b64 vcc, s[{sEX}:{sEX+1}]")
            A(f"s_branch {lb}")
        for ls, lb, texts in self.far:
            A.label(ls)
            for t in texts:
                A(t + " sc1")
            A(f"s_branch {lb}")
        A.label("L_maxpass")
        self.maxpass()
        A("s_branch L_attn_main")
        if self.stop == "p2":
            return
        A.label("L_redo")
        A(f"s_mov_b32 s{sMODE}, 1")
        A(f"s_mov_b32 s{rSB+2}, 0")
        A(f"s_mov_b32 s{rJA+2}, 0")
        A(f"v_subrev_u32 v253, {3 * (28672 - 1024)}, v253")
        A(f"v_add_u32 v14, s{self.job['jobl']}, v1")
        A.wait_all()
        A("s_barrier")
        A("s_branch L_attn")

    def maxpass(self):
        A = self.A
        vQ, vS = self.vQ, self.vS
        t0, t1 = sT[5:7]
        vM, vK = 48, 56
        A.wait_all()
        A("s_barrier")
        for n in range(4):
            A(f"v_mov_b32 v{vM+n}, 0xff800000")
        A(f"s_lshl_b32 s{t0}, s{sW}, 16")
        A(f"s_add_u32 s{t0}, s{t0}, {WS_KV}")
        A(f"s_mov_b32 s{t1}, 0")
        A.label("L_mp_loop")
        A(f"buffer_load_dwordx4 {v(vK,4)}, v1, {s(rWS,4)}, s{t0} offen sc1")
        A(f"buffer_load_dwordx4 {v(vK+4,4)}, v1, {s(rWS,4)}, s{t0} offen offset:1024 sc1")
        A.wait_all(lg=False)
        for n in range(4):
            A(f"v_mfma_f32_32x32x16_bf16 {v(vS,16)}, {v(vK,4)}, {v(vQ+8*n,4)}, 0")
            A(f"v_mfma_f32_32x32x16_bf16 {v(vS,16)}, {v(vK+4,4)}, {v(vQ+8*n+4,4)}, {v(vS,16)}")
            A.nop(12)
            for k in range(8):
                A(f"v_max3_f32 v{vM+n}, v{vM+n}, v{vS+2*k}, v{vS+2*k+1}")
        A(f"s_add_u32 s{t0}, s{t0}, 4096")
        A(f"s_add_u32 s{t1}, s{t1}, 1")
        A(f"s_cmp_lt_u32 s{t1}, 16")
        A("s_cbranch_scc1 L_mp_loop")
        A("v_lshlrev_b32 v64, 2, v0")
        for n in range(4):
            A(f"s_add_u32 s{t0}, s{sW}, {n+1}")
            A(f"s_and_b32 s{t0}, s{t0}, 3")
            A(f"s_lshl_b32 s{t0}, s{t0}, 10")
            A(f"s_add_u32 s{t0}, s{t0}, {L_SC}")
            A(f"v_and_b32 v65, 31, v0")
            A(f"v_lshl_add_u32 v{68+n}, v65, 2, s{t0}")
            A(f"s_lshl_b32 s{t1}, s{sW}, 8")
            A(f"s_add_u32 s{t0}, s{t0}, s{t1}")
            A(f"v_add_u32 v65, s{t0}, v64")
            A(f"ds_write_b32 v65, v{vM+n}")
        A.wait_all(vm=False)
        A("s_barrier")
        for n in range(4):
            for k in range(8):
                A(f"ds_read_b32 v{72+k}, v{68+n} offset:{128*k}")
            A.wait_all(vm=False)
            A("v_max3_f32 v72, v72, v73, v74")
            A("v_max3_f32 v72, v72, v75, v76")
            A("v_max3_f32 v72, v72, v77, v78")
            A("v_max_f32 v72, v72, v79")
            A("v_sub_f32 v72, 0, v72")
            A("v_and_b32 v73, 0xffff0000, v72")
            A("v_sub_f32 v72, v72, v73")
            A("v_and_b32 v74, 0xffff0000, v72")
            A("v_sub_f32 v72, v72, v74")
            A("v_lshrrev_b32 v73, 16, v73")
            A("v_or_b32 v73, v73, v74")
            A("v_lshrrev_b32 v72, 16, v72")
            A("s_mov_b32 exec_lo, 0")
            A(f"v_mov_b32 v{vQ+8*n+6}, v73")
            A(f"v_mov_b32 v{vQ+8*n+7}, v72")
            A("s_mov_b32 exec_lo, -1")
        A("s_barrier")

    def build(self):
        A = self.A
        head = open("sequential_preLN__grouped_kv_mqa__geglu_ffn__prompt.s.ref").read().splitlines()
        for line in head:
            if line.startswith("; Override"):
                break
            A.raw(line)
        A.raw(f"; @launch grid=(256,1,1) block=(256,1,1) lds={LDS_BYTES}")
        A.raw('.amdgcn_target "amdgcn-amd-amdhsa--gfx950"')
        A.raw(".text")
        A.raw(f".globl {KNAME}")
        A.raw(".p2align 8")
        A.raw(f".type {KNAME},@function")
        A.label(KNAME)
        phases = [("setup", self.setup), ("p1", self.p1)]
        for nm in ("p2", "p3", "p4", "p5"):
            if hasattr(self, nm):
                phases.append((nm, getattr(self, nm)))
        for nm, fn in phases:
            A.comment(f"================ {nm} ================")
            fn()
            if self.stop == nm:
                break
        self.end()
        if hasattr(self, "tail"):
            self.tail()
        A.label("L_exit")
        A("s_endpgm")
        A.raw('.section .rodata,"a"')
        A.raw(".p2align 6")
        A.raw(f".amdhsa_kernel {KNAME}")
        for d in ("next_free_vgpr 512", "next_free_sgpr 102", "accum_offset 256", "group_segment_fixed_size 0",
                  "kernarg_size 96", "user_sgpr_count 2", "user_sgpr_kernarg_segment_ptr 1", "system_sgpr_workgroup_id_x 1"):
            A.raw("  .amdhsa_" + d)
        A.raw(".end_amdhsa_kernel")
        return A.text()


if __name__ == "__main__":
    import argparse
    ap = argparse.ArgumentParser()
    ap.add_argument("-o", default="k.s")
    ap.add_argument("--stop")
    ap.add_argument("--stamps", action="store_true")
    ap.add_argument("--dbg", type=int)
    ap.add_argument("--amp")
    ap.add_argument("-p", default="")
    args = ap.parse_args()
    txt = Gen(args.stop, args.stamps, args.dbg, tuple(map(int, args.amp.split(','))) if args.amp else None,
              {kv.split('=')[0]: int(kv.split('=')[1]) for kv in args.p.split(',') if kv}).build()
    open(args.o, "w").write(txt)
    lint(txt)
```

```python
import sys, math, struct
from asmlib import *

KNAME = "sequential_preLN__grouped_kv_mqa__geglu_ffn__prompt_kernel"

WS_REF = 0
WS_F1 = 0x1000
WS_F1B = 0x9000
WS_F2 = 0x20000
WS_ST = 0x40000
WS_KV = 0x80000
WS_STAMP = 0x140000
WS_Q = 0x200000
WS_O = WS_Q
WS_H = WS_Q
WS_WD = 0x600000
WS_WO = WS_WD + 784 * 2048
WS_A = 0x800000
WS_END = 0xF00000

SLOT = 28672
L_SC = 4 * SLOT
L_XN = L_SC
L_Q = L_SC
L_JOB = L_SC + SLOT + 1024
L_ST = 160768
L_RS = 163584
LDS_BYTES = 163840

def f32(x):
    return "0x%08x" % struct.unpack("<I", struct.pack("<f", x))[0]

sB = 2
sLOC = 3
sPX, sPWQ, sPWK, sPWV, sPWO, sPWS, sPWG, sPWU, sPWD, sPOUT = 4, 6, 8, 10, 12, 14, 16, 18, 20, 22
rWS, rX, rW, rJA, rWU, rSP, rOUT, rSA, rSB = 24, 28, 32, 36, 40, 44, 48, 52, 56
sL, sW, sRT, sC, sG, sJ, sTAG, sXCC, sREF, sMODE, sCT, sRH = range(60, 72)
sT = list(range(72, 88))
sSTAMP = 88
sCT1 = 90
sSPIN = 91
sEX = 92
sJS, sJS2, sJD, sJL, sWU, sWUL, sWUR, sWUC = range(94, 102)
(sF1, sFL, sQS, sKV, sWO, sOS, sF2A, sOB, sOL, sXR, sHS, sSS, sF2B, sHN, sSTR, sAS, sF3, sWD, sA, sOO) = range(4, 24)
SPIN_MAX = 400000

vONE, vL4K, vTAG, vIDX = 2, 3, 4, 5
vWD, vWA, vP3, vP2B = 6, 8, 12, 13
(vPL, vPN, vPA, vPB, vTA, vWU, vJO, vJT, vQR, _q1, _q2, _q3, vOW, _o1, _o2, vOR, vOS, vFL, vP2A, vOB, vXO, vCW,
 vSW, vSR, vP2C, vEXP) = range(228, 254)


def srd(A, r, ptr, size):
    A(f"s_mov_b32 s{r}, s{ptr}")
    A(f"s_mov_b32 s{r+1}, s{ptr+1}")
    A(f"s_mov_b32 s{r+2}, {size}")
    A(f"s_mov_b32 s{r+3}, 0x00020000")


DEFAULTS = dict(perm=0, itstamp=0, fstamp=0, loc=1,
                p1_b=3, p1_d=4, p1_e=0, p1_f=2, p1_bar=0x3f,
                x1_tries=12, sl_gl=0, sl_gt=12, sl_gl2=2, sl_gt2=21,
                raw_at=0, pf_step=4, pf_pre=0, pf_first=2, pos_raw=3, pos_tr=30, pos_js=41, pos_js2=55, pos_fs=92, pos_fl=117, pos_ft=140, it_wu=6, it_wu_end=14, it_touch=13, it_x=4, cap=6, cap_end=7, wd_att=36, k_2c=15,
                cs_a=12, x2a_pre=0, x2b_pre=6, wd_gemm=12,
                svc=70, depth=5, lat_far=900, lat_loc=400, lat_flag=400, lead=16, hn_pre=8, t_up=34, nb=4, rot=0, lat_a=400, n_deep=200, depth2=5, dbg_st=0, notest=0, min_valu=16, valu=24, passes=1, stages=1, tail_valu=40)


class Gen:
    def __init__(self, stop=None, stamps=False, dbg=None, amp=None, params=None):
        self.P = dict(DEFAULTS)
        self.P.update(params or {})
        self.dbg = dbg
        self.amp = amp
        self.A = Asm()
        self.stop = stop
        self.stamps = stamps
        self.nstamp = 0
        self.uid = 0
        self.far = []
        self.spins = []

    def lab(self, base):
        self.uid += 1
        return f"L_{base}_{self.uid}"

    def stamp(self, name):
        if not self.stamps:
            return
        A = self.A
        A.raw(f"    s_memrealtime s[{sSTAMP}:{sSTAMP+1}]")
        A.raw(f"    s_memtime s[{sEX}:{sEX+1}]")
        A.raw("    s_waitcnt lgkmcnt(0)")
        A.lg_done = A.lg
        A(f"v_writelane_b32 v255, s{sSTAMP}, {self.nstamp}")
        A(f"v_writelane_b32 v255, s{sEX}, {self.nstamp + 32}")
        self.nstamp += 1

    def stamp_flush(self):
        if not self.stamps:
            return
        A = self.A
        A(f"s_lshl_b32 s{sT[0]}, s{sL}, 2")
        A(f"s_add_u32 s{sT[0]}, s{sT[0]}, s{sW}")
        A(f"s_lshl_b32 s{sT[0]}, s{sT[0]}, 8")
        A(f"s_add_u32 s{sT[0]}, s{sT[0]}, {WS_STAMP}")
        A("v_mbcnt_lo_u32_b32 v254, -1, 0")
        A("v_mbcnt_hi_u32_b32 v254, -1, v254")
        A("v_lshlrev_b32 v254, 2, v254")
        A(f"buffer_store_dword v255, v254, {s(rWS,4)}, s{sT[0]} offen")
        if self.dbg is not None:
            l = self.lab("nodbg")
            A(f"s_lshl_b32 s{sT[0]}, s{sL}, 2")
            A(f"s_add_u32 s{sT[0]}, s{sT[0]}, s{sW}")
            A(f"s_cmp_lg_u32 s{sT[0]}, {self.dbg}")
            A(f"s_cbranch_scc1 {l}")
            A(f"s_load_dwordx2 s[{rJA}:{rJA+1}], s[0:1], 80")
            A(f"s_mov_b32 s{rJA+2}, 64")
            A(f"s_mov_b32 s{rJA+3}, 0x00020000")
            A(f"v_readlane_b32 s{sT[0]}, v255, 0")
            A("v_lshrrev_b32 v254, 1, v254")
            A.wait_all()
            A(f"v_subrev_u32 v255, s{sT[0]}, v255")
            A(f"buffer_store_short v255, v254, {s(rJA,4)}, 0 offen")
            if self.amp:
                i, j = self.amp
                l2 = self.lab("amp")
                A(f"v_readlane_b32 s{sT[0]}, v255, {i}")
                A(f"v_readlane_b32 s{sT[1]}, v255, {j}")
                A.raw(f"    s_memrealtime s[{sSTAMP}:{sSTAMP+1}]")
                A(f"s_sub_u32 s{sT[0]}, s{sT[1]}, s{sT[0]}")
                A(f"s_min_u32 s{sT[0]}, s{sT[0]}, 20000")
                A(f"s_lshl_b32 s{sT[0]}, s{sT[0]}, 2")
                A.raw("    s_waitcnt lgkmcnt(0)")
                A(f"s_add_u32 s{sT[0]}, s{sT[0]}, s{sSTAMP}")
                A.label(l2)
                A.raw(f"    s_memrealtime s[{sSTAMP}:{sSTAMP+1}]")
                A.raw("    s_waitcnt lgkmcnt(0)")
                A(f"s_sub_u32 s{sT[1]}, s{sSTAMP}, s{sT[0]}")
                A(f"s_cmp_lt_i32 s{sT[1]}, 0")
                A(f"s_cbranch_scc1 {l2}")
            A.label(l)

    def xstore(self, *texts, cond="scc"):
        A = self.A
        ls, lb = self.lab("far"), self.lab("back")
        if cond == "scc":
            A(f"s_cmp_eq_u32 s{sLOC}, 0")
            A(f"s_cbranch_scc1 {ls}")
        else:
            A(f"s_cbranch_vccnz {ls}")
        for t in texts:
            tk = A(t)
        A.label(lb)
        self.far.append((ls, lb, texts))
        return tk

    def end(self):
        self.stamp_flush()
        self.A("s_endpgm")

    def tag_cmp(self, dst, vtmp, mode):
        A = self.A
        if mode == "either":
            A(f"v_xor_b32 v{vtmp}, s{sTAG}, v{vtmp}")
            A(f"v_lshlrev_b32 v{vtmp}, 1, v{vtmp}")
            A(f"v_cmp_ne_u32 {dst}, 0, v{vtmp}")
        else:
            if mode == "late":
                A(f"v_xor_b32 v{vtmp}, 0x80000000, v{vtmp}")
            A(f"v_cmp_ne_u32 {dst}, s{sTAG}, v{vtmp}")

    def poll(self, vaddr, vtmp, name, width=1, backoff=0, imm=0, mode=None):
        A = self.A
        l0, l1 = self.lab(name), self.lab(name + "_ok")
        A(f"s_mov_b32 s{sSPIN}, 0")
        A.label(l0)
        if backoff:
            A(f"s_sleep {backoff}")
        if width == 1:
            A(f"buffer_load_dword v{vtmp}, v{vaddr}, {s(rWS,4)}, 0 offen offset:{imm} sc1")
        else:
            A(f"buffer_load_dwordx2 {v(vtmp,2)}, v{vaddr}, {s(rWS,4)}, 0 offen sc1")
        A.wait_all(lg=False)
        self.tag_cmp("vcc", vtmp, mode)
        A(f"s_add_u32 s{sSPIN}, s{sSPIN}, 1")
        A(f"s_cbranch_vccz {l1}")
        A(f"s_cmp_lt_u32 s{sSPIN}, {SPIN_MAX}")
        A(f"s_cbranch_scc1 {l0}")
        A.label(l1)

    def async_test(self, token, vtmp, vaddr, name, imm=0, width=1, backoff=0, mode=None):
        A = self.A
        ls, lb = self.lab(name + "_spin"), self.lab(name + "_ok")
        A.wait(token)
        self.tag_cmp(f"s[{sEX}:{sEX+1}]", vtmp, mode)
        A(f"s_cmp_lg_u64 s[{sEX}:{sEX+1}], 0")
        A(f"s_cbranch_scc1 {ls}")
        A.label(lb)
        self.spins.append((ls, lb, vaddr, vtmp, name, imm, width, backoff, mode))

    def setup(self):
        A = self.A
        A(f"s_cmp_ge_u32 s{sB}, 256")
        A("s_cbranch_scc1 L_exit")
        if self.stamps:
            A("v_mov_b32 v255, 0")
        self.stamp("entry")
        A("s_load_dwordx8 s[4:11], s[0:1], 0")
        A("s_load_dwordx2 s[12:13], s[0:1], 32")
        A("s_load_dwordx2 s[14:15], s[0:1], 88")
        A("s_load_dwordx8 s[16:23], s[0:1], 48")
        A("v_lshrrev_b32 v1, 6, v0")
        A("v_and_b32 v0, 63, v0")
        A(f"v_readfirstlane_b32 s{sW}, v1")
        if self.P["perm"]:
            A(f"s_lshr_b32 s{sG}, s{sB}, 5")
            A(f"s_and_b32 s{sJ}, s{sB}, 31")
        else:
            A(f"s_and_b32 s{sG}, s{sB}, 7")
            A(f"s_lshr_b32 s{sJ}, s{sB}, 3")
        A(f"s_lshl_b32 s{sL}, s{sG}, 5")
        A(f"s_add_u32 s{sL}, s{sL}, s{sJ}")
        A(f"s_lshr_b32 s{sRT}, s{sL}, 2")
        A(f"s_and_b32 s{sC}, s{sL}, 3")
        A(f"s_getreg_b32 s{sXCC}, hwreg(HW_REG_XCC_ID, 0, 4)")
        A(f"s_mul_i32 s{sRH}, s{sJ}, 37")
        A(f"s_lshr_b32 s{sRH}, s{sRH}, 8")
        A(f"s_mul_i32 s{sT[0]}, s{sRH}, 7")
        A(f"s_sub_u32 s{sCT}, s{sJ}, s{sT[0]}")
        A(f"s_mov_b32 s{sMODE}, 0")

    def consts(self, t0, t1, t2, vRow, vPc, vRR, vCC, vH, vMH, vK8, vL32, vXo, vT0, vT1, vT2):
        A = self.A
        jid = t2
        A(f"s_lshl_b32 s{jid}, s{sL}, 2")
        A(f"s_add_u32 s{jid}, s{jid}, s{sW}")
        A(f"s_lshl_b32 s{sJD}, s{jid}, 11")
        A(f"s_add_u32 s{sJD}, s{sJD}, {WS_WD}")
        A(f"s_mov_b32 s{t0}, {448*896}")
        A(f"s_cmp_lt_u32 s{jid}, 980")
        A(f"s_cselect_b32 s{t0}, s{t0}, 0")
        A(f"s_cselect_b32 s{t1}, {WS_END}, 0")
        srd(A, rSB, sPWS, f"s{t1}")
        A(f"s_cmp_lt_u32 s{jid}, 784")
        A(f"s_cselect_b32 s{rJA}, s{sPWD}, s{sPWO}")
        A(f"s_cselect_b32 s{rJA+1}, s{sPWD+1}, s{sPWO+1}")
        A(f"s_cselect_b32 s{rJA+2}, {1792*896}, s{t0}")
        A(f"s_mov_b32 s{rJA+3}, 0x00020000")
        A(f"s_cselect_b32 s{t0}, 0, 784")
        A(f"s_cselect_b32 s{sJS2}, 2, 0")
        A(f"s_sub_u32 s{jid}, s{jid}, s{t0}")
        A(f"s_lshr_b32 s{t0}, s{jid}, s{sJS2}")
        A(f"s_mul_i32 s{t0}, s{t0}, 2341")
        A(f"s_lshr_b32 s{t0}, s{t0}, 16")
        A(f"s_mul_i32 s{t1}, s{t0}, 28")
        A(f"s_lshl_b32 s{t1}, s{t1}, s{sJS2}")
        A(f"s_sub_u32 s{t1}, s{jid}, s{t1}")
        if self.P["rot"]:
            t3 = sT[12]
            A(f"s_mul_i32 s{sJS}, s{t1}, 2341")
            A(f"s_lshr_b32 s{sJS}, s{sJS}, 16")
            A(f"s_mul_i32 s{sJS}, s{sJS}, 28")
            A(f"s_add_u32 s{sJS}, s{sJS}, 28")
            A(f"s_mul_i32 s{t3}, s{t0}, s{sJS2}")
            A(f"s_lshl1_add_u32 s{t1}, s{t3}, s{t1}")
            A(f"s_cmp_ge_u32 s{t1}, s{sJS}")
            A(f"s_cselect_b32 s{t3}, 28, 0")
            A(f"s_sub_u32 s{t1}, s{t1}, s{t3}")
        A(f"s_mul_i32 s{sJS}, s{t1}, {16*896}")
        A(f"s_lshl_b32 s{t0}, s{t0}, 7")
        A(f"s_add_u32 s{sJS}, s{sJS}, s{t0}")
        A(f"s_add_u32 s{sJS2}, s{sJS}, {8*896-1024}")
        A(f"s_lshl_b32 s{sJL}, s{sW}, 11")
        A(f"s_add_u32 s{sJL}, s{sJL}, {L_JOB}")
        A(f"v_mov_b32 v{vJO}, v{vXo}")
        A(f"v_and_b32 v{vT0}, 1, v{vCC}")
        A(f"v_lshlrev_b32 v{vT0}, 4, v{vT0}")
        A(f"v_lshrrev_b32 v{vT1}, 1, v{vCC}")
        A(f"v_lshl_add_u32 v{vT0}, v{vT1}, 3, v{vT0}")
        A(f"v_lshl_add_u32 v{vT0}, v{vK8}, 7, v{vT0}")
        A(f"v_lshl_add_u32 v{vJT}, v{vMH}, 5, v{vT0}")
        A(f"v_add_u32 v{vJT}, s{sJL}, v{vJT}")
        A(f"v_bfe_u32 v{vT1}, v0, 3, 2")
        A(f"v_lshl_add_u32 v{vWA}, v{vT1}, 5, v{vT0}")
        A(f"v_mul_u32_u24 v{vT0}, {2*SLOT}, v{vMH}")
        A(f"v_add_u32 v{vWA}, v{vWA}, v{vT0}")
        for tt in range(1, 4):
            A(f"v_xor_b32 v{vWA+tt}, {32*tt}, v{vWA}")
        A(f"s_lshl_b32 s{t0}, s{sW}, 5")
        A(f"v_xor_b32 v{vCW}, s{t0}, v{vWA}")
        A(f"s_cmp_lt_u32 s{sW}, 2")
        A(f"s_cselect_b32 s{rWU}, s{sPWG}, s{sPWU}")
        A(f"s_cselect_b32 s{rWU+1}, s{sPWG+1}, s{sPWU+1}")
        A(f"s_mov_b32 s{rWU+3}, 0x00020000")
        A(f"s_cmp_lt_u32 s{sJ}, 28")
        A(f"s_cselect_b32 s{rWU+2}, {448*3584}, 0")
        A(f"s_cselect_b32 s{t1}, {WS_END}, 0")
        srd(A, rSP, sPWS, f"s{t1}")
        A(f"s_and_b32 s{t0}, s{sW}, 2")
        A(f"v_or_b32 v{vT0}, s{t0}, v{vMH}")
        A(f"v_lshlrev_b32 v{vT0}, 1, v{vT0}")
        A(f"v_xor_b32 v{vT0}, v{vPc}, v{vT0}")
        A(f"v_mul_u32_u24 v{vWU}, 3584, v{vRow}")
        A(f"v_lshl_add_u32 v{vWU}, v{vT0}, 4, v{vWU}")
        A(f"s_and_b32 s{t0}, s{sW}, 1")
        A(f"s_mul_i32 s{sWU}, s{t0}, {224*3584}")
        A(f"s_lshl_b32 s{t0}, s{sJ}, 7")
        A(f"s_add_u32 s{sWU}, s{sWU}, s{t0}")
        A(f"v_add_u32 v{vWU}, s{sWU}, v{vWU}")
        A(f"s_and_b32 s{t0}, s{sWUR}, 15")
        A(f"s_mul_i32 s{t0}, s{t0}, {4*28672}")
        A(f"s_add_u32 s{sWU}, s{sWU}, s{t0}")
        A(f"s_mul_i32 s{sWUL}, s{sW}, {SLOT}")
        A(f"s_cmp_eq_u32 s{sW}, 0")
        A(f"s_cselect_b32 s{t1}, {WS_END}, 0")
        srd(A, rSA, sPWS, f"s{t1}")
        srd(A, rOUT, sPOUT, 2048 * 896)
        fb = t2
        A(f"s_lshl_b32 s{fb}, s{sG}, 12")
        A(f"s_add_u32 s{fb}, s{fb}, {WS_F2}")
        A(f"s_lshl_b32 s{sF1}, s{sL}, 7")
        A(f"s_add_u32 s{sF1}, s{sF1}, {WS_F1}")
        A(f"s_lshl_b32 s{t0}, s{sJ}, 2")
        A(f"s_add_u32 s{sFL}, s{fb}, s{t0}")
        A(f"s_lshl_b32 s{t1}, s{sW}, 7")
        A(f"s_add_u32 s{sF3}, s{sFL}, s{t1}")
        A(f"s_add_u32 s{sF3}, s{sF3}, 1024")
        A(f"s_add_u32 s{sFL}, s{sFL}, 3072")
        A(f"s_add_u32 s{t0}, s{t0}, s{sW}")
        A(f"s_lshl_b32 s{t0}, s{t0}, 2")
        A(f"s_add_u32 s{sF2A}, s{fb}, s{t0}")
        A(f"s_add_u32 s{sF2A}, s{sF2A}, 3200")
        A(f"s_lshr_b32 s{t0}, s{sJ}, 2")
        A(f"s_lshl_b32 s{t0}, s{t0}, 7")
        A(f"s_add_u32 s{sF2B}, s{fb}, s{t0}")
        A(f"s_lshl_b32 s{t0}, s{sCT1}, 2")
        A(f"s_add_u32 s{sF2B}, s{sF2B}, s{t0}")
        A(f"v_and_b32 v{vT2}, 15, v0")
        A(f"s_add_u32 s{t1}, s{t1}, s{fb}")
        A(f"v_lshl_add_u32 v{vP2B}, v{vT2}, 2, s{t1}")
        A(f"v_lshl_add_u32 v{vP2B}, v{vMH}, 9, v{vP2B}")
        A(f"s_and_b32 s{t0}, s{sJ}, 28")
        A(f"s_add_u32 s{t0}, s{t0}, s{sW}")
        A(f"s_lshl_b32 s{t1}, s{t0}, 4")
        A(f"s_add_u32 s{t1}, s{t1}, s{fb}")
        A(f"s_add_u32 s{t1}, s{t1}, 3200")
        A(f"v_lshl_add_u32 v{vP2A}, v{vCC}, 2, s{t1}")
        A(f"v_mov_b32 v{vT1}, s{t0}")
        A(f"s_lshl_b32 s{t0}, s{sW}, 3")
        A(f"s_add_u32 s{t0}, s{t0}, 3")
        A(f"v_and_b32 v{vT0}, 1, v0")
        A(f"v_lshl_add_u32 v{vT0}, v{vT0}, 2, s{t0}")
        A(f"v_cmp_lt_u32 vcc, 1, v0")
        A(f"s_add_u32 s{t0}, s{sG}, 1")
        A(f"s_and_b32 s{t0}, s{t0}, 7")
        A(f"v_cndmask_b32 v{vPL}, v{vT0}, v{vT1}, vcc")
        A(f"s_add_u32 s{t1}, s{fb}, 3072")
        A(f"v_lshl_add_u32 v{vPL}, v{vPL}, 2, s{t1}")
        A(f"s_lshl_b32 s{t0}, s{t0}, 12")
        A(f"s_add_u32 s{t0}, s{t0}, {WS_F1}")
        A(f"v_lshl_add_u32 v{vPN}, v{vT0}, 7, s{t0}")
        A(f"v_lshrrev_b32 v{vPA}, 1, v{vT2}")
        A(f"v_lshl_add_u32 v{vPA}, v{vPA}, 5, v{vT0}")
        A(f"s_lshl_b32 s{t0}, s{sG}, 5")
        A(f"v_cmp_lt_u32 vcc, 15, v0")
        A(f"v_add_u32 v{vT1}, s{t0}, v{vT1}")
        A.nop(1)
        A(f"v_cndmask_b32 v{vPA}, v{vPA}, v{vT1}, vcc")
        A(f"v_lshlrev_b32 v{vPA}, 7, v{vPA}")
        A(f"v_add_u32 v{vPA}, {WS_F1}, v{vPA}")
        A(f"s_add_u32 s{t0}, s{fb}, 3072")
        A(f"v_lshl_add_u32 v{vT1}, v{vL32}, 2, s{t0}")
        A(f"s_mul_i32 s{t0}, s{sCT}, 28")
        A(f"s_mul_i32 s{t1}, s{sW}, 7")
        A(f"s_add_u32 s{t0}, s{t0}, s{t1}")
        A(f"s_lshr_b32 s{t1}, s{sCT1}, 1")
        A(f"s_min_u32 s{t1}, s{t1}, 6")
        A(f"s_mul_i32 s{sWO}, s{t1}, {28*2048}")
        A(f"s_mul_i32 s{t1}, s{t1}, 7")
        A(f"s_add_u32 s{t1}, s{t1}, 196")
        A(f"v_mov_b32 v{vPB}, s{t0}")
        A(f"v_mov_b32 v{vT0}, s{t1}")
        A(f"v_cndmask_b32 v{vPB}, v{vPB}, v{vT0}, vcc")
        A(f"v_min_u32 v{vT0}, 6, v{vT2}")
        A(f"v_cmp_lt_u32 vcc, 31, v0")
        A(f"v_add_u32 v{vPB}, v{vPB}, v{vT0}")
        A(f"v_lshlrev_b32 v{vPB}, 7, v{vPB}")
        A(f"v_add_u32 v{vPB}, {WS_F1B}, v{vPB}")
        A(f"v_cndmask_b32 v{vPB}, v{vPB}, v{vT1}, vcc")
        A(f"s_lshl_b32 s{sWD}, s{t0}, 13")
        A(f"s_add_u32 s{sWD}, s{sWD}, {WS_WD}")
        A(f"s_and_b32 s{t0}, s{sW}, 1")
        A(f"s_lshl_b32 s{t0}, s{t0}, 10")
        A(f"s_add_u32 s{sWO}, s{sWO}, s{t0}")
        A(f"s_add_u32 s{sWO}, s{sWO}, {WS_WO}")
        A(f"s_lshl_b32 s{t0}, s{sRH}, 7")
        A(f"s_mul_i32 s{t1}, s{sW}, 28")
        A(f"s_add_u32 s{t0}, s{t0}, s{t1}")
        A(f"s_add_u32 s{t0}, s{t0}, s{fb}")
        A(f"s_add_u32 s{t0}, s{t0}, 1024")
        A(f"v_min_u32 v{vP3}, 6, v0")
        A(f"v_lshl_add_u32 v{vP3}, v{vP3}, 2, s{t0}")
        A(f"s_mul_i32 s{sOS}, s{sL}, 7168")
        A(f"s_add_u32 s{sOS}, s{sOS}, {WS_Q}")
        A(f"s_lshl_b32 s{t0}, s{sW}, 11")
        A(f"s_add_u32 s{sQS}, s{sOS}, s{t0}")
        A(f"s_mul_i32 s{t0}, s{sW}, 1792")
        A(f"s_add_u32 s{sOS}, s{sOS}, s{t0}")
        A(f"s_lshl_b32 s{sKV}, s{sG}, 2")
        A(f"s_add_u32 s{sKV}, s{sKV}, s{sW}")
        A(f"s_lshl_b32 s{sKV}, s{sKV}, 13")
        A(f"s_add_u32 s{sKV}, s{sKV}, {WS_KV}")
        A(f"s_mul_i32 s{sXR}, s{sRT}, {SLOT}")
        A(f"s_mul_i32 s{t0}, s{sW}, 7168")
        A(f"s_add_u32 s{sOB}, s{sXR}, s{t0}")
        A(f"s_add_u32 s{sOB}, s{sOB}, {WS_O}")
        A(f"s_lshr_b32 s{t1}, s{sW}, 1")
        A(f"s_lshl_b32 s{t1}, s{t1}, 7")
        A(f"s_mul_i32 s{t0}, s{sW}, 12288")
        A(f"s_add_u32 s{sOL}, s{t0}, s{t1}")
        A(f"s_add_u32 s{sOL}, s{sOL}, {L_SC}")
        A(f"s_min_u32 s{t1}, s{sCT1}, 13")
        A(f"s_lshl_b32 s{t0}, s{t1}, 11")
        A(f"s_add_u32 s{sHS}, s{sXR}, s{t0}")
        A(f"s_add_u32 s{sHS}, s{sHS}, {WS_H}")
        A(f"s_lshl_b32 s{t0}, s{t1}, 6")
        A(f"s_add_u32 s{sXR}, s{sXR}, s{t0}")
        A(f"v_mul_u32_u24 v{vXO}, 896, v{vL32}")
        A(f"v_lshl_add_u32 v{vXO}, v{vH}, 4, v{vXO}")
        A(f"s_lshl_b32 s{sSS}, s{sRT}, 10")
        A(f"s_add_u32 s{sSS}, s{sSS}, {WS_ST}")
        A(f"v_min_u32 v{vT1}, 13, v{vT2}")
        A(f"v_lshl_add_u32 v{vTA}, v{vT1}, 7, s{sOS}")
        A(f"v_cmp_lt_u32 vcc, 15, v0")
        A(f"v_lshl_add_u32 v{vT0}, v{vPc}, 7, s{sSS}")
        A(f"s_lshl_b32 s{t0}, s{sW}, 10")
        A(f"v_cndmask_b32 v{vTA}, v{vTA}, v{vT0}, vcc")
        A(f"s_add_u32 s{t0}, s{t0}, s{fb}")
        A(f"v_cmp_lt_u32 vcc, 23, v0")
        A(f"v_lshl_add_u32 v{vT0}, v{vPc}, 7, s{t0}")
        A(f"s_lshl_b32 s{t0}, s{sC}, 2")
        A(f"v_cndmask_b32 v{vTA}, v{vTA}, v{vT0}, vcc")
        A(f"s_add_u32 s{sSS}, s{sSS}, s{t0}")
        A(f"s_sub_u32 s{t0}, s{sFL}, s{t0}")
        A(f"v_lshl_add_u32 v{vP2C}, v{vCC}, 2, s{t0}")
        A(f"s_lshl_b32 s{t0}, s{sG}, 3")
        A(f"s_add_u32 s{t1}, s{t0}, s{sW}")
        A(f"s_mul_i32 s{sHN}, s{t1}, {SLOT}")
        A(f"s_add_u32 s{sHN}, s{sHN}, {WS_H}")
        A(f"s_lshl_b32 s{sSTR}, s{t1}, 10")
        A(f"s_add_u32 s{sSTR}, s{sSTR}, {WS_ST}")
        A(f"s_mul_i32 s{sAS}, s{t1}, 28")
        A(f"s_add_u32 s{sAS}, s{sAS}, s{sJ}")
        A(f"s_lshl_b32 s{sAS}, s{sAS}, 12")
        A(f"s_add_u32 s{sAS}, s{sAS}, {WS_A}")
        A(f"s_add_u32 s{t0}, s{t0}, s{sRH}")
        A(f"s_mul_i32 s{sOO}, s{t0}, {SLOT}")
        A(f"s_lshl_b32 s{t0}, s{t0}, 2")
        A(f"s_add_u32 s{t0}, s{t0}, s{sW}")
        A(f"s_mul_i32 s{sA}, s{t0}, {SLOT}")
        A(f"s_add_u32 s{sA}, s{sA}, {WS_A}")
        A(f"s_mul_i32 s{t1}, s{sW}, 1152")
        A(f"s_and_b32 s{t1}, s{t1}, 1280")
        A(f"v_xor_b32 v{vWD}, s{t1}, v1")
        A(f"v_xor_b32 v{vWD+1}, 1024, v{vWD}")
        A(f"v_bfe_u32 v{vT1}, v0, 3, 2")
        A(f"v_mul_u32_u24 v{vT0}, 448, v{vT1}")
        A(f"v_lshl_add_u32 v{vT0}, v{vH}, 6, v{vT0}")
        A(f"v_lshl_add_u32 v{vT0}, v{vPc}, 3, v{vT0}")
        for n in range(4):
            A(f"s_add_u32 s{t0}, s{sW}, {n+1}")
            A(f"s_and_b32 s{t0}, s{t0}, 3")
            A(f"s_mul_i32 s{t1}, s{t0}, 1792")
            A(f"s_add_u32 s{t1}, s{t1}, {L_Q}")
            A(f"v_add_u32 v{vQR+n}, s{t1}, v{vT0}")
            A(f"s_mul_i32 s{t0}, s{t0}, 12288")
            A(f"s_add_u32 s{t0}, s{t0}, {L_SC + (n*4096 if n < 3 else 0)}")
            A(f"v_add_u32 v{vOW+n}, s{t0}, v1")
        A(f"v_mad_u32_u24 v{vT0}, v{vT1}, 7, v{vH}")
        A(f"v_lshrrev_b32 v{vOS}, 1, v{vT0}")
        A(f"v_lshlrev_b32 v{vOS}, 7, v{vOS}")
        A(f"v_and_b32 v{vT0}, 1, v{vT0}")
        A(f"v_lshl_add_u32 v{vOS}, v{vT0}, 3, v{vOS}")
        A(f"v_lshl_add_u32 v{vOS}, v{vPc}, 4, v{vOS}")
        A(f"v_mul_u32_u24 v{vFL}, 12288, v{vCC}")
        A(f"v_add_u32 v{vFL}, {L_SC + 12032}, v{vFL}")
        A(f"v_mul_u32_u24 v{vOB}, 12288, v{vT1}")
        A(f"v_add_u32 v{vT0}, v{vMH}, v{vH}")
        A(f"v_lshl_add_u32 v{vOB}, v{vT0}, 7, v{vOB}")
        A(f"v_lshl_add_u32 v{vOB}, v{vPc}, 4, v{vOB}")
        A(f"v_add_u32 v{vOB}, {L_SC}, v{vOB}")
        A(f"v_add_u32 v{vSR}, {L_ST}, v1")
        A(f"s_lshl_b32 s{t0}, s{sW}, 2")
        A(f"v_add_u32 v{vSW}, s{t0}, v{vSR}")
        A(f"v_cmp_eq_u32 vcc, 0, v0")
        A(f"v_mov_b32 v{vT0}, 0x7ff00000")
        A(f"v_add_u32 v{vL4K}, 4096, v1")
        A(f"v_cndmask_b32 v{vONE}, v{vT0}, 0, vcc")
        A(f"v_mov_b32 v{vTAG+1}, s{sXCC}")

    def p1(self):
        A = self.A
        P = self.P
        rot, xb, ci, wB, wN, wC, lB, lC, wcur, t0, t1, t2 = sT[:12]
        d0 = sT[12]
        ct1 = sCT1
        vX = 16
        vRow, vPc, vXo, vWo, vWt, vRR, vCC, vH, vMH, vK8, vT0, vXw, vL32, vT1, vT2, vRw, vRr, vQo = range(44, 62)
        vF = 64
        vTmp = 120
        vXr = 124
        vRS = 196
        A(f"v_lshlrev_b32 v1, 4, v0")
        A(f"v_lshrrev_b32 v{vRow}, 3, v0")
        A(f"v_and_b32 v{vPc}, 7, v0")
        A(f"v_mul_u32_u24 v{vXo}, 896, v{vRow}")
        A(f"v_lshl_add_u32 v{vXo}, v{vPc}, 4, v{vXo}")
        A(f"s_mov_b32 s{d0}, 0x06543210")
        A(f"s_mov_b32 s{d0+1}, 0x10654321")
        A(f"s_lshl_b32 s{t0}, s{sG}, 2")
        A(f"s_lshr_b64 s[{d0}:{d0+1}], s[{d0}:{d0+1}], s{t0}")
        A(f"s_mov_b32 s{sWUR}, s{d0}")
        A(f"s_bfe_u32 s{t0}, s{d0}, {4 | 24 << 16}")
        A(f"s_lshl_b32 s{d0}, s{t0}, 24")
        A(f"s_or_b32 s{d0}, s{d0}, s{t0}")
        A(f"s_lshr_b32 s{d0+1}, s{t0}, 8")
        A(f"s_lshl_b32 s{t0}, s{t0}, 16")
        A(f"s_or_b32 s{d0+1}, s{d0+1}, s{t0}")
        A(f"s_and_b32 s{t0}, s{sJ}, 28")
        A(f"s_lshr_b64 s[{d0}:{d0+1}], s[{d0}:{d0+1}], s{t0}")
        A(f"s_and_b32 s{rot}, s{sWUR}, 15")
        A(f"s_lshl4_add_u32 s{rot}, s{d0}, s{rot}")
        A(f"s_lshl_b32 s{xb}, s{sRT}, 2")
        A(f"s_add_u32 s{xb}, s{xb}, s{sW}")
        A(f"s_mul_i32 s{xb}, s{xb}, {8*896}")
        A(f"s_lshl_b32 s{ct1}, s{sC}, 2")
        A(f"s_add_u32 s{ct1}, s{ct1}, s{sW}")
        A(f"v_bfe_u32 v{vRR}, v0, 2, 2")
        A(f"v_and_b32 v{vCC}, 3, v0")
        A(f"v_lshrrev_b32 v{vH}, 5, v0")
        A(f"v_bfe_u32 v{vMH}, v0, 4, 1")
        A(f"v_lshl_add_u32 v{vK8}, v{vH}, 3, v{vRR}")
        A(f"v_and_b32 v{vL32}, 31, v0")
        lkv, lj2 = self.lab("w_kv"), self.lab("w_join")
        A(f"s_and_b32 s{t0}, s{sW}, 1")
        A(f"s_cmp_ge_u32 s{ct1}, 14")
        A(f"s_cbranch_scc1 {lkv}")
        A(f"s_lshr_b32 s{wB}, s{ct1}, 1")
        A(f"s_lshl_b32 s{wB}, s{wB}, 7")
        A(f"s_mul_i32 s{wN}, s{t0}, {32*896}")
        A(f"s_add_u32 s{wB}, s{wB}, s{wN}")
        A(f"s_mov_b32 s{wN}, {8*896-1024}")
        A(f"s_mov_b32 s{wC}, {64*896}")
        A(f"s_lshr_b32 s{lB}, s{sW}, 1")
        A(f"s_mul_i32 s{lB}, s{lB}, {2*SLOT}")
        A(f"v_lshlrev_b32 v{vWt}, 7, v{vK8}")
        A(f"v_lshrrev_b32 v{vT0}, 1, v{vRR}")
        A(f"v_xor_b32 v{vT0}, s{t0}, v{vT0}")
        A(f"v_lshl_add_u32 v{vWt}, v{vT0}, 6, v{vWt}")
        A(f"v_add_u32 v{vWt}, s{lB}, v{vWt}")
        A(f"s_lshl_b32 s{lC}, s{t0}, 12")
        A(f"s_add_u32 s{lB}, s{lB}, s{lC}")
        A(f"s_mov_b32 s{lC}, 8192")
        A(f"v_lshlrev_b32 v{vT0}, 6, v{vMH}")
        A(f"v_xor_b32 v{vWo}, v{vXo}, v{vT0}")
        A(f"s_mov_b32 s{rW+2}, {448*896}")
        A(f"s_branch {lj2}")
        A.label(lkv)
        A(f"s_mov_b32 s{wB}, 0")
        A(f"s_mov_b32 s{wN}, 0")
        A(f"s_mov_b32 s{wC}, {64*56}")
        A(f"s_mul_i32 s{lB}, s{sW}, {SLOT}")
        A(f"s_mov_b32 s{lC}, 4096")
        A(f"v_mul_u32_u24 v{vWt}, 56, v{vK8}")
        A(f"v_add_u32 v{vWt}, s{lB}, v{vWt}")
        A(f"v_mov_b32 v{vWo}, v1")
        A(f"s_mov_b32 s{rW+2}, {448*56}")
        A.label(lj2)
        A(f"v_lshl_add_u32 v{vWt}, v{vMH}, 5, v{vWt}")
        A(f"v_lshl_add_u32 v{vWt}, v{vCC}, 3, v{vWt}")
        A(f"s_mov_b32 s{rX+2}, {2048*896}")
        A(f"s_mov_b32 s{rX+3}, 0x00020000")
        A(f"s_mov_b32 s{rW+3}, 0x00020000")
        A.wait_all(vm=False)
        self.stamp("kernarg")
        A(f"s_mov_b32 s{rX}, s{sPX}")
        A(f"s_mov_b32 s{rX+1}, s{sPX+1}")
        tx = []
        for i in range(7):
            A(f"s_bfe_u32 s{t0}, s{rot}, {4*i | 4 << 16}")
            A(f"s_lshl_b32 s{t0}, s{t0}, 7")
            A(f"s_add_u32 s{t0}, s{t0}, s{xb}")
            tx.append(A(f"buffer_load_dwordx4 {v(vX+4*i,4)}, v{vXo}, {s(rX,4)}, s{t0} offen"))
        A(f"s_cmp_eq_u32 s{ct1}, 14")
        A(f"s_cselect_b32 s{rW}, s{sPWK}, s{sPWV}")
        A(f"s_cselect_b32 s{rW+1}, s{sPWK+1}, s{sPWV+1}")
        A(f"s_cmp_lt_u32 s{ct1}, 14")
        A(f"s_cselect_b32 s{rW}, s{sPWQ}, s{rW}")
        A(f"s_cselect_b32 s{rW+1}, s{sPWQ+1}, s{rW+1}")
        tok = {}
        side = []
        def wload(i, n):
            def f():
                if n == 0:
                    if i > 0:
                        A(f"s_add_u32 s{lB}, s{lB}, s{lC}")
                    A(f"s_bfe_u32 s{ci}, s{rot}, {4*i | 4 << 16}")
                    A(f"s_mul_i32 s{wcur}, s{ci}, s{wC}")
                    A(f"s_mov_b32 m0, s{lB}")
                    A(f"s_add_u32 s{wcur}, s{wcur}, s{wB}")
                else:
                    A(f"s_add_u32 s{wcur}, s{wcur}, s{wN}")
                tok["w", i] = A(f"buffer_load_dwordx4 v{vWo}, {s(rW,4)}, s{wcur} offen offset:{n*1024} lds")
            return f
        for i in range(7):
            for n in range(4):
                side.append(wload(i, n))
        def pop(n=1):
            for _ in range(n):
                if side:
                    side.pop(0)()
        pop(4)
        A(f"s_load_dword s{sREF}, s[{sPWS}:{sPWS+1}], {WS_REF}")
        A(f"s_lshl_b32 s{t0}, s{sL}, 7")
        for off in (WS_F1, WS_F1B):
            A(f"s_load_dword s{d0+2}, s[{sPWS}:{sPWS+1}], s{t0} offset:{off}")
        A(f"s_load_dwordx2 s[{d0+2}:{d0+3}], s[{sPWS}:{sPWS+1}], s{t0} offset:{WS_F2 + 60}")
        A(f"s_lshl_b32 s{t1}, s{sW}, 6")
        A(f"s_lshl1_add_u32 s{t0}, s{t0}, s{t1}")
        A(f"s_load_dword s{d0+2}, s[{sPWS}:{sPWS+1}], s{t0} offset:{WS_ST}")
        srd(A, rWS, sPWS, WS_END)
        A(f"s_lshl_b32 s{t0}, s{sW}, 3")
        A(f"v_xor_b32 v{vXw}, v{vRow}, v{vPc}")
        A(f"v_add_u32 v{vXw}, s{t0}, v{vXw}")
        A(f"v_lshlrev_b32 v{vXw}, 4, v{vXw}")
        A(f"v_lshl_add_u32 v{vXw}, v{vPc}, 9, v{vXw}")
        A(f"v_add_u32 v{vXw}, {L_XN}, v{vXw}")
        A(f"v_lshrrev_b32 v{vT0}, 1, v0")
        A(f"v_xor_b32 v{vT0}, v{vT0}, v0")
        A(f"s_cmp_eq_u32 s{ct1}, 15")
        A(f"s_cselect_b32 s{t0}, 4, 0")
        A(f"v_and_b32 v{vT0}, s{t0}, v{vT0}")
        A(f"v_mul_u32_u24 v{vT0}, 3, v{vT0}")
        A(f"v_xor_b32 v{vT2}, v{vT0}, v{vL32}")
        for q in range(4):
            A(f"v_add_u32 v{vT0}, {2*q}, v{vH}")
            A(f"v_xor_b32 v{vT1}, v{vT2}, v{vT0}")
            A(f"v_lshlrev_b32 v{vT1}, 4, v{vT1}")
            A(f"v_lshl_add_u32 v{vT1}, v{vT0}, 9, v{vT1}")
            A(f"v_add_u32 v{vXr+q}, {L_XN}, v{vT1}")
        A(f"s_lshl_b32 s{t0}, s{sW}, 5")
        A(f"s_add_u32 s{t0}, s{t0}, {L_RS}")
        A(f"v_lshl_add_u32 v{vRw}, v{vRow}, 2, s{t0}")
        A(f"v_bfe_u32 v{vQo}, v0, 3, 2")
        A(f"v_mul_u32_u24 v{vQo}, 7168, v{vQo}")
        A(f"v_lshl_add_u32 v{vQo}, v{vH}, 6, v{vQo}")
        A(f"v_lshl_add_u32 v{vQo}, v{vPc}, 3, v{vQo}")
        A(f"s_mul_i32 s{xb}, s{sRT}, {4*7168}")
        A(f"s_lshl_b32 s{t1}, s{ct1}, 9")
        A(f"s_add_u32 s{xb}, s{xb}, s{t1}")
        A(f"s_add_u32 s{xb}, s{xb}, {WS_Q}")
        A(f"s_lshl_b32 s{t1}, s{sRT}, 12")
        A(f"s_add_u32 s{t1}, s{t1}, {WS_KV}")
        A(f"s_cmp_lt_u32 s{ct1}, 14")
        A(f"s_cselect_b32 s{xb}, s{xb}, s{t1}")
        self.consts(t0, t1, t2, vRow, vPc, vRR, vCC, vH, vMH, vK8, vL32, vXo, vT0, vT1, vT2)
        A(f"s_mov_b32 s{t0}, 0xffff0000")
        for i in range(7):
            A.wait(tx[i])
            if i >= 7 - P["p1_b"]:
                pop()
            for k in range(4):
                A(f"v_lshlrev_b32 v{vF+8*i+2*k}, 16, v{vX+4*i+k}")
                A(f"v_and_b32 v{vF+8*i+2*k+1}, s{t0}, v{vX+4*i+k}")
            if i == 0:
                A(f"v_pk_add_f32 {v(vTmp,2)}, {v(vF,2)}, {v(vF+2,2)}")
                A(f"v_pk_add_f32 {v(vTmp+2,2)}, {v(vF+4,2)}, {v(vF+6,2)}")
            else:
                for k in range(4):
                    d = vTmp + 2 * (k & 1)
                    A(f"v_pk_add_f32 {v(d,2)}, {v(d,2)}, {v(vF+8*i+2*k,2)}")
        self.stamp("x arrived")
        def red8():
            A(f"v_pk_add_f32 {v(vTmp,2)}, {v(vTmp,2)}, {v(vTmp+2,2)}")
            A(f"v_add_f32 v{vTmp}, v{vTmp}, v{vTmp+1}")
            for m in ("quad_perm:[1,0,3,2]", "quad_perm:[2,3,0,1]", "row_half_mirror"):
                A.nop(2)
                A(f"v_add_f32_dpp v{vTmp}, v{vTmp}, v{vTmp} {m} row_mask:0xf bank_mask:0xf")
        red8()
        A(f"v_mul_f32 v{vTmp}, {f32(-1.0/448)}, v{vTmp}")
        for i in range(7):
            for k in range(4):
                A(f"v_pk_add_f32 {v(vF+8*i+2*k,2)}, {v(vF+8*i+2*k,2)}, {v(vTmp,2)} op_sel_hi:[1,0]")
            for k in range(4):
                A(f"v_cvt_pk_bf16_f32 v{vX+4*i+k}, v{vF+8*i+2*k}, v{vF+8*i+2*k+1}")
            A(f"ds_write_b128 v{vXw}, {v(vX+4*i,4)} offset:{i*4096}")
            if i >= 7 - P["p1_d"]:
                pop()
        A(f"v_pk_mul_f32 {v(vTmp,2)}, {v(vF,2)}, {v(vF,2)}")
        A(f"v_pk_mul_f32 {v(vTmp+2,2)}, {v(vF+2,2)}, {v(vF+2,2)}")
        for k in range(2, 14):
            d = vTmp + 2 * (k & 1)
            A(f"v_pk_fma_f32 {v(d,2)}, {v(vF+2*k,2)}, {v(vF+2*k,2)}, {v(d,2)}")
        pop(P["p1_e"])
        A.wait_all(vm=False)
        self.stamp("ln1 done")
        A(f"s_mul_i32 s{sTAG}, s{sREF}, 0x9E3779B1")
        A(f"s_add_u32 s{sTAG}, s{sTAG}, 0x7F4A7C15")
        vAcc, vWf, vXf, NB = 128, 144, 172, 5
        lK, lV, lE = self.lab("g_k"), self.lab("g_v"), self.lab("g_end")
        A(f"s_cmp_eq_u32 s{ct1}, 14")
        A(f"s_cbranch_scc1 {lK}")
        A(f"s_cmp_eq_u32 s{ct1}, 15")
        A(f"s_cbranch_scc1 {lV}")
        state = (A.vm, A.lg, A.vm_done, A.lg_done)
        if P["raw_at"] == 2:
            side.append(self.raw_early)
        side_left = list(side)
        ends = [c for c in range(7) if P["p1_bar"] >> c & 1 or c == 6]
        bar_at = {4 * (ends[i - 1] + 1 if i else 0): c for i, c in enumerate(ends)}
        def gemm(kind):
            A.vm, A.lg, A.vm_done, A.lg_done = state
            side[:] = side_left
            cs, ks, es = (8192, 2048, 512) if kind == "q" else (4096, 896, 224)
            rt = {}
            def reads(n):
                if n in bar_at:
                    while len(side) > 4 * (6 - bar_at[n]) + (P['raw_at'] == 2):
                        pop()
                    A.wait(tok["w", bar_at[n]], rt.get("rs"))
                    A("s_barrier")
                pos, q, b = n // 4, n % 4, 4 * (n % NB)
                A(f"ds_read_b128 {v(vXf+b,4)}, v{vXr+q} offset:{pos*4096}")
                A(f"ds_read_b64_tr_b16 {v(vWf+b,2)}, v{vWt} offset:{pos*cs+q*ks}")
                rt[n] = A(f"ds_read_b64_tr_b16 {v(vWf+b+2,2)}, v{vWt} offset:{pos*cs+q*ks+es}")
            for n in range(NB - 1):
                reads(n)
            pop(P["p1_f"])
            for k in range(14, 28):
                d = vTmp + 2 * (k & 1)
                A(f"v_pk_fma_f32 {v(d,2)}, {v(vF+2*k,2)}, {v(vF+2*k,2)}, {v(d,2)}")
            red8()
            A(f"v_mov_b32 v{vTmp+1}, {f32(1e-5)}")
            A(f"v_fmamk_f32 v{vTmp}, v{vTmp}, {f32(1.0/448)}, v{vTmp+1}")
            A(f"v_rsq_f32 v{vTmp}, v{vTmp}")
            if kind == "v":
                A(f"v_lshlrev_b32 v{vRr}, 5, v{vH}")
            else:
                A(f"v_lshlrev_b32 v{vRr}, 2, v{vL32}")
            rt["rs"] = A(f"ds_write_b32 v{vRw}, v{vTmp}")
            A(f"v_add_u32 v{vRr}, {L_RS}, v{vRr}")
            for n in range(28):
                A.wait(rt[n])
                b = 4 * (n % NB)
                wa, xa = v(vWf + b, 4), v(vXf + b, 4)
                if kind == "v":
                    wa, xa = xa, wa
                A(f"v_mfma_f32_32x32x16_bf16 {v(vAcc,16)}, {wa}, {xa}, {'0' if n == 0 else v(vAcc,16)}")
                pop()
                if n + NB - 1 < 28:
                    reads(n + NB - 1)
                if n == 24:
                    if kind == "v":
                        for a_ in range(4):
                            A(f"ds_read_b128 {v(vRS+4*a_,4)}, v{vRr} offset:{64*(a_>>1)+16*(a_&1)}")
                    else:
                        A(f"ds_read_b32 v{vRS}, v{vRr}")
            assert not side
            A.wait_all(vm=False)
        gemm("q")
        A.nop(11)
        for i in range(4):
            for k in range(2):
                A(f"v_pk_mul_f32 {v(vAcc+4*i+2*k,2)}, {v(vAcc+4*i+2*k,2)}, {v(vRS,2)} op_sel_hi:[1,0]")
            A(f"v_cvt_pk_bf16_f32 v{vWf+2*i}, v{vAcc+4*i}, v{vAcc+4*i+1}")
            A(f"v_cvt_pk_bf16_f32 v{vWf+2*i+1}, v{vAcc+4*i+2}, v{vAcc+4*i+3}")
            A(f"buffer_store_dwordx2 {v(vWf+2*i,2)}, v{vQo}, {s(rWS,4)}, s{xb} offen offset:{i*128} sc1")
        A(f"s_branch {lE}")
        A.label(lK)
        gemm("k")
        A(f"v_mul_f32 v{vRS}, {f32(28 ** -0.5 * math.log2(math.e))}, v{vRS}")
        A(f"v_cmp_lt_u32 vcc, 31, v0")
        A(f"v_mov_b32 v{vT1}, 0x3f803f80")
        A(f"v_mov_b32 v{vT2}, 0x00003f80")
        A.nop(7)
        for f_ in range(2):
            for i in range(4 * f_, 4 * f_ + 4):
                A(f"v_pk_mul_f32 {v(vAcc+2*i,2)}, {v(vAcc+2*i,2)}, {v(vRS,2)} op_sel_hi:[1,0]")
            for i in range(4 * f_, 4 * f_ + 4):
                A(f"v_cvt_pk_bf16_f32 v{vWf+i}, v{vAcc+2*i}, v{vAcc+2*i+1}")
            if f_:
                A(f"v_cndmask_b32 v{vWf+6}, v{vWf+6}, v{vT1}, vcc")
                A(f"v_cndmask_b32 v{vWf+7}, v{vWf+7}, v{vT2}, vcc")
            A(f"buffer_store_dwordx4 {v(vWf+4*f_,4)}, v1, {s(rWS,4)}, s{xb} offen offset:{1024*f_} sc1")
        A(f"s_branch {lE}")
        A.label(lV)
        gemm("v")
        A(f"v_cmp_eq_u32 vcc, 28, v{vL32}")
        A(f"v_mov_b32 v{vT1}, 0x3f803f80")
        A.nop(1)
        A(f"v_cndmask_b32 v{vT1}, 0, v{vT1}, vcc")
        A(f"v_cmp_lt_u32 vcc, 27, v{vL32}")
        A.nop(6)
        for f_ in range(2):
            for i in range(4 * f_, 4 * f_ + 4):
                A(f"v_pk_mul_f32 {v(vAcc+2*i,2)}, {v(vAcc+2*i,2)}, {v(vRS+2*i,2)}")
            for i in range(4 * f_, 4 * f_ + 4):
                A(f"v_cvt_pk_bf16_f32 v{vWf+i}, v{vAcc+2*i}, v{vAcc+2*i+1}")
            for i in range(4 * f_, 4 * f_ + 4):
                A(f"v_cndmask_b32 v{vWf+i}, v{vWf+i}, v{vT1}, vcc")
            A(f"buffer_store_dwordx4 {v(vWf+4*f_,4)}, v1, {s(rWS,4)}, s{xb} offen offset:{2048+1024*f_} sc1")
        A.label(lE)
        self.stamp("qkv stored")

    vQ, vO, vS, vKV = 16, 48, 112, 160
    vXR, vJR, vPT = 208, 216, 224
    KORD = [k for k in range(28) if k % 4 < 2] + [k for k in range(28) if k % 4 >= 2]
    KVSTEP = (f"s_add_u32 s{sKV}, s{sKV}, 32768", f"s_and_b32 s{sKV}, s{sKV}, {WS_KV + 0x3ffff}")

    def wo_ops(self):
        k = self.wo_next
        self.wo_next += 1
        pre = [f"s_add_u32 s{sWO}, s{sWO}, 8192"] if k and k % 4 == 0 else []
        def ld():
            self.tok["wo", k] = self.A(f"buffer_load_dwordx4 {a(4*k,4)}, v{vL4K if k & 2 else 1}, {s(rW,4)}, s{sWO} offen offset:{(k & 1) * 2048} sc1")
        return pre, ld

    def wd_reg(self, n):
        return 112 + 4 * n if n < 36 else 4 * (n - 36)

    def wd_ops(self):
        n = self.wd_next
        self.wd_next += 1
        k, e = self.KORD[n // 2], n % 2
        pre = []
        if k // 2 != self.wd_win:
            pre = [f"s_add_u32 s{sWD}, s{sWD}, {((k // 2 - self.wd_win) * 4096) & 0xffffffff}"]
            self.wd_win = k // 2
        def ld():
            self.tok["wd", n] = self.A(f"buffer_load_dwordx4 {a(self.wd_reg(n),4)}, v{vWD+e}, {s(rSP,4)}, s{sWD} offen offset:{(k % 2) * 2048} sc1")
        return pre, ld

    def wd_load(self):
        pre, ld = self.wd_ops()
        for x in pre:
            self.A(x)
        ld()

    def wu_ops(self):
        k = self.wu_next
        self.wu_next += 1
        n, g = divmod(k, 7)
        pre = [f"s_add_u32 m0, s{sT[4+g]}, s{sWUL}", f"s_mul_i32 s{sWUC}, s{sT[4+g]}, 28"]
        if g == 0 and n:
            pre.append(f"v_add_u32 v{vWU}, {28672 - 1024}, v{vWU}")
        def ld():
            self.tok["wu", k] = self.A(f"buffer_load_dwordx4 v{vWU}, {s(rWU,4)}, s{sWUC} offen offset:{n * 1024} lds")
        return pre, ld

    def raw_early(self):
        A = self.A
        A(f"s_mov_b32 m0, s{sJL}")
        A.nop(1)
        A(f"buffer_load_dwordx4 v{vJO}, {s(rJA,4)}, s{sJS} offen lds")
        A(f"buffer_load_dwordx4 v{vJO}, {s(rJA,4)}, s{sJS2} offen offset:1024 lds")

    def kvload(self, it, fr):
        b = self.vKV + 16 * (it % 3) + 4 * fr
        self.tok["kv", it, fr] = self.A(f"buffer_load_dwordx4 {v(b,4)}, v{vL4K if it & 1 else 1}, {s(rWS,4)}, s{sKV} offen offset:{fr*1024} sc1")

    def p2(self):
        A = self.A
        P = self.P
        self.tok = tok = {}
        t0, t1 = sT[:2]
        vQ, vO, vS, vKV, vXR, vJR, vPT = self.vQ, self.vO, self.vS, self.vKV, self.vXR, self.vJR, self.vPT
        kvload, KVSTEP = self.kvload, self.KVSTEP
        self.wo_next = self.wd_next = self.wu_next = self.wd_win = 0
        d0 = sT[14]
        if P["raw_at"] == 1:
            self.raw_early()
        sTL = sT[2]
        A(f"s_add_u32 s{sTL}, s{sXCC}, 1")
        A(f"s_xor_b32 s{sTL}, s{sTL}, s{sTAG}")
        A(f"v_mov_b32 v{vTAG}, s{sTAG}")
        A(f"v_mov_b32 v{vEXP}, s{sTL}")
        A(f"s_mov_b32 s{rW}, s{rWS}")
        A(f"s_mov_b32 s{rW+1}, s{rWS+1}")
        A(f"s_cmp_eq_u32 s{sW}, 1")
        A(f"s_cselect_b32 s{rW+2}, {WS_END}, 0")
        A(f"s_lshl_b32 s{t0}, s{sW}, 11")
        A(f"s_add_u32 m0, s{t0}, {L_Q}")
        for g in range(7):
            A(f"s_bfe_u32 s{sT[4+g]}, s{sWUR}, {4*g | 4 << 16}")
            A(f"s_lshl_b32 s{sT[4+g]}, s{sT[4+g]}, 12")
        for n in range(4):
            A(f"v_mov_b64 {v(vQ+8*n+6,2)}, 0")
        for k in range(vO, vO + 64, 2):
            A(f"v_mov_b64 {v(k,2)}, 0")
        A.raw(f"    s_waitcnt vmcnt({2 if P['raw_at'] == 1 else 0})")
        A("s_barrier")
        A(f"buffer_store_dword v{vEXP}, v{vONE}, {s(rW,4)}, s{sFL} offen")
        A(f"buffer_store_dwordx2 {v(vTAG,2)}, v{vONE}, {s(rSA,4)}, s{sF1} offen sc1")
        self.stamp("f1 sent")
        lp = self.lab("x1loc")
        A(f"s_mov_b32 s{sSPIN}, 0")
        A.label(lp)
        A(f"buffer_load_dword v{vPT}, v{vPL}, {s(rWS,4)}, 0 offen sc1")
        A.wait_all(lg=False)
        A(f"v_cmp_ne_u32 vcc, s{sTL}, v{vPT}")
        A(f"s_add_u32 s{sSPIN}, s{sSPIN}, 1")
        A("s_cbranch_vccz L_x1_ok")
        A(f"s_cmp_lt_u32 s{sSPIN}, {P['x1_tries']}")
        A(f"s_cbranch_scc1 {lp}")
        self.poll(vPA, vPT, "x1", backoff=2)
        A.label("L_x1_ok")
        self.stamp("x1 seen")
        A(f"buffer_load_dwordx4 v1, {s(rWS,4)}, s{sQS} offen sc1 lds")
        tq = A(f"buffer_load_dwordx4 v1, {s(rWS,4)}, s{sQS} offen offset:1024 sc1 lds")
        for it in range(2):
            for fr in range(4):
                kvload(it, fr)
        A(KVSTEP[0])
        A(KVSTEP[1])
        def trd(k):
            A.wait(tok.get("raw"))
            A(f"ds_read_b64_tr_b16 {v(vJR+4*k,2)}, v{vJT} offset:{64*k}")
            tok["tr", k] = A(f"ds_read_b64_tr_b16 {v(vJR+4*k+2,2)}, v{vJT} offset:{64*k+512}")
        if P["raw_at"]:
            trd(0)
            trd(1)
        A(f"v_mov_b32 v{vIDX}, 0xdddd")
        A("s_mov_b32 exec_hi, 0")
        A(f"v_mov_b32 v{vEXP}, s{sTAG}")
        A("s_mov_b32 exec_hi, -1")
        A(f"s_cmp_lt_u32 s{sCT1}, 14")
        A(f"s_cselect_b32 s{rW+2}, {WS_END}, 0")
        A.wait(tq)
        A("s_barrier")
        A("s_mov_b32 exec_hi, 0")
        for n in range(4):
            A(f"ds_read_b64 {v(vQ+8*n+6,2)}, v{vQR+n} offset:384")
        A("s_mov_b32 exec_hi, -1")
        for n in range(4):
            for i in range(3):
                tok["q", n] = A(f"ds_read_b64 {v(vQ+8*n+2*i,2)}, v{vQR+n} offset:{i*128}")
        A.label("L_attn_main")
        self.stamp("q ready")

        def smf(n, half):
            it, q = divmod(n, 4)
            d = vS + 16 * (n % 3)
            k = vKV + 16 * (it % 3) + 4 * half
            A(f"v_mfma_f32_32x32x16_bf16 {v(d,16)}, {v(k,4)}, {v(vQ+8*q+4*half,4)}, {v(d,16) if half else '0'}")
        def pmf(n, half):
            it, q = divmod(n, 4)
            vv = vKV + 16 * (it % 3) + 8 + 4 * half
            A(f"v_smfmac_f32_32x32x32_bf16 {v(vO+16*q,16)}, {v(vv,4)}, {v(vS+16*(n%3)+8*half,8)}, v{vIDX}")
        def owrite(slot, rq):
            A(f"ds_write_b128 v{vOW+slot}, {v(vO+16*slot+4*rq,4)} offset:{rq*1024}")

        sidew = {}
        def put(it, sl, fn):
            sidew.setdefault(16 * it + sl, []).append(fn if callable(fn) else (lambda fn=fn: A(fn)))
        def put_ops(pos, ops):
            pre, ld = ops
            for x in pre:
                put(0, pos - 1, x)
            put(0, pos, ld)
        for it in range(1, 14):
            for fr in range(4):
                put(it, 2 * fr + (2 if it == 1 else 0), lambda it=it, fr=fr: kvload(it + 2, fr))
            if it & 1:
                put(it, 15, KVSTEP[0])
                put(it, 15, KVSTEP[1])
        for it in range(15):
            put(it, 11, lambda it=it: A.wait(tok["kv", it + 1, 1 if it == 1 else 3]))
        put(2, 1, lambda: A.wait(tok["kv", 2, 3]))
        put(0, 1, lambda: A.wait(tok["kv", 0, 3]))
        def g_load(k):
            tok["x1g", k] = A(f"buffer_load_dword v{vPT+k}, v{(vPN, vPA)[k]}, {s(rWS,4)}, 0 offen sc1")
        def g_test(k):
            self.async_test(tok["x1g", k], vPT + k, (vPN, vPA)[k], f"x1g{k}", backoff=2)
            if k == 0:
                for fr in range(4):
                    kvload(2, fr)
        put(0, P["sl_gl"], lambda: g_load(0))
        put(0, P["sl_gt"], lambda: g_test(0))
        put(0, P["sl_gl2"], lambda: g_load(1))
        put(0, P["sl_gt2"], lambda: g_test(1))
        def raw():
            A(f"buffer_load_dwordx4 v{vJO}, {s(rJA,4)}, s{sJS} offen lds")
            tok["raw"] = A(f"buffer_load_dwordx4 v{vJO}, {s(rJA,4)}, s{sJS2} offen offset:1024 lds")
        def jst(k):
            A.wait(tok["tr", k])
            tok["jst", k] = A(f"buffer_store_dwordx4 {v(vJR+4*k,4)}, v1, {s(rSB,4)}, s{sJD} offen offset:{k*1024} sc1")
        if not P["raw_at"]:
            put(0, P["pos_raw"] - 1, f"s_mov_b32 m0, s{sJL}")
            put(0, P["pos_raw"], raw)
            put(0, P["pos_tr"], lambda: trd(0))
            put(0, P["pos_tr"] + 1, lambda: trd(1))
            put(0, P["pos_tr"] + 4, lambda: A.wait_all(vm=False))
        put(0, P["pos_js"], lambda: jst(0))
        put(0, P["pos_js2"], lambda: jst(1))
        def fb_send():
            A(f"s_add_u32 s{t0}, s{sF1}, {WS_F1B - WS_F1}")
            A.wait(tok["jst", 1])
            A("s_barrier")
            A(f"buffer_store_dword v{vTAG}, v{vONE}, {s(rSA,4)}, s{t0} offen sc1")
        put(0, P["pos_fs"], fb_send)
        def fb_load():
            tok["f1b"] = A(f"buffer_load_dword v{vPT}, v{vPB}, {s(rWS,4)}, 0 offen sc1")
        def fb_test():
            A.wait(tok["f1b"])
            A(f"v_cmp_ne_u32 vcc, v{vEXP}, v{vPT}")
            A(f"s_mov_b32 s{sLOC}, {P['loc']}")
            A("s_cbranch_vccnz L_fb_slow")
            A.label("L_fb_ok")
        put(0, P["pos_fl"], fb_load)
        put(0, P["pos_ft"], fb_test)
        put(P["it_touch"], 5, f"buffer_load_dword v{vPT+2}, v{vTA}, {s(rWS,4)}, 0 offen sc1")
        def xload(i):
            tok["x"] = A(f"buffer_load_dwordx4 {v(vXR+4*i,4)}, v{vXO}, {s(rX,4)}, s{sXR} offen offset:{32*i}")
        put(P["it_x"], 8, lambda: xload(0))
        put(P["it_x"], 9, lambda: xload(1))
        for q in range(3):
            for rq, sl in enumerate((9, 10, 11, 12)):
                if 4 * q + sl < 16:
                    put(15, 4 * q + sl, lambda q=q, rq=rq: owrite(q, rq))
        for it in range(1, 16):
            cap = P["cap"] if it < 14 else P["cap_end"]
            cand = (8, 12, 3, 10, 14, 1, 5, 13, 9, 7) if it < 14 else (4, 8, 12, 2, 6, 10, 14, 3, 7, 0, 5, 1, 13)
            cand = [x for x in cand if 16 * it + x not in sidew][:cap]
            nwu = min(28, -(-28 * (it + 1 - P["it_wu"]) // (P["it_wu_end"] + 1 - P["it_wu"]))) - self.wu_next
            wus = cand[:max(nwu, 0)]
            for sl in sorted(cand):
                pos = 16 * it + sl
                if sl in wus:
                    put_ops(pos, self.wu_ops())
                elif pos > P["pos_ft"] + 1:
                    if self.wo_next < 28:
                        put_ops(pos, self.wo_ops())
                    elif self.wd_next < P["wd_att"]:
                        put_ops(pos, self.wd_ops())
        pfu = [f"s_buffer_load_dwordx2 s[{d0}:{d0+1}], {s(rWU,4)}, s{sWU} offset:{k * 3584 + 60}" for k in range(32)]
        for k in range(P["pf_pre"]):
            put(0, 2 + k, pfu.pop(0))
        pos = P["pf_first"] if P["raw_at"] else P["pos_tr"] + 5
        while pfu:
            fr_ = sorted(range(pos, pos + P["pf_step"]), key=lambda x: len(sidew.get(x, [])) - (x % 4 >= 2))
            put(0, fr_[0], pfu.pop(0))
            pos += P["pf_step"]
        assert self.wu_next == 28
        self.redo_wo, self.redo_wd = max(0, (self.wo_next - 1) // 4), self.wd_win
        print(f"attention loop carries {self.wo_next} wo and {self.wd_next} w_down loads", file=sys.stderr)
        A.wait(tok["kv", 0, 1])
        A.wait_all(vm=False)
        smf(0, 0)
        smf(0, 1)
        A.nop(11)
        for n in range(64):
            it, q = divmod(n, 4)
            mf = [(lambda: smf(n + 1, 0)) if n < 63 else None, (lambda: smf(n + 1, 1)) if n < 63 else None,
                  (lambda: pmf(n - 1, 1)) if n > 0 else None, lambda: pmf(n, 0)]
            if n == 63:
                mf = [None, mf[2], None, mf[3]]
            S = vS + 16 * (n % 3)
            if P["itstamp"] and self.stamps and it in (1, 2, 3, 4, 5, 6, 7, 8, 10, 12, 14, 15):
                if q == 0:
                    A.raw("    s_memtime s[84:85]")
                if q == 2:
                    A.comment(f"stamp {self.nstamp}: it {it}")
                    A.raw(f"    v_writelane_b32 v255, s84, {self.nstamp} ; diagnostic")
                    A.raw(f"    v_writelane_b32 v255, s84, {self.nstamp + 32} ; diagnostic")
                    self.nstamp += 1
            for j in range(4):
                if mf[j]:
                    mf[j]()
                for fn in sidew.get(4 * n + j, []):
                    fn()
                for e in range(4):
                    A(f"v_exp_f32 v{S+4*j+e}, v{S+4*j+e}")
        owrite(1, 3)
        owrite(2, 0)
        pmf(63, 1)
        for rq in range(1, 4):
            owrite(2, rq)
        self.stamp("attn loop")

    def p3(self):
        A = self.A
        P = self.P
        tok = self.tok
        vO, vXR, vPT = self.vO, self.vXR, self.vPT
        t0, t1 = sT[:2]
        vOwn = vO + 48
        vT2, vT3 = 14, 15
        vAcc, vCs, vOnes, vRing = 112, 128, 144, 160
        A.wait(tok["wu", 27], tok["x"])
        A.wait_all(vm=False)
        A("s_barrier")
        tr_ = []
        for n in range(12):
            tr_.append(A(f"ds_read_b128 {v(vO+4*n,4)}, v{vOR} offset:{n*1024}"))
        A(f"s_mov_b32 s{t0}, {f32(2.0**-40)}")
        A(f"s_mov_b32 s{t1}, {f32(2.0**40)}")
        for n in (3, 7, 11, 0, 1, 2, 4, 5, 6, 8, 9, 10):
            if n in (3, 7, 11):
                A.wait(tr_[n])
            rq = n % 4
            for k in range(2):
                A(f"v_pk_add_f32 {v(vOwn+4*rq+2*k,2)}, {v(vOwn+4*rq+2*k,2)}, {v(vO+4*n+2*k,2)}")
            if n == 11:
                A(f"v_mov_b32 v{vT2}, v{vOwn+12}")
                A(f"v_mov_b32 v{vT3}, v{vOwn+12}")
            if n == 0:
                A(f"v_permlane32_swap_b32 v{vT2}, v{vT3}")
            if n == 1:
                A(f"v_rcp_f32 v{vT2}, v{vT3}")
                A(f"v_cmp_nle_f32 vcc, s{t0}, v{vT3}")
                A(f"v_cmp_nge_f32 s[{sEX}:{sEX+1}], s{t1}, v{vT3}")
        for k in range(8):
            A(f"v_pk_mul_f32 {v(vOwn+2*k,2)}, {v(vOwn+2*k,2)}, {v(vT2,2)} op_sel_hi:[1,0]")
            if k:
                A(f"v_cvt_pk_bf16_f32 v{vO+k-1}, v{vOwn+2*k-2}, v{vOwn+2*k-1}")
        A(f"v_cvt_pk_bf16_f32 v{vO+7}, v{vOwn+14}, v{vOwn+15}")
        st = [f"buffer_store_dwordx2 {v(vO+2*i,2)}, v{vOS}, {s(rWS,4)}, s{sOS} offen offset:{128*i}" for i in range(4)]
        ts = self.xstore(*st[:3], "s_mov_b32 exec_hi, 0", st[3])
        A(f"s_or_b64 vcc, vcc, s[{sEX}:{sEX+1}]")
        A(f"s_cselect_b32 s{t1}, 1, 0")
        A(f"v_mov_b32 v{vT3}, s{t1}")
        A("s_mov_b32 exec_lo, 1")
        A(f"ds_write_b32 v{vOR}, v{vT3} offset:12032")
        A("s_mov_b64 exec, -1")
        self.stamp("o stored")
        A.wait_all(vm=False)
        A("s_barrier")
        tfl = A(f"ds_read_b32 v{vT3}, v{vFL}")
        NB = 4
        cs = dict(rd=0, mf=0)
        def cs_read():
            k = cs["rd"]; cs["rd"] += 1
            b = vRing + 4 * (k % NB)
            A(f"ds_read_b64_tr_b16 {v(b,2)}, v{vCW} offset:{k*2048}")
            tok["cs", k] = A(f"ds_read_b64_tr_b16 {v(b+2,2)}, v{vCW} offset:{k*2048+512}")
        def cs_steps(n):
            for _ in range(n):
                k = cs["mf"]; cs["mf"] += 1
                A.wait(tok["cs", k])
                A(f"v_mfma_f32_32x32x16_bf16 {v(vCs,16)}, {v(vOnes,4)}, {v(vRing+4*(k%NB),4)}, {v(vCs,16) if k else '0'}")
                if cs["rd"] < 28:
                    cs_read()
        for k in range(NB):
            cs_read()
        for k in range(4):
            A(f"v_mov_b32 v{vOnes+k}, 0x3f803f80")
        A.wait(tfl)
        A(f"v_cmp_ne_u32 vcc, 0, v{vT3}")
        A(f"s_cmp_lg_u32 s{sMODE}, 0")
        A(f"s_cselect_b64 vcc, 0, vcc")
        A("s_cbranch_vccnz L_redo")
        A(f"s_cmp_eq_u32 s{sLOC}, 0")
        A(f"s_cselect_b64 vcc, -1, 0")
        A.wait(ts)
        self.xstore(f"buffer_store_dword v{vTAG}, v{vONE}, {s(rWS,4)}, s{sF2A} offen", cond="vcc")
        self.stamp("f2a sent")
        A(f"s_mov_b32 m0, s{sOL}")
        cs_steps(P["cs_a"] // 2)
        tp = A(f"buffer_load_dword v{vPT}, v{vP2A}, {s(rWS,4)}, 0 offen sc1")
        cs_steps(P["cs_a"] - P["cs_a"] // 2)
        self.async_test(tp, vPT, vP2A, "x2a")
        self.stamp("x2a seen")
        for k in range(7):
            if k == 4:
                A(f"s_add_u32 m0, s{sOL}, 4096")
                A(f"s_add_u32 s{sOB}, s{sOB}, 4096")
            to = A(f"buffer_load_dwordx4 v1, {s(rWS,4)}, s{sOB} offen offset:{(k%4)*1024} sc1 lds")
        while self.wo_next < 28:
            pre, ld = self.wo_ops()
            for x in pre:
                A(x)
            ld()
        cs_steps(28 - cs["mf"])
        A(f"s_mov_b32 s{t1}, 0xffff0000")
        for d in range(8):
            A(f"v_lshlrev_b32 v{vAcc+2*d}, 16, v{vXR+d}")
            A(f"v_and_b32 v{vAcc+2*d+1}, s{t1}, v{vXR+d}")
        A(f"v_and_b32 v{vCs+1}, s{t1}, v{vCs}")
        A(f"v_sub_f32 v{vCs}, v{vCs}, v{vCs+1}")
        A(f"v_lshrrev_b32 v{vCs+1}, 16, v{vCs+1}")
        A(f"v_and_or_b32 v{vCs}, v{vCs}, s{t1}, v{vCs+1}")
        A(f"v_mov_b64 {v(vCs+2,2)}, 0")
        A("s_mov_b32 exec_lo, 0")
        A(f"v_mov_b64 {v(vCs,2)}, 0")
        A("s_mov_b32 exec_lo, -1")
        A(f"ds_write_b128 v{vOR}, {v(vCs,4)} offset:8192")
        A.wait(to)
        A("s_barrier")
        self.xstore(f"buffer_store_dword v{vTAG}, v{vONE}, {s(rSA,4)}, s{sFL} offen offset:640", cond="vcc")
        self.stamp("o loaded")
        NR = 8
        def bread(k):
            tok["ob", k] = A(f"ds_read_b128 {v(vRing+4*(k%NR),4)}, v{vOB} offset:{k*256}")
        for k in range(NR - 1):
            bread(k)
        A.wait(tok["ob", 0], tok["wo", 0])
        n_wd = P["wd_gemm"]
        for k in range(28):
            A(f"v_mfma_f32_32x32x16_bf16 {v(vAcc,16)}, {a(4*k,4)}, {v(vRing+4*(k%NR),4)}, {v(vAcc,16)}")
            if k < 27:
                A.wait(tok["ob", k + 1], tok["wo", k + 1])
            if k + NR - 1 < 28:
                bread(k + NR - 1)
            if k == P["k_2c"]:
                tc = A(f"buffer_load_dword v{vPT}, v{vP2C}, {s(rWS,4)}, 0 offen offset:640 sc1")
            if k % 2 == 0 and n_wd and self.wd_next < 56 and (self.wd_next < 36 or self.wd_next - 36 < k):
                self.wd_load()
                n_wd -= 1
        self.stamp("wo done")
        self.async_test(tc, vPT, vP2C, "x2c", imm=640)
        A(f"s_cmp_lt_u32 s{sCT1}, 14")
        A(f"s_cselect_b32 s{t0}, 1.0, 0")
        A.nop(7)
        vPk, vSm = 48, 56
        for i in range(2):
            for k in range(4):
                A(f"v_cvt_pk_bf16_f32 v{vPk+4*i+k}, v{vAcc+8*i+2*k}, v{vAcc+8*i+2*k+1}")
            self.xstore(f"buffer_store_dwordx4 {v(vPk+4*i,4)}, v1, {s(rW,4)}, s{sHS} offen offset:{1024*i}", cond="vcc")
        A(f"v_pk_add_f32 {v(vSm,2)}, {v(vAcc,2)}, {v(vAcc+2,2)}")
        A(f"v_pk_mul_f32 {v(vSm+2,2)}, {v(vAcc,2)}, {v(vAcc,2)}")
        A(f"v_pk_fma_f32 {v(vSm+2,2)}, {v(vAcc+2,2)}, {v(vAcc+2,2)}, {v(vSm+2,2)}")
        for k in range(2, 8):
            A(f"v_pk_add_f32 {v(vSm,2)}, {v(vSm,2)}, {v(vAcc+2*k,2)}")
            A(f"v_pk_fma_f32 {v(vSm+2,2)}, {v(vAcc+2*k,2)}, {v(vAcc+2*k,2)}, {v(vSm+2,2)}")
        A(f"v_add_f32 v{vSm}, v{vSm}, v{vSm+1}")
        A(f"v_add_f32 v{vSm+2}, v{vSm+2}, v{vSm+3}")
        A.nop(2)
        A(f"v_permlane32_swap_b32 v{vSm}, v{vSm+2}")
        A(f"v_add_f32 v{vSm}, v{vSm}, v{vSm+2}")
        A(f"v_mul_legacy_f32 v{vSm}, s{t0}, v{vSm}")
        A(f"ds_write_b32 v{vSW}, v{vSm}")
        A.wait_all(vm=False)
        A("s_barrier")
        A(f"ds_read_b128 {v(vSm,4)}, v{vSR}")
        A.wait_all(vm=False)
        A(f"v_pk_add_f32 {v(vSm,2)}, {v(vSm,2)}, {v(vSm+2,2)}")
        A(f"v_add_f32 v{vSm}, v{vSm}, v{vSm+1}")
        ts = self.xstore(f"buffer_store_dword v{vSm}, v1, {s(rSA,4)}, s{sSS} offen", cond="vcc")
        self.stamp("h stored")
        for _ in range(P["x2b_pre"]):
            if self.wd_next < 56:
                self.wd_load()
        A.wait(ts)
        self.xstore(f"buffer_store_dword v{vTAG}, v{vONE}, {s(rWS,4)}, s{sF2B} offen", cond="vcc")
        self.stamp("f2b sent")

    def gelu_ops(self, acc, out, c0, c1, s2):
        vT = 208
        seq = []
        for i in range(0, 8, 2):
            ops = []
            for k in (0, 1):
                g, u, t = acc + i + k, acc + 8 + i + k, vT + k
                ops.append([f"v_mul_f32 v{t}, v{g}, v{g}", f"v_fma_f32 v{t}, v{t}, v{c1}, v{c0}",
                            f"v_mul_f32 v{t}, v{t}, v{g}", f"v_exp_f32 v{t}, v{t}", f"v_mul_f32 v{u}, v{g}, v{u}",
                            f"v_fma_f32 v{t}, v{t}, v{s2}, v{s2}", f"v_rcp_f32 v{t}, v{t}", f"v_mul_f32 v{t}, v{t}, v{u}"])
            x, y = ops
            seq += [x[0], y[0], x[1], y[1], x[2], y[2], x[3], y[3], x[4], x[5], y[5], x[6], y[6], y[4], x[7], y[7]]
            seq.append(f"v_cvt_pk_bf16_f32 v{out + i // 2}, v{vT}, v{vT+1}")
        return seq

    def p4(self):
        A = self.A
        P = self.P
        tok = self.tok
        t0, t1, t2, sAS2, sH, sMSK = sT[:6]
        vHN, vAc, vWf, vOut, vM, vCS = 16, 128, 192, 212, 244, 15
        CON = ((210, 211, 5), (252, 253, 13))
        c0 = -2.0 * math.log2(math.e) * math.sqrt(2.0 / math.pi)
        A(f"s_cmp_ge_u32 s{sJ}, 28")
        A("s_cbranch_scc1 L_help")
        tp = A(f"buffer_load_dword v14, v{vP2B}, {s(rWS,4)}, 0 offen sc1")
        A(f"s_add_u32 s{sAS2}, s{sAS}, {4*112*1024}")
        A(f"v_add_u32 v{vCS}, {L_SC + 8192}, v1")
        A(f"s_mov_b32 s{sMSK}, 0xffff0000")
        vA1 = 240
        A(f"v_add_u32 v{vA1}, {4*112*1024}, v1")
        A(f"s_mul_i32 s{t0}, s{sCT}, {4096 * P['rot']}")
        for p_ in range(7):
            A(f"s_add_u32 s{sT[6+p_]}, s{sA}, s{t0}")
            if p_ < 6:
                A(f"s_add_u32 s{t0}, s{t0}, 4096")
                A(f"s_cmp_eq_u32 s{t0}, 28672")
                A(f"s_cselect_b32 s{t0}, 0, s{t0}")
        passes = {0: [(0, 1), (2, 3), (4, 5), (6, 7)], 1: [(0, 1), (2, 3), (4,), (5,), (6,), (7,)],
                  2: [(0, 1), (2, 3), (4, 5), (6,), (7,)]}[P["passes"]]
        stages = {0: [(0, 1), (2, 3), (4, 5), (6, 7)], 1: [(0, 1), (2, 3), (4,), (5,), (6,), (7,)],
                  2: [(0, 1), (2, 3), (4, 5), (6,), (7,)], 3: [(0, 1, 2, 3), (4, 5), (6,), (7,)]}[P["stages"]]
        NST = len(stages)
        first = [7 * sum(len(x) for x in stages[:q]) for q in range(NST + 1)]
        order = [(i, k) for ps in passes for k in range(29) for i in ps]
        NUP = len(order)
        last_use = {k: max(n for n, (i, kk) in enumerate(order) if kk == k) for k in range(28)}
        NB = P["nb"]
        WF = [vWf + 4 * i for i in range(4)] + [236, 232, 228]
        def wread(n):
            i, k = order[n]
            tt = i & 3
            b = WF[n % NB]
            if k == 28:
                tok["wf", n] = A(f"ds_read_b128 {v(b,4)}, v{vCS} offset:{tt*12288}")
            else:
                A(f"ds_read_b64_tr_b16 {v(b,2)}, v{vWA+tt} offset:{k*2048}")
                tok["wf", n] = A(f"ds_read_b64_tr_b16 {v(b+2,2)}, v{vWA+tt} offset:{k*2048+512}")
        for n in range(NB - 1):
            wread(n)
        self.async_test(tp, 14, vP2B, "x2b")
        self.stamp("x2b seen")
        hwin = [0]
        def hn_load(rho, k):
            win = rho * 4 * SLOT + (k // 8) * 8192
            if win != hwin[0]:
                A(f"s_add_u32 s{sHN}, s{sHN}, {win - hwin[0]}")
                hwin[0] = win
            tok["hn", rho, k] = A(f"buffer_load_dwordx4 {v(vHN+4*k,4)}, v{vL4K if k & 4 else 1}, {s(rWS,4)}, s{sHN} offen offset:{(k%4)*1024} sc1")
        SVC, DEPTH = P["svc"], P["depth"]
        M = dict(t=0, q=0)
        done = {}
        def vm(key, lat):
            M["q"] = max(M["q"], M["t"]) + SVC
            done[key] = M["q"] + lat
        gq = []
        def drain(n, budget):
            while gq and gq[0][0] <= n:
                o = gq[0][1]
                c = (8 if o.startswith(("v_exp", "v_rcp", "v_rsq")) else 4) if isinstance(o, str) else 12
                if c > budget:
                    break
                budget -= c
                gq.pop(0)
                A(o) if isinstance(o, str) else o()
        def a_store(i):
            tok["as", i] = A(f"buffer_store_dwordx4 {v(vOut+4*(i&1),4)}, v{vONE if P['dbg_st'] >= 8 else 1}, {s(rWS,4)}, s{sAS2 if i >= 4 else sAS} offen offset:{(i%4)*1024} " + ("sc1", "", "sc0 sc1", "sc1 nt", "nt")[P["dbg_st"] % 8])
            vm(("as", i), P["lat_far"])
        st = dict(sent=0, polled=0, seen=0)
        def f3_send():
            q = st["sent"]
            if q == 4:
                A(f"v_xor_b32 v{vTAG}, 0x80000000, v{vTAG}")
            A.wait(tok["as", stages[q][-1]])
            self.xstore(f"buffer_store_dword v{vTAG}, v{vONE}, {s(rWS,4)}, s{sF3} offen offset:{512 * (q % 4)}", cond="vcc")
            done["sent", q] = max(M["q"], M["t"]) + P["lat_flag"]
            st["sent"] += 1
        def f3_load():
            q = st["polled"]
            tok["p3", q] = A(f"buffer_load_dword v14, v{vP3}, {s(rWS,4)}, 0 offen offset:{512 * (q % 4)} sc1")
            done["poll", q] = max(M["q"], M["t"]) + P["lat_loc"]
            st["polled"] += 1
        def f3_test():
            q = st["seen"]
            if P["notest"]:
                A.wait(tok["p3", q])
            else:
              self.async_test(tok["p3", q], 14, vP3, f"x3_{q}", imm=512 * (q % 4), mode="late" if q >= 4 else ("either" if q + 4 < NST else None))
            st["seen"] += 1
        DORD = [(g[0] >> 2, k) for g in stages for k in (self.KORD if len(g) == 4 else range(28)) if k % 4 in [i & 3 for i in g]]
        wslot = {k: 2 * i for i, k in enumerate(self.KORD)}
        free = [(220 + 4 * i, -1 if i < 9 - NB else NUP, 99) for i in range(5)] + [(256 + 80 + 4 * i, -1, 99) for i in range(8)]
        free += [(vHN + 4 * k, last_use[k], 28 if k < 16 else 99) for k in range(8, 28)]
        areg = {}
        an = dict(next=0, win=0)
        def a_ready(n):
            p = an["next"]
            if p >= first[st["seen"]]:
                return None
            ok = [x for x in free if x[1] <= n and p < x[2]]
            return min(ok, key=lambda x: x[2]) if ok else None
        def a_load(slot):
            p = an["next"]
            an["next"] += 1
            free.remove(slot)
            areg[p] = slot
            rho, k = DORD[p]
            tok["a", p] = A(f"buffer_load_dwordx4 {r(slot[0],4)}, v{vA1 if rho else 1}, {s(rWS,4)}, s{sT[6 + k // 4]} offen offset:{(k % 4) * 1024} sc1")
            vm(("a", p), P["lat_a"])
        hn_next = [0]
        def hn_pop():
            rho, k = divmod(hn_next[0], 28)
            hn_next[0] += 1
            hn_load(rho, k)
            vm(("hn", rho, k), P["lat_loc"])
        def side(n):
            used = 0
            t = M["t"]
            late = n >= NUP + 2 * first[st["seen"]] - P["lead"]
            key = ("as", stages[st["sent"]][-1]) if st["sent"] < NST else None
            if st["seen"] < st["polled"]:
                if t >= done["poll", st["seen"]] or late:
                    f3_test(); used += 16
            elif st["polled"] < st["sent"]:
                if t >= done["sent", st["polled"]] or late:
                    f3_load(); used += 4
            elif key in done and late:
                f3_send(); used += 12
                key = None
            if key in done and t >= done[key]:
                f3_send(); used += 12
            for _ in range(2):
                if M["q"] - t >= (DEPTH if n < P["n_deep"] else P["depth2"]) * SVC:
                    break
                h = hn_next[0]
                slot = a_ready(n)
                if h < 28 or (h < 56 and n >= 58 + 2 * (h - 28) + 1):
                    hn_pop()
                elif slot and (self.wd_next >= 56 or an["next"] <= self.wd_next // 2):
                    a_load(slot)
                elif self.wd_next < 56:
                    self.wd_load()
                    vm(("wd", self.wd_next - 1), P["lat_loc"])
                elif slot:
                    a_load(slot)
                else:
                    break
                used += 5
            return used
        for k in range(P["hn_pre"]):
            hn_pop()
        def st_load():
            A(f"buffer_load_dwordx4 {v(vM,4)}, v1, {s(rWS,4)}, s{sSTR} offen sc1")
            tok["st"] = A(f"buffer_load_dwordx4 {v(vM+4,4)}, v{vL4K}, {s(rWS,4)}, s{sSTR} offen sc1")
            vm("st", 0); vm("st", 0)
        gq.append((8, st_load))
        gq.append((30, lambda: A.wait(tok["st"])))
        seqs = []
        for rho in range(2):
            m, (k0, k1, s2) = vM + 4 * rho, CON[rho]
            seqs.append([f"v_add_f32 v{m}, v{m}, v{m+1}", f"v_add_f32 v{m+2}, v{m+2}, v{m+3}", f"v_add_f32 v{m}, v{m}, v{m+2}",
                         f"v_mul_f32 v{m}, {f32(1.0/448)}, v{m}", f"v_mov_b32 v{m+1}, v{m}", "s_nop 0",
                         f"v_permlane32_swap_b32 v{m}, v{m+1}",
                         f"v_fma_f32 v{m+1}, -v{m}, v{m}, v{m+1}", f"v_max_f32 v{m+1}, 0, v{m+1}",
                         f"v_add_f32 v{s2}, {f32(1e-5)}, v{m+1}", f"v_rsq_f32 v{m+1}, v{s2}",
                         f"v_sub_f32 v{m}, 0, v{m}", f"v_mul_f32 v{k0}, {f32(c0)}, v{m+1}", f"v_mul_f32 v{m+1}, v{m+1}, v{m+1}",
                         f"v_mul_f32 v{k1}, {f32(0.044715)}, v{m+1}", f"v_mul_f32 v{k1}, v{k1}, v{k0}",
                         f"v_and_b32 v{m+2}, s{sMSK}, v{m}", f"v_sub_f32 v{m+1}, v{m}, v{m+2}",
                         f"v_lshrrev_b32 v{m+1}, 16, v{m+1}", f"v_lshrrev_b32 v{m}, 16, v{m+2}", f"v_or_b32 v{m}, v{m}, v{m+2}",
                         f"v_mov_b32 v{m+2}, 0", f"v_mov_b32 v{m+3}, 0"])
        for x, y in zip(*seqs):
            gq.append((30, x))
            gq.append((30, y))
        M["t"] = done["hn", 0, 0]
        A.wait(tok["wf", 0], tok["hn", 0, 0])
        for n, (i, k) in enumerate(order):
            acc = vAc + 16 * (i & 3)
            if P["fstamp"] and n and n % 58 == 0:
                self.stamp(f"up {n}")
            if n == 54:
                assert not gq
            if k == 0 and i >= 4:
                while ("as", i - 4) not in tok:
                    drain(n, 64)
            bop = vM + 4 * (i >> 2) if k == 28 else vHN + 4 * k
            A(f"v_mfma_f32_32x32x16_bf16 {v(acc,16)}, {v(WF[n % NB],4)}, {v(bop,4)}, {v(acc,16) if k else '0'}")
            if n + 1 < NUP:
                i1, k1 = order[n + 1]
                k1 = min(k1, 27)
                while ("hn", i1 >> 2, k1) not in tok:
                    hn_pop()
                A.wait(tok["wf", n + 1], tok["hn", i1 >> 2, k1])
                M["t"] = max(M["t"], done["hn", i1 >> 2, k1] - 32)
            if n + NB - 1 < NUP:
                wread(n + NB - 1)
            budget = P["valu"] - side(n)
            if k == 28:
                for o in self.gelu_ops(acc, vOut + 4 * (i & 1), *CON[i >> 2]):
                    gq.append((n + (4 if n < NUP - 2 else 9), o))
                gq.append((n + 4, lambda i=i: a_store(i)))
            drain(n, max(budget, P["min_valu"] if n > 58 else 12))
            M["t"] += P["t_up"]
        self.stamp("up mfma")
        vAcc = 16
        vRd, vOo, vWr = 8, 200, 9
        vH, vU, vR = 192, 128, 136
        fill = [f"s_mul_i32 s{t1}, s{sW}, 5",
                f"s_and_b32 s{t1}, s{t1}, 6",
                f"s_lshl_b32 s{t2}, s{sCT}, 3",
                f"s_add_u32 s{t1}, s{t1}, s{t2}",
                f"s_lshl_b32 s{t2}, s{t1}, 9",
                f"s_add_u32 s{sH}, s{sOO}, s{t2}",
                f"s_add_u32 s{sH}, s{sH}, {WS_H}",
                f"s_lshl_b32 s{t2}, s{t1}, 4",
                f"s_add_u32 s{sOO}, s{sOO}, s{t2}",
                f"v_and_b32 v{vOo}, 31, v0",
                f"v_mul_u32_u24 v{vOo}, 896, v{vOo}",
                f"v_lshrrev_b32 v{vRd}, 5, v0",
                f"v_lshl_add_u32 v{vOo}, v{vRd}, 4, v{vOo}"]
        for x in range(1, 4):
            fill += [f"s_xor_b32 s{t0}, s{sW}, {x}", f"s_mul_i32 s{t0}, s{t0}, 12288",
                     f"s_add_u32 s{t0}, s{t0}, {L_SC + (x-1)*2048}", f"v_add_u32 v{vWr+x-1}, s{t0}, v1"]
        fill += [f"s_mul_i32 s{t0}, s{sW}, 12288", f"s_add_u32 s{t0}, s{t0}, {L_SC}", f"v_add_u32 v{vRd}, s{t0}, v1"]
        n = NUP
        def hload():
            A(f"buffer_load_dwordx4 {v(vH,4)}, v1, {s(rWS,4)}, s{sH} offen sc1")
            A(f"s_add_u32 s{sH}, s{sH}, {4*SLOT}")
            tok["h"] = A(f"buffer_load_dwordx4 {v(vH+4,4)}, v1, {s(rWS,4)}, s{sH} offen sc1")
            vm("h", 0); vm("h", 0)
        for o in fill + [hload]:
            gq.append((n, o))
        def mf(pos, e):
            rho = pos // 28
            d = vAcc + 32 * rho + 16 * e
            A(f"v_mfma_f32_32x32x16_bf16 {v(d,16)}, {a(self.wd_reg(wslot[DORD[pos][1]]+e),4)}, {r(areg[pos][0],4)}, {v(d,16) if pos % 28 else '0'}")
        def pw(rho, x):
            pc, rq = 1 + x // 2, x % 2
            A(f"ds_write_b128 v{vWr+pc-1}, {v(vAcc+32*rho+16*(pc&1)+8*(pc>>1)+4*rq,4)} offset:{rho*6144+rq*1024}")
        def pr(rho, x):
            tok["pr", x] = A(f"ds_read_b128 {v(vR+4*x,4)}, v{vRd} offset:{rho*6144+x*1024}")
        def unpack(rho):
            ops = []
            for d in range(4):
                ops += [f"v_lshlrev_b32 v{vU+2*d}, 16, v{vH+4*rho+d}", f"v_and_b32 v{vU+2*d+1}, s{sMSK}, v{vH+4*rho+d}"]
            return ops
        def ostore(rho):
            A(f"buffer_store_dwordx4 {v(vH+4*rho,4)}, v{vOo}, {s(rOUT,4)}, s{sOO} offen")
            if rho == 0:
                A(f"s_add_u32 s{sOO}, s{sOO}, {4*SLOT}")
                vm("o", 0)
        def bar():
            A.wait_all(vm=False)
            A("s_barrier")
        def need(pos, n):
            guard = 0
            while ("a", pos) not in tok or (pos < 28 and ("wd", 2 * pos + 1) not in tok):
                if st["sent"] < NST and ("as", stages[st["sent"]][-1]) not in done and st["sent"] == st["seen"] and an["next"] >= first[st["seen"]]:
                    drain(n, 64)
                M["t"] += 64
                side(n)
                guard += 1
                assert guard < 400
            toks = [tok["a", pos]] + ([tok["wd", 2 * pos + 1]] if pos < 28 else [])
            A.wait(*toks)
            M["t"] = max(M["t"], done["a", pos] - 32)
        KT = 4
        need(0, n - 1)
        for pos in range(56 - KT):
            if P["fstamp"] and pos and pos % 14 == 0:
                self.stamp(f"down {pos}")
            for e in range(2):
                mf(pos, e)
                if e == 1:
                    free.append((areg[pos][0], n, areg[pos][2]))
                    need(pos + 1, n)
                budget = 22 - side(n)
                if pos == 27 and e == 1:
                    own = vAcc
                    for x in range(6):
                        gq.append((n + 12 + x, lambda x=x: pw(0, x)))
                    gq.append((n + 12, lambda: A.wait(tok["h"])))
                    for o in unpack(0):
                        gq.append((n + 12, o))
                    for d in range(8):
                        gq.append((n + 12, f"v_add_f32 v{own+d}, v{own+d}, v{vU+d}"))
                    gq.append((n + 22, bar))
                    for x in range(6):
                        gq.append((n + 22, lambda x=x: pr(0, x)))
                    for o in unpack(1):
                        gq.append((n + 22, o))
                    gq.append((n + 30, lambda: A.wait(tok["pr", 5])))
                    for x in range(6):
                        for d in range(4):
                            gq.append((n + 30, f"v_add_f32 v{own+4*(x%2)+d}, v{own+4*(x%2)+d}, v{vR+4*x+d}"))
                    for d in range(4):
                        gq.append((n + 30, f"v_cvt_pk_bf16_f32 v{vH+d}, v{own+2*d}, v{own+2*d+1}"))
                    gq.append((n + 30, lambda: ostore(0)))
                drain(n, max(budget, 12) if ("as", 7) in tok else P["tail_valu"])
                M["t"] += 32
                n += 1
        while gq:
            drain(n + 99, 64)
        need(55, n)
        print(f"model: end of schedule at {M['t']} cycles", file=sys.stderr)
        for pos in range(56 - KT, 56):
            mf(pos, 1)
        for x, pos in enumerate(range(56 - KT, 56)):
            mf(pos, 0)
            if x == KT - 2:
                A.nop(12 - (KT - 1))
                pw(1, 0)
                pw(1, 1)
        pw(1, 4)
        pw(1, 5)
        A.nop(10)
        pw(1, 2)
        pw(1, 3)
        self.stamp("down mfma")
        own = vAcc + 32
        for k in range(4):
            A(f"v_pk_add_f32 {v(own+2*k,2)}, {v(own+2*k,2)}, {v(vU+2*k,2)}")
        bar()
        for x in range(6):
            pr(1, x)
        for x in range(6):
            if x % 2 == 0:
                A.wait(tok["pr", x + 1])
            for k in range(2):
                A(f"v_pk_add_f32 {v(own+4*(x%2)+2*k,2)}, {v(own+4*(x%2)+2*k,2)}, {v(vR+4*x+2*k,2)}")
        for d in range(4):
            A(f"v_cvt_pk_bf16_f32 v{vH+4+d}, v{own+2*d}, v{own+2*d+1}")
        ostore(1)
        self.stamp("out stored")

    def tail(self):
        A = self.A
        if self.stop in ("setup", "p1"):
            return
        if self.stop not in ("p2", "p3"):
            A.label("L_help")
            t0 = sT[0]
            A(f"s_cmp_lg_u32 s{sL}, 31")
            A("s_cbranch_scc1 L_help_end")
            A(f"s_lshl_b32 s{t0}, s{sW}, 13")
            A(f"s_add_u32 s{t0}, s{t0}, {WS_F1}")
            A(f"v_lshl_add_u32 v7, v0, 7, s{t0}")
            self.poll(7, 8, "all")
            A("s_barrier")
            A(f"buffer_store_dword v{vTAG}, v{vONE}, {s(rSA,4)}, 0 offen sc1")
            A.label("L_help_end")
            self.end()
        for ls, lb, vaddr, vtmp, name, imm, width, backoff, mode in self.spins:
            A.label(ls)
            A(f"s_mov_b64 s[{sEX}:{sEX+1}], vcc")
            self.poll(vaddr, vtmp, name, imm=imm, width=width, backoff=backoff, mode=mode)
            A(f"s_mov_b64 vcc, s[{sEX}:{sEX+1}]")
            A(f"s_branch {lb}")
        for ls, lb, texts in self.far:
            A.label(ls)
            for t in texts:
                A(t + (" sc1" if t.startswith("buffer_") else ""))
            A(f"s_branch {lb}")
        A.label("L_fb_slow")
        vPT = self.vPT
        A(f"s_lshl_b32 s{sT[0]}, s{sG}, 12")
        A(f"s_add_u32 s{sT[0]}, s{sT[0]}, {WS_F1 - 4096}")
        A(f"v_mov_b32 v{vPT+3}, v{vPB}")
        A("s_mov_b32 exec_lo, 0")
        A(f"v_lshl_add_u32 v{vPT+3}, v0, 7, s{sT[0]}")
        A("s_mov_b32 exec_lo, -1")
        self.poll(vPT + 3, vPT, "fbs", width=2, backoff=2)
        A(f"v_cmp_ne_u32 vcc, s{sXCC}, v{vPT+1}")
        A(f"s_cmp_eq_u32 vcc_hi, 0")
        A(f"s_cselect_b32 s{sLOC}, {self.P['loc']}, 0")
        A("s_branch L_fb_ok")
        if self.stop == "p2":
            return
        A.label("L_redo")
        A(f"s_mov_b32 s{sMODE}, 1")
        A(f"s_mov_b32 s{rSB+2}, 0")
        A(f"s_mov_b32 s{rJA+2}, 0")
        A(f"v_subrev_u32 v{vWU}, {3 * (28672 - 1024)}, v{vWU}")
        A(f"s_sub_u32 s{sWO}, s{sWO}, {self.redo_wo * 8192}")
        A(f"s_sub_u32 s{sWD}, s{sWD}, {self.redo_wd * 4096}")
        self.maxpass()
        for it in range(2):
            for fr in range(4):
                self.kvload(it, fr)
        A(self.KVSTEP[0])
        A(self.KVSTEP[1])
        A.wait_all()
        A("s_branch L_attn_main")

    def maxpass(self):
        A = self.A
        vQ, vS = self.vQ, self.vS
        t0, t1 = sT[:2]
        vM, vK = 48, 56
        A.wait_all()
        A("s_barrier")
        for n in range(4):
            A(f"v_mov_b32 v{vM+n}, 0xff800000")
        A(f"s_lshl_b32 s{t0}, s{sW}, 16")
        A(f"s_add_u32 s{t0}, s{t0}, {WS_KV}")
        A(f"s_mov_b32 s{t1}, 0")
        A.label("L_mp_loop")
        A(f"buffer_load_dwordx4 {v(vK,4)}, v1, {s(rWS,4)}, s{t0} offen sc1")
        A(f"buffer_load_dwordx4 {v(vK+4,4)}, v1, {s(rWS,4)}, s{t0} offen offset:1024 sc1")
        A.wait_all(lg=False)
        for n in range(4):
            A(f"v_mfma_f32_32x32x16_bf16 {v(vS,16)}, {v(vK,4)}, {v(vQ+8*n,4)}, 0")
            A(f"v_mfma_f32_32x32x16_bf16 {v(vS,16)}, {v(vK+4,4)}, {v(vQ+8*n+4,4)}, {v(vS,16)}")
            A.nop(12)
            for k in range(8):
                A(f"v_max3_f32 v{vM+n}, v{vM+n}, v{vS+2*k}, v{vS+2*k+1}")
        A(f"s_add_u32 s{t0}, s{t0}, 4096")
        A(f"s_add_u32 s{t1}, s{t1}, 1")
        A(f"s_cmp_lt_u32 s{t1}, 16")
        A("s_cbranch_scc1 L_mp_loop")
        A("v_lshlrev_b32 v64, 2, v0")
        for n in range(4):
            A(f"s_add_u32 s{t0}, s{sW}, {n+1}")
            A(f"s_and_b32 s{t0}, s{t0}, 3")
            A(f"s_lshl_b32 s{t0}, s{t0}, 10")
            A(f"s_add_u32 s{t0}, s{t0}, {L_SC}")
            A(f"v_and_b32 v65, 31, v0")
            A(f"v_lshl_add_u32 v{68+n}, v65, 2, s{t0}")
            A(f"s_lshl_b32 s{t1}, s{sW}, 8")
            A(f"s_add_u32 s{t0}, s{t0}, s{t1}")
            A(f"v_add_u32 v65, s{t0}, v64")
            A(f"ds_write_b32 v65, v{vM+n}")
        A.wait_all(vm=False)
        A("s_barrier")
        for n in range(4):
            for k in range(8):
                A(f"ds_read_b32 v{72+k}, v{68+n} offset:{128*k}")
            A.wait_all(vm=False)
            A("v_max3_f32 v72, v72, v73, v74")
            A("v_max3_f32 v72, v72, v75, v76")
            A("v_max3_f32 v72, v72, v77, v78")
            A("v_max_f32 v72, v72, v79")
            A("v_sub_f32 v72, 0, v72")
            A("v_and_b32 v73, 0xffff0000, v72")
            A("v_sub_f32 v72, v72, v73")
            A("v_and_b32 v74, 0xffff0000, v72")
            A("v_sub_f32 v72, v72, v74")
            A("v_lshrrev_b32 v73, 16, v73")
            A("v_or_b32 v73, v73, v74")
            A("v_lshrrev_b32 v72, 16, v72")
            A("s_mov_b32 exec_lo, 0")
            A(f"v_mov_b32 v{vQ+8*n+6}, v73")
            A(f"v_mov_b32 v{vQ+8*n+7}, v72")
            A("s_mov_b32 exec_lo, -1")
        for k in range(48, 112, 2):
            A(f"v_mov_b64 {v(k,2)}, 0")
        A("s_barrier")

    def build(self):
        A = self.A
        head = open("sequential_preLN__grouped_kv_mqa__geglu_ffn__prompt.s.ref").read().splitlines()
        for line in head:
            if line.startswith("; Override"):
                break
            A.raw(line)
        A.raw(f"; @launch grid=(256,1,1) block=(256,1,1) lds={LDS_BYTES}")
        A.raw('.amdgcn_target "amdgcn-amd-amdhsa--gfx950"')
        A.raw(".text")
        A.raw(f".globl {KNAME}")
        A.raw(".p2align 8")
        A.raw(f".type {KNAME},@function")
        A.label(KNAME)
        phases = [("setup", self.setup), ("p1", self.p1)]
        for nm in ("p2", "p3", "p4", "p5"):
            if hasattr(self, nm):
                phases.append((nm, getattr(self, nm)))
        for nm, fn in phases:
            A.comment(f"================ {nm} ================")
            fn()
            if self.stop == nm:
                break
        self.end()
        if hasattr(self, "tail"):
            self.tail()
        A.label("L_exit")
        A("s_endpgm")
        A.raw('.section .rodata,"a"')
        A.raw(".p2align 6")
        A.raw(f".amdhsa_kernel {KNAME}")
        for d in ("next_free_vgpr 512", "next_free_sgpr 102", "accum_offset 256", "group_segment_fixed_size 0",
                  "kernarg_size 96", "user_sgpr_count 2", "user_sgpr_kernarg_segment_ptr 1", "system_sgpr_workgroup_id_x 1"):
            A.raw("  .amdhsa_" + d)
        A.raw(".end_amdhsa_kernel")
        return A.text()


if __name__ == "__main__":
    import argparse
    ap = argparse.ArgumentParser()
    ap.add_argument("-o", default="k.s")
    ap.add_argument("--stop")
    ap.add_argument("--stamps", action="store_true")
    ap.add_argument("--dbg", type=int)
    ap.add_argument("--amp")
    ap.add_argument("-p", default="")
    args = ap.parse_args()
    txt = Gen(args.stop, args.stamps, args.dbg, tuple(map(int, args.amp.split(','))) if args.amp else None,
              {kv.split('=')[0]: int(kv.split('=')[1]) for kv in args.p.split(',') if kv}).build()
    open(args.o, "w").write(txt)
    lint(txt)
```
